```python
import torch

def _softmax(x, axis=-1):
    return torch.softmax(x, dim=axis)
def _gelu(x):
    return torch.nn.functional.gelu(x, approximate="tanh")
def _silu(x):
    return torch.nn.functional.silu(x)
def _sigmoid(x):
    return torch.sigmoid(x)
def _layernorm(x, axis=-1, eps=1e-5):
    m = x.mean(dim=axis, keepdim=True)
    v = x.var(dim=axis, keepdim=True, unbiased=False)
    return (x - m) / torch.sqrt(v + eps)
def _scatter_add(tgt, idx, src, axis=0):
    return tgt.clone().index_add_(axis, idx, src)
def _segment_sum(src, seg, n):
    out = torch.zeros((n,) + src.shape[1:], dtype=src.dtype)
    return out.index_add_(0, seg, src)
def _pad(x, pw):
    flat = tuple(v for pair in reversed(pw) for v in pair)
    return torch.nn.functional.pad(x, flat)

kernel_name = 'parallel_sum__grouped_kv_mqa__glu_gated_swiglu__prompt'

def setup_inputs():

    _w = (lambda a: (lambda t: t.to(torch.bfloat16) if t.is_floating_point() else t)(torch.as_tensor(a)))
    def _A_setup():
        B, S, D, H = 1, 2048, 512, 32
        Dh = D // H
        return {
            "x": _w((lambda *s: torch.randn(*s, dtype=torch.bfloat16) * 0.05)(B, S, D)),
            "wq": _w((lambda *s: torch.randn(*s, dtype=torch.bfloat16) * 0.05)(D, H * Dh)),
            "wk": _w((lambda *s: torch.randn(*s, dtype=torch.bfloat16) * 0.05)(D, Dh)),
            "wv": _w((lambda *s: torch.randn(*s, dtype=torch.bfloat16) * 0.05)(D, Dh)),
            "wo": _w((lambda *s: torch.randn(*s, dtype=torch.bfloat16) * 0.05)(H * Dh, D)),
        }
    _A_in = _A_setup()

    def _B_setup():
        B, S, D, F = 1, 2048, 512, 1792
        return {
            "x": _w((lambda *s: torch.randn(*s, dtype=torch.bfloat16) * 0.05)(B, S, D)),
            "w1": _w((lambda *s: torch.randn(*s, dtype=torch.bfloat16) * 0.4)(D, F) * (2.0 / D) ** 0.5),
            "w3": _w((lambda *s: torch.randn(*s, dtype=torch.bfloat16) * 0.4)(D, F) * (2.0 / D) ** 0.5),
            "w2": _w((lambda *s: torch.randn(*s, dtype=torch.bfloat16) * 0.4)(F, D) * (2.0 / F) ** 0.5),
        }
    _B_in = _B_setup()

    return {
        "A_x": _A_in["x"],
        "A_wq": _A_in["wq"],
        "A_wk": _A_in["wk"],
        "A_wv": _A_in["wv"],
        "A_wo": _A_in["wo"],
        "B_x": _B_in["x"],
        "B_w1": _B_in["w1"],
        "B_w3": _B_in["w3"],
        "B_w2": _B_in["w2"],
    }

def reference(A_x, A_wq, A_wk, A_wv, A_wo, B_x, B_w1, B_w3, B_w2):
    def _A_ref(x, wq, wk, wv, wo):
        B, S, D = x.shape
        H = 32
        Dh = D // H
        q = (lambda x, *d: x.permute(*d))((x @ wq).reshape(B, S, H, Dh), 0, 2, 1, 3)
        k = x @ wk
        v = x @ wv
        scores = torch.einsum("bhqd,bkd->bhqk", q, k) * (Dh ** -0.5)
        p = _softmax(scores, axis=-1)
        o = torch.einsum("bhqk,bkd->bhqd", p, v)
        return (lambda x, *d: x.permute(*d))(o, 0, 2, 1, 3).reshape(B, S, H * Dh) @ wo

    def _B_ref(x, w1, w3, w2):
        gate = torch.einsum("bsd,df->bsf", x, w1)
        up = torch.einsum("bsd,df->bsf", x, w3)
        h = _silu(gate) * up
        out = torch.einsum("bsf,fd->bsd", h, w2)
        return out

    x = A_x
    xn = _layernorm(x, axis=-1)
    return x + _A_ref(xn, A_wq, A_wk, A_wv, A_wo) + _B_ref(xn, B_w1, B_w3, B_w2)
```

```python
import re

class Asm:
    def __init__(self):
        self.lines = []
    def __call__(self, s):
        for ln in s.split("\n"):
            ln = ln.strip()
            if ln:
                self.lines.append(ln)
    def text(self):
        out = []
        for ln in self.lines:
            if ln.endswith(":") or ln.startswith("."):
                out.append(ln)
            else:
                out.append("    " + ln)
        return "\n".join(out) + "\n"

class Vm:
    def __init__(self, a):
        self.a = a
        self.q = []
    def issue(self, tag):
        self.q.append(tag)
    def need(self, tag):
        idx = None
        for i, t in enumerate(self.q):
            if t == tag:
                idx = i
        if idx is None:
            return None
        n = len(self.q) - 1 - idx
        return n
    def wait(self, tag, extra=""):
        n = self.need(tag)
        if n is None:
            if extra:
                self.a(f"s_waitcnt {extra}")
            return
        assert n <= 63, (tag, n)
        self.a(f"s_waitcnt vmcnt({n}) {extra}".strip())
        self.q = self.q[len(self.q) - n:] if n else []
    def drain(self):
        self.a("s_waitcnt vmcnt(0)")
        self.q = []

REG_RE = re.compile(r"^(-?)(\|?)([vsa])(\d+)(\|?)$")
RNG_RE = re.compile(r"^(-?)([vsa])\[(\d+):(\d+)\]$")
def regs_of(op):
    op = op.strip()
    if op.startswith("abs(") and op.endswith(")"):
        op = op[4:-1]
    m = REG_RE.match(op)
    if m:
        return [(m.group(3), int(m.group(4)))]
    m = RNG_RE.match(op)
    if m:
        return [(m.group(2), i) for i in range(int(m.group(3)), int(m.group(4)) + 1)]
    if op == "vcc":
        return [("s", "vcc")]
    if op in ("exec", "exec_lo", "exec_hi"):
        return [("s", "exec")]
    if op == "m0":
        return [("s", "m0")]
    return []

TRANS = ("v_exp_f32", "v_log_f32", "v_rcp_f32", "v_rsq_f32", "v_sqrt_f32", "v_sin_f32", "v_cos_f32")
class Ins:
    def __init__(self, text, idx):
        self.text = text; self.idx = idx
        t = text.split(";")[0].strip()
        self.label = None
        if t.endswith(":"):
            self.label = t[:-1]; self.op = None; return
        if t.startswith("."):
            self.op = None; return
        parts = t.split(None, 1)
        self.op = parts[0]
        rest = parts[1] if len(parts) > 1 else ""
        ops = []; depth = 0; cur = ""
        for ch in rest:
            if ch == "[": depth += 1
            if ch == "]": depth -= 1
            if ch == "," and depth == 0:
                ops.append(cur.strip()); cur = ""
            else:
                cur += ch
        if cur.strip(): ops.append(cur.strip())
        mods = ""
        if ops:
            last = ops[-1].split()
            if len(last) > 1:
                ops[-1] = last[0]; mods = " ".join(last[1:])
        self.ops = ops; self.mods = mods
        op = self.op
        self.w = []; self.r = []
        self.cls = "other"
        self.states = 1
        self.mfma_pass = 0; self.srcC = []; self.srcAB = []
        self.vm = False; self.lgkm = False; self.ld_dst = []; self.st_data = []; self.dma = False
        R = regs_of
        if op == "s_nop":
            self.states = int(ops[0]) + 1; self.cls = "salu"
        elif op.startswith("v_mfma") or op.startswith("v_smfmac"):
            self.cls = "mfma"
            self.mfma_pass = 8 if "32x32" in op else 4
            self.w = R(ops[0])
            self.srcAB = R(ops[1]) + R(ops[2])
            if op.startswith("v_smfmac"):
                self.srcAB += R(ops[3]); self.srcC = R(ops[0])
            else:
                self.srcC = R(ops[3])
            self.r = self.srcAB + self.srcC
        elif op.startswith("v_cmp"):
            self.cls = "valu"; self.w = R(ops[0]); self.r = sum((R(o) for o in ops[1:]), [])
        elif op.startswith("v_permlane") and "swap" in op:
            self.cls = "valu"; self.w = R(ops[0]) + R(ops[1]); self.r = list(self.w)
        elif op.startswith("v_"):
            self.cls = "valu"; self.w = R(ops[0]); self.r = sum((R(o) for o in ops[1:]), [])
            if op.startswith(("v_fmac", "v_dot2c")) or "_dpp" in op:
                self.r += R(ops[0])
            if op.startswith("v_cndmask") and len(ops) == 3:
                self.r += [("s", "vcc")]
        elif op.startswith("ds_read"):
            self.cls = "ds"; self.lgkm = True; self.ld_dst = R(ops[0]); self.r = R(ops[1])
        elif op.startswith("ds_write") or op.startswith("ds_add"):
            self.cls = "ds"; self.lgkm = True; self.r = sum((R(o) for o in ops), [])
        elif op.startswith("buffer_load"):
            self.cls = "vmem"; self.vm = True
            if "lds" in mods.split():
                self.dma = True; self.r = sum((R(o) for o in ops), []) + [("s", "m0")]
            else:
                self.ld_dst = R(ops[0]); self.r = sum((R(o) for o in ops[1:]), [])
        elif op.startswith("buffer_store"):
            self.cls = "vmem"; self.vm = True; self.r = sum((R(o) for o in ops), [])
            if "x4" in op or "x3" in op: self.st_data = R(ops[0])
        elif op.startswith("global_load"):
            self.cls = "vmem"; self.vm = True; self.ld_dst = R(ops[0]); self.r = sum((R(o) for o in ops[1:]), [])
        elif op.startswith("global_store"):
            self.cls = "vmem"; self.vm = True; self.r = sum((R(o) for o in ops), [])
            if "x4" in op or "x3" in op: self.st_data = R(ops[1])
        elif op.startswith("s_load") or op.startswith("s_mem"):
            self.cls = "smem"; self.lgkm = True; self.ld_dst = R(ops[0]); self.r = sum((R(o) for o in ops[1:]), [])
        elif op in ("s_waitcnt", "s_barrier", "s_setprio", "s_endpgm", "s_branch", "s_sleep") or op.startswith("s_cbranch"):
            self.cls = "ctl"
            if op == "s_cbranch_vccnz" or op == "s_cbranch_vccz": self.r = [("s", "vcc")]
        elif op.startswith("s_cmp"):
            self.cls = "salu"; self.r = sum((R(o) for o in ops), [])
        elif op.startswith("s_"):
            self.cls = "salu"; self.w = R(ops[0]); self.r = sum((R(o) for o in ops[1:]), [])
        else:
            raise ValueError("unknown op " + text)

def parse(lines):
    ins = [Ins(t, i) for i, t in enumerate(lines)]
    labels = {x.label: i for i, x in enumerate(ins) if x.label}
    return ins, labels

def succ(ins, labels, i):
    x = ins[i]
    if x.op is None:
        return [i + 1] if i + 1 < len(ins) else []
    if x.op == "s_endpgm": return []
    if x.op == "s_branch": return [labels[x.ops[0]]]
    if x.op.startswith("s_cbranch"): return [i + 1, labels[x.ops[0]]]
    return [i + 1] if i + 1 < len(ins) else []

def required(p, c):
    need = 0; why = ""
    def upd(n, w):
        nonlocal need, why
        if n > need: need, why = n, w
    pw = set(p.w)
    pwv = {x for x in pw if x[0] == "v"}
    pws = {x for x in pw if x[0] == "s"}
    if p.cls == "valu":
        if c.cls == "mfma" and pwv & set(c.r): upd(2, "valu->mfma")
        if c.cls == "valu":
            if p.op.replace("_e32", "").replace("_e64", "") in TRANS and c.op.replace("_e32", "") not in TRANS and pwv & set(c.r): upd(1, "trans->valu")
            if c.op.startswith(("v_readfirstlane", "v_readlane")) and pwv & set(c.r): upd(1, "valu->readlane")
            if c.op.startswith("v_permlane") and pwv & set(c.r): upd(2, "valu->permlane")
            if "_dpp" in c.op and pwv & set(c.r): upd(2, "valu->dpp")
            if pws & set(c.r): upd(2, "valu sgpr->valu")
        if c.cls == "vmem" and pws & set(c.r): upd(5, "valu sgpr->vmem")
    if p.cls == "mfma":
        n_valu = 12 if p.mfma_pass == 8 else 8
        n_c = 10 if p.mfma_pass == 8 else 6
        if c.cls == "valu" and pw & (set(c.r) | set(c.w)): upd(n_valu, "mfma->valu")
        if c.cls in ("vmem", "ds") and pw & (set(c.r) | set(c.ld_dst)): upd(n_valu, "mfma->mem")
        if c.cls == "mfma":
            if pw & set(c.srcAB): upd(n_valu, "mfma->mfma AB")
            if pw & set(c.srcC):
                if not (set(c.srcC) == pw and c.mfma_pass == p.mfma_pass): upd(n_c, "mfma->mfma C overlap")
        if c.cls == "valu" and set(p.srcC) & set(c.w): upd(7 if p.mfma_pass == 8 else 3, "mfma C WAR")
    if p.cls == "salu" and ("s", "m0") in pw and c.op is not None and c.dma: upd(1, "m0->dma")
    if p.st_data:
        if c.cls == "valu" and set(p.st_data) & set(c.w): upd(2, "store data WAR valu")
        elif set(p.st_data) & (set(c.w) | set(c.ld_dst)): upd(1, "store data WAR")
    return need, why

def check_hazards(lines):
    ins, labels = parse(lines)
    errs = []
    for i, p in enumerate(ins):
        if p.op is None or p.cls in ("ctl", "smem", "other"): continue
        if p.cls == "salu" and ("s", "m0") not in p.w: continue
        if p.cls in ("vmem", "ds") and not p.st_data: continue
        seen = {}
        stack = [(j, 0) for j in succ(ins, labels, i)]
        while stack:
            j, d = stack.pop()
            if d >= 12: continue
            if j in seen and seen[j] <= d: continue
            seen[j] = d
            c = ins[j]
            if c.op is not None:
                need, why = required(p, c)
                if need > d:
                    errs.append(f"HAZARD {why}: need {need} have {d}: [{i}] {p.text}  ->  [{j}] {c.text}")
                nd = d + c.states
            else:
                nd = d
            for k in succ(ins, labels, j):
                stack.append((k, nd))
    return errs

WAIT_RE = re.compile(r"(vmcnt|lgkmcnt)\((\d+)\)")
def check_waits(lines, max_states=400000):
    ins, labels = parse(lines)
    errs = set()
    seen = set()
    stack = [(0, (), (), frozenset())]
    n = 0
    while stack:
        i, vq, lq, back = stack.pop()
        while True:
            n += 1
            if n > max_states * 50:
                errs.add("check_waits: too many states"); return sorted(errs)
            x = ins[i]
            if x.label:
                key = (i, vq, lq)
                if key in seen: break
                seen.add(key)
            if x.op is not None:
                touched = set(x.r) | set(x.w) | set(x.ld_dst)
                for q, nm in ((vq, "vm"), (lq, "lgkm")):
                    for (dst, src) in q:
                        if dst & touched:
                            if not (dst & (set(x.r) | set(x.w))) and nm == ("vm" if x.vm else "lgkm"):
                                continue
                            errs.add(f"WAIT {nm}: [{src}] {ins[src].text} still in flight at [{i}] {x.text}")
                if x.op == "s_waitcnt":
                    for m in WAIT_RE.finditer(x.text):
                        c = int(m.group(2))
                        if m.group(1) == "vmcnt": vq = vq[len(vq) - c:] if c and len(vq) > c else (vq if c else ())
                        else:
                            if any(ins[s].cls == "smem" for _, s in lq) and c != 0:
                                pass
                            else:
                                lq = lq[len(lq) - c:] if c and len(lq) > c else (lq if c else ())
                if x.vm: vq = (vq + ((frozenset(x.ld_dst), i),))[-64:]
                if x.lgkm: lq = (lq + ((frozenset(x.ld_dst), i),))[-40:]
            ss = succ(ins, labels, i)
            if not ss: break
            for k in ss[1:]:
                stack.append((k, vq, lq, back))
            i = ss[0]
    return sorted(errs)
```

```python
import sys, struct, argparse
from asmlib import Asm, Vm, check_hazards, check_waits

NAME = "parallel_sum__grouped_kv_mqa__glu_gated_swiglu__prompt_kernel"

def f2u(x):
    return struct.unpack("<I", struct.pack("<f", x))[0]

FL = 0x0
F0 = 0x1000
FH = 0x10000
FO = 0x30000
TS = 0x60000
XN = 0x100000
KF = 0x300000
VF = 0x310000
OF = 0x400000
HF = 0x600000
WS_SIZE = 0x1000000
RING = 0
WQI = 65536
WKV = 98304
XROW = 131072
PITCH = 1040
QX = 140288
LFL = 148480
LDS_SIZE = 163840
RB0 = 65536

R_X, R_WS, R_WQ, R_WK, R_WV, R_W1, R_W3, R_W2, R_WO, R_OUT = [4 * i + 4 for i in range(10)]
sW, sG, sJ, sP, sE = 44, 45, 46, 47, 48
sMASK = 49
sT0, sT1, sT2, sT3, sT4, sT5 = 50, 51, 52, 53, 54, 55
sCNT = 56
sX8, sI = 57, 58
sXM = 60
sNL2 = 62
sONE = 64
sQS = 66
sBASE, sW4096 = 68, 69
sH0, sH1, sO0, sO1 = 70, 71, 72, 73
sW2, sWO, sRB, sOUT = 74, 75, 76, 77
sK = 78
sWA = 79
sPC = 80
sTS = 84

def srd(r):
    return f"s[{r}:{r+3}]"
def vr(a, n):
    return f"v[{a}:{a+n-1}]" if n > 1 else f"v{a}"

LOG2E = 1.4426950408889634
THRESH2 = 60.0 * 60.0
SPIN_G = 4000
SPIN_L = 400000


class Gen:
    def __init__(self, ts=False, force_slow=False, prioA=1, prioG=0, code_pf=True, l2pf=False):
        self.a = Asm()
        self.ts = ts
        self.nts = 0
        self.force_slow = force_slow
        self.prioA, self.prioG = prioA, prioG
        self.code_pf = code_pf
        self.l2pf = l2pf
        self.uid = 0

    def lab(self, s):
        self.uid += 1
        return f"L_{s}_{self.uid}"

    def stamp(self, i):
        if self.ts:
            self.a(f"s_memrealtime s[82:83]\ns_waitcnt lgkmcnt(0)\ns_mov_b32 s{sTS+i}, s82")

    def stamp_flush(self):
        if not self.ts:
            return
        a = self.a
        a(f"s_lshl_b32 s{sT0}, s{sP}, 3\ns_add_u32 s{sT0}, s{sT0}, s{sW}\ns_lshl_b32 s{sT0}, s{sT0}, 6\ns_add_u32 s{sT0}, s{sT0}, {TS}")
        a("s_mov_b64 exec, 1")
        a("v_mov_b32 v2, 0")
        for i in range(16):
            a(f"v_mov_b32 v3, s{sTS+i}")
            a(f"buffer_store_dword v3, v2, {srd(R_WS)}, s{sT0} offen offset:{4*i}")
        a("s_waitcnt vmcnt(0)")

    def reduce64(self, op, v, t):
        a = self.a
        for ctl in ("quad_perm:[1,0,3,2]", "quad_perm:[2,3,0,1]", "row_half_mirror", "row_mirror"):
            a("s_nop 1")
            a(f"{op}_dpp v{v}, v{v}, v{v} {ctl} row_mask:0xf bank_mask:0xf")
        for sw in ("v_permlane16_swap_b32", "v_permlane32_swap_b32"):
            a(f"v_mov_b32 v{t}, v{v}")
            a("s_nop 1")
            a(f"{sw} v{v}, v{t}")
            a(f"{op} v{v}, v{v}, v{t}")

    def poll_global(self, vaddr, soff, vdst, ndw, vm):
        a = self.a
        L, Lo = self.lab("poll"), self.lab("pollx")
        ld = "buffer_load_dword" if ndw == 1 else "buffer_load_dwordx2"
        a(f"s_mov_b32 s{sCNT}, 0")
        a(f"{L}:")
        a(f"{ld} {vr(vdst, ndw)}, v{vaddr}, {srd(R_WS)}, {soff} offen sc1")
        a(f"s_add_u32 s{sCNT}, s{sCNT}, 1")
        a("s_waitcnt vmcnt(0)")
        a(f"v_cmp_ne_u32 vcc, s{sE}, v{vdst}")
        a(f"s_cmp_gt_u32 s{sCNT}, {SPIN_G}")
        a(f"s_cbranch_scc1 {Lo}")
        a(f"s_cbranch_vccnz {L}")
        a(f"{Lo}:")
        vm.q = []

    def spin_lds(self, vaddr, vdst, cmp, first_issued=False):
        a = self.a
        L, Lo, Lc = self.lab("spin"), self.lab("spinx"), self.lab("spinc")
        a(f"s_mov_b32 s{sCNT}, 0")
        if first_issued:
            a(f"s_branch {Lc}")
        a(f"{L}:")
        a(f"ds_read_b32 v{vdst}, v{vaddr}")
        a(f"{Lc}:")
        a(f"s_add_u32 s{sCNT}, s{sCNT}, 1")
        a("s_waitcnt lgkmcnt(0)")
        a(cmp)
        a(f"s_cmp_gt_u32 s{sCNT}, {SPIN_L}")
        a(f"s_cbranch_scc1 {Lo}")
        a(f"s_cbranch_vccnz {L}")
        a(f"{Lo}:")

    def prologue(self):
        a = self.a
        a("s_cmp_ge_u32 s2, 256")
        a("s_cbranch_scc1 L_end")
        if self.ts:
            a("s_memrealtime s[82:83]")
        for r, off in ((R_X, 0), (R_WK, 16), (R_WV, 24), (R_WQ, 8), (R_W1, 48), (R_W3, 56), (R_WS, 88), (R_W2, 64), (R_WO, 32), (R_OUT, 72)):
            a(f"s_load_dwordx2 s[{r}:{r+1}], s[0:1], {off}")
        a(f"s_getpc_b64 s[{sPC}:{sPC+1}]")
        a("L_pc:")
        a("v_lshrrev_b32 v3, 6, v0")
        a("v_and_b32 v1, 63, v0")
        a(f"v_readfirstlane_b32 s{sW}, v3")
        a("v_lshlrev_b32 v2, 4, v1")
        a("v_mov_b32 v4, 0\nv_mov_b32 v5, 0\nv_mov_b32 v6, 0")
        a(f"s_and_b32 s{sX8}, s2, 7\ns_lshr_b32 s{sI}, s2, 3")
        a(f"s_and_b32 s{sT0}, s{sX8}, 1\ns_and_b32 s{sT1}, s{sI}, 7\ns_lshl3_add_u32 s{sG}, s{sT0}, s{sT1}")
        a(f"s_lshr_b32 s{sT0}, s{sX8}, 1\ns_lshr_b32 s{sT1}, s{sI}, 3\ns_lshl2_add_u32 s{sJ}, s{sT0}, s{sT1}")
        a(f"s_lshl4_add_u32 s{sP}, s{sG}, s{sJ}")
        for r, size in ((R_X, 2097152), (R_WK, 16384), (R_WV, 16384), (R_WQ, 524288), (R_W1, 1835008), (R_W3, 1835008),
                        (R_WS, WS_SIZE), (R_W2, 1835008), (R_WO, 524288), (R_OUT, 2097152)):
            a(f"s_mov_b32 s{r+2}, {size}\ns_mov_b32 s{r+3}, 0x20000")
        a(f"s_lshl3_add_u32 s{sT0}, s{sP}, s{sW}\ns_lshl_b32 s{sT0}, s{sT0}, 10")
        a(f"s_mov_b32 s{sMASK}, 0xffff0000")
        a("s_waitcnt lgkmcnt(0)")
        if self.ts:
            a(f"s_mov_b32 s{sTS}, s82")
            for i in range(1, 16):
                a(f"s_mov_b32 s{sTS+i}, 0")
        a(f"buffer_load_dwordx4 v[8:11], v2, {srd(R_X)}, s{sT0} offen")
        a(f"s_load_dword s{sE}, s[{R_WS}:{R_WS+1}], {FL}")
        a(f"s_cmp_lt_u32 s{sW}, 4")
        a("s_cbranch_scc1 L_g_dma")
        a(f"s_sub_u32 s{sWA}, s{sW}, 4")
        a(f"s_lshl_b32 s{sT0}, s{sWA}, 12")
        a(f"s_add_u32 m0, s{sT0}, {WKV}")
        a("s_nop 0")
        for n in range(4):
            a(f"buffer_load_dwordx4 v2, {srd(R_WK)}, s{sT0} offen offset:{1024*n} lds")
        a(f"s_add_u32 m0, s{sT0}, {WKV+16384}")
        a("s_nop 0")
        for n in range(4):
            a(f"buffer_load_dwordx4 v2, {srd(R_WV)}, s{sT0} offen offset:{1024*n} lds")
        for r in range(128, 256):
            a(f"v_mov_b32 v{r}, 0")
        a("s_waitcnt vmcnt(8)")
        a("L_ln:")
        self.stamp(1)
        for i in range(4):
            a(f"v_lshlrev_b32 v{12+2*i}, 16, v{8+i}")
            a(f"v_and_b32 v{13+2*i}, s{sMASK}, v{8+i}")
        a("v_add_f32 v20, v12, v13\nv_add_f32 v21, v14, v15\nv_add_f32 v22, v16, v17\nv_add_f32 v23, v18, v19")
        a("v_add_f32 v20, v20, v21\nv_add_f32 v22, v22, v23\nv_add_f32 v20, v20, v22")
        self.reduce64("v_add_f32", 20, 21)
        a(f"v_mul_f32 v20, {f2u(1/512):#x}, v20")
        for i in range(8):
            a(f"v_sub_f32 v{24+i}, v{12+i}, v20")
        a("v_mul_f32 v21, v24, v24\nv_mul_f32 v22, v25, v25")
        for i in range(2, 8):
            a(f"v_fmac_f32 v{21+(i&1)}, v{24+i}, v{24+i}")
        a("v_add_f32 v21, v21, v22")
        self.reduce64("v_add_f32", 21, 22)
        a(f"v_mul_f32 v21, {f2u(1/512):#x}, v21")
        a("v_cvt_pk_bf16_f32 v22, v20, v21")
        a("v_lshlrev_b32 v23, 16, v22")
        a(f"v_and_b32 v22, s{sMASK}, v22")
        a(f"v_add_f32 v22, {f2u(1e-5):#x}, v22")
        for i in range(8):
            a(f"v_sub_f32 v{12+i}, v{12+i}, v23")
        a("v_cvt_pk_bf16_f32 v22, v22, v22")
        a("v_lshlrev_b32 v22, 16, v22")
        a("v_sqrt_f32 v22, v22")
        for i in range(4):
            a(f"v_cvt_pk_bf16_f32 v{8+i}, v{12+2*i}, v{13+2*i}")
        a("v_cvt_pk_bf16_f32 v22, v22, v22")
        a("v_lshlrev_b32 v22, 16, v22")
        a("v_rcp_f32 v22, v22")
        for i in range(4):
            a(f"v_lshlrev_b32 v{12+2*i}, 16, v{8+i}")
            a(f"v_and_b32 v{13+2*i}, s{sMASK}, v{8+i}")
        for i in range(8):
            a(f"v_mul_f32 v{12+i}, v{12+i}, v22")
        a(f"s_mul_i32 s{sT0}, s{sW}, {PITCH}\ns_add_u32 s{sT0}, s{sT0}, {XROW}")
        for i in range(4):
            a(f"v_cvt_pk_bf16_f32 v{8+i}, v{12+2*i}, v{13+2*i}")
        a(f"v_add_u32 v32, s{sT0}, v2")
        a("ds_write_b128 v32, v[8:11]")
        a("v_and_b32 v33, 15, v1")
        a("v_add_u32 v34, -4, v33")
        a("v_cmp_gt_u32 vcc, 8, v34")
        a(f"v_lshlrev_b32 v33, 2, v33\nv_add_u32 v33, {LFL}, v33")
        a("v_cndmask_b32 v34, 0, -1, vcc")
        a("ds_write_b32 v33, v34")
        a("s_waitcnt lgkmcnt(0)")
        a(f"s_mul_i32 s{sE}, s{sE}, 0x9E3779B1\ns_add_u32 s{sE}, s{sE}, 0x7F4A7C15")
        a(f"s_cmp_lt_u32 s{sW}, 4")
        a("s_cbranch_scc1 L_g_bar1")
        a("s_waitcnt vmcnt(0)")
        a("s_barrier")
        self.stamp(2)
        a(f"s_cmp_ge_u32 s{sW}, 6")
        a("s_cbranch_scc1 L_xn_store")
        self.kv_proj()
        a("L_xn_store:")
        self.xn_store()
        a("L_a_bar2:")
        a("s_waitcnt vmcnt(0)")
        a("s_barrier")
        self.stamp(3)
        a(f"s_cmp_lg_u32 s{sW}, 4")
        a("s_cbranch_scc1 L_a_main")
        a(f"s_lshl_b32 s{sT0}, s{sP}, 7\ns_add_u32 s{sT0}, s{sT0}, {F0}")
        a(f"v_mov_b32 v4, s{sE}\nv_mov_b32 v5, v6\nv_mov_b32 v3, 0")
        a("s_mov_b64 exec, 1")
        a(f"buffer_store_dwordx2 v[4:5], v3, {srd(R_WS)}, s{sT0} offen sc1")
        a("s_mov_b64 exec, -1")
        a("s_branch L_a_main")

    def kv_proj(self):
        a = self.a
        a("v_and_b32 v3, 7, v1\nv_lshrrev_b32 v5, 4, v1")
        a(f"v_mul_u32_u24 v3, {PITCH}, v3\nv_lshl_add_u32 v3, v5, 4, v3\nv_add_u32 v3, {XROW}, v3")
        a("v_and_b32 v4, 15, v1\nv_lshlrev_b32 v4, 3, v4")
        a("v_lshl_add_u32 v4, v5, 8, v4")
        a(f"s_lshl_b32 s{sT0}, s{sWA}, 14\ns_add_u32 s{sT0}, s{sT0}, {WKV}")
        a(f"v_add_u32 v4, s{sT0}, v4")
        NB = 5
        def rd(s):
            b = 64 + 8 * (s % NB)
            a(f"ds_read_b128 {vr(b,4)}, v3 offset:{64*s}")
            a(f"ds_read_b64_tr_b16 {vr(b+4,2)}, v4 offset:{1024*s}")
            a(f"ds_read_b64_tr_b16 {vr(b+6,2)}, v4 offset:{1024*s+128}")
        for s in range(NB):
            rd(s)
        a(f"s_cmp_eq_u32 s{sW}, 5")
        a("s_cbranch_scc1 L_vproj")
        for var in ("K", "V"):
            if var == "V":
                a("L_vproj:")
            for s in range(16):
                left = min(NB - 1, 15 - s)
                a(f"s_waitcnt lgkmcnt({3*left})")
                b = 64 + 8 * (s % NB)
                X, Wf = vr(b, 4), vr(b + 4, 4)
                c = "0" if s == 0 else "v[112:115]"
                if var == "K":
                    a(f"v_mfma_f32_16x16x32_bf16 v[112:115], {Wf}, {X}, {c}")
                else:
                    a(f"v_mfma_f32_16x16x32_bf16 v[112:115], {X}, {Wf}, {c}")
                if s + NB < 16:
                    rd(s + NB)
            a(f"s_lshr_b32 s{sT0}, s{sP}, 2\ns_lshl_b32 s{sT0}, s{sT0}, 10\ns_and_b32 s{sT1}, s{sJ}, 3")
            if var == "K":
                a(f"s_lshl_b32 s{sT1}, s{sT1}, 7\ns_add_u32 s{sT0}, s{sT0}, s{sT1}\ns_add_u32 s{sT0}, s{sT0}, {KF}")
                a("v_and_b32 v3, 15, v1\nv_lshlrev_b32 v3, 4, v3\nv_bfe_u32 v4, v1, 4, 1\nv_lshl_add_u32 v3, v4, 9, v3")
                a("v_lshrrev_b32 v4, 5, v1\nv_lshl_add_u32 v3, v4, 3, v3")
                a(f"s_mov_b32 s{sXM}, 0x00ff00ff\ns_mov_b32 s{sXM+1}, 0x00ff00ff")
                a("v_cvt_pk_bf16_f32 v8, v112, v113\nv_cvt_pk_bf16_f32 v9, v114, v115")
                a(f"s_mov_b64 exec, s[{sXM}:{sXM+1}]")
                a(f"buffer_store_dwordx2 v[8:9], v3, {srd(R_WS)}, s{sT0} offen sc1")
                a("s_mov_b64 exec, -1")
                a("v_mul_f32 v6, v112, v112\nv_fmac_f32 v6, v113, v113\nv_fmac_f32 v6, v114, v114\nv_fmac_f32 v6, v115, v115")
                for sw in ("v_permlane16_swap_b32", "v_permlane32_swap_b32"):
                    a(f"v_mov_b32 v5, v6\ns_nop 1\n{sw} v6, v5\nv_add_f32 v6, v6, v5")
                a("v_and_b32 v6, 0x7fffffff, v6")
                for ctl in ("quad_perm:[1,0,3,2]", "quad_perm:[2,3,0,1]", "row_half_mirror"):
                    a(f"s_nop 1\nv_max_u32_dpp v6, v6, v6 {ctl} row_mask:0xf bank_mask:0xf")
                a("s_branch L_a_bar2")
            else:
                a(f"s_lshl_b32 s{sT1}, s{sT1}, 8\ns_add_u32 s{sT0}, s{sT0}, s{sT1}\ns_add_u32 s{sT0}, s{sT0}, {VF}")
                a("v_and_b32 v3, 15, v1\nv_lshlrev_b32 v3, 4, v3\nv_lshrrev_b32 v4, 4, v1\nv_lshl_add_u32 v3, v4, 3, v3")
                a("s_nop 1")
                a("v_cvt_pk_bf16_f32 v8, v112, v113\nv_cvt_pk_bf16_f32 v9, v114, v115")
                a("s_mov_b32 exec_hi, 0")
                a(f"buffer_store_dwordx2 v[8:9], v3, {srd(R_WS)}, s{sT0} offen sc1")
                a("s_mov_b64 exec, -1")
                a("s_branch L_a_bar2")

    def xn_store(self):
        a = self.a
        a("v_and_b32 v3, 7, v1\nv_lshrrev_b32 v4, 3, v1")
        a(f"v_mul_u32_u24 v5, {PITCH}, v3\nv_lshl_add_u32 v5, v4, 4, v5")
        a(f"s_sub_u32 s{sT1}, s{sW}, 6\ns_lshl_b32 s{sT0}, s{sT1}, 9\ns_add_u32 s{sT0}, s{sT0}, {XROW}")
        a(f"v_add_u32 v5, s{sT0}, v5")
        for n in range(4):
            a(f"ds_read_b128 {vr(64+4*n,4)}, v5 offset:{128*n}")
        a("v_lshlrev_b32 v3, 4, v3\nv_and_b32 v6, 1, v4\nv_lshl_add_u32 v3, v6, 9, v3\nv_lshrrev_b32 v4, 1, v4\nv_lshl_add_u32 v3, v4, 10, v3")
        a(f"s_lshr_b32 s{sT0}, s{sP}, 2\ns_lshl_b32 s{sT0}, s{sT0}, 15\ns_lshl_b32 s{sT1}, s{sT1}, 14\ns_add_u32 s{sT0}, s{sT0}, s{sT1}")
        a(f"s_and_b32 s{sT1}, s{sJ}, 3\ns_lshl_b32 s{sT1}, s{sT1}, 7\ns_add_u32 s{sT0}, s{sT0}, s{sT1}")
        if XN:
            a(f"s_add_u32 s{sT0}, s{sT0}, {XN}")
        for n in range(4):
            a(f"s_waitcnt lgkmcnt({3-n})")
            a(f"buffer_store_dwordx4 {vr(64+4*n,4)}, v3, {srd(R_WS)}, s{sT0} offen sc1")
            if n < 3:
                a(f"s_add_u32 s{sT0}, s{sT0}, 4096")

    gRG0, gRU0, gRG1, gRU1 = 3, 4, 5, 6
    gT = 8
    gTQ = 12
    gFL = 13
    gMY = 14
    gTMP = 15
    gE = 16
    gP = 24
    gQ = 32
    gA = 48
    gC = 64
    gX = 128

    def ring_dma(self, b, vm):
        a = self.a
        p, sl = b >> 3, b & 7
        vg, vu = (self.gRG0, self.gRU0) if p == 0 else (self.gRG1, self.gRU1)
        c0 = sl * 64 * 3584 + p * 128
        a(f"s_add_u32 m0, s{sW4096}, {(b & 3) * 16384}")
        a(f"s_add_u32 s{sT0}, s{sBASE}, {c0}")
        a(f"s_add_u32 s{sT1}, s{sBASE}, {c0 + 8*3584 - 1024}")
        a(f"buffer_load_dwordx4 v{vg}, {srd(R_W1)}, s{sT0} offen lds")
        a(f"buffer_load_dwordx4 v{vg}, {srd(R_W1)}, s{sT1} offen offset:1024 lds")
        a("s_add_u32 m0, m0, 2048")
        a("s_nop 0")
        a(f"buffer_load_dwordx4 v{vu}, {srd(R_W3)}, s{sT0} offen lds")
        a(f"buffer_load_dwordx4 v{vu}, {srd(R_W3)}, s{sT1} offen offset:1024 lds")
        for _ in range(4):
            vm.issue(("ring", b))

    def g_dma(self):
        a = self.a
        vm = self.vmG = Vm(a)
        vm.issue("xrow")
        a("L_g_dma:")
        if self.code_pf:
            a(f"s_sub_u32 s{sPC}, s{sPC}, L_pc-{NAME}\ns_subb_u32 s{sPC+1}, s{sPC+1}, 0")
            a(f"s_lshl_b32 s{sT0}, s{sW}, 13")
            a(f"v_lshlrev_b32 v3, 7, v1\nv_add_u32 v3, s{sT0}, v3")
            a(f"v_min_u32 v3, L_code_end-{NAME}-4, v3")
            a(f"global_load_dword v7, v3, s[{sPC}:{sPC+1}]")
            vm.issue("pf")
        a("v_lshrrev_b32 v3, 2, v1\nv_lshlrev_b32 v3, 10, v3\nv_and_b32 v4, 3, v1\nv_lshl_add_u32 v3, v4, 4, v3")
        a(f"s_lshl_b32 s{sT0}, s{sW}, 17\ns_lshl_b32 s{sT1}, s{sJ}, 6\ns_add_u32 s{sT0}, s{sT0}, s{sT1}")
        a(f"s_lshl_b32 s{sT1}, s{sW}, 13\ns_add_u32 m0, s{sT1}, {WQI}")
        for n in range(8):
            if n:
                a(f"s_add_u32 m0, m0, 1024\ns_add_u32 s{sT0}, s{sT0}, 16384")
            else:
                a("s_nop 0")
            a(f"buffer_load_dwordx4 v3, {srd(R_WQ)}, s{sT0} offen lds")
            vm.issue("wq")
        RG0, RU0, RG1, RU1 = self.gRG0, self.gRU0, self.gRG1, self.gRU1
        a("v_bfe_u32 v12, v1, 1, 2\nv_bfe_u32 v13, v1, 4, 1\nv_xor_b32 v12, v12, v13")
        a("v_lshrrev_b32 v13, 3, v1\nv_mul_u32_u24 v13, 3584, v13\nv_and_b32 v14, 1, v1\nv_lshl_add_u32 v13, v14, 4, v13")
        a(f"v_lshl_add_u32 v{RG0}, v12, 5, v13")
        a(f"v_xor_b32 v14, 2, v12\nv_lshl_add_u32 v{RU0}, v14, 5, v13")
        a("v_mov_b32 v13, 0x40000000")
        a("v_cmp_eq_u32 vcc, 3, v12\ns_nop 1")
        a(f"v_cndmask_b32 v{RG1}, v{RG0}, v13, vcc")
        a("v_cmp_eq_u32 vcc, 3, v14\ns_nop 1")
        a(f"v_cndmask_b32 v{RU1}, v{RU0}, v13, vcc")
        a(f"s_mul_i32 s{sBASE}, s{sW}, {16*3584}\ns_mul_i32 s{sT0}, s{sJ}, 224\ns_add_u32 s{sBASE}, s{sBASE}, s{sT0}")
        a(f"s_lshl_b32 s{sW4096}, s{sW}, 12")
        for b in range(4):
            self.ring_dma(b, vm)
        vm.wait("xrow")
        a("s_branch L_ln")

    def tr_pair(self, dst, vaddr, off, qstep):
        self.a(f"ds_read_b64_tr_b16 {vr(dst,2)}, v{vaddr} offset:{off}")
        self.a(f"ds_read_b64_tr_b16 {vr(dst+2,2)}, v{vaddr} offset:{off+qstep}")

    def g_main(self):
        a = self.a
        vm = self.vmG
        gT, gA, gC, gX, gQ, gE, gP = self.gT, self.gA, self.gC, self.gX, self.gQ, self.gE, self.gP
        a("L_g_bar1:")
        a("s_barrier")
        self.stamp(2)
        a(f"s_setprio {self.prioG}")
        a("v_and_b32 v16, 3, v1\nv_lshlrev_b32 v16, 3, v16")
        a("v_bfe_u32 v17, v1, 2, 2")
        a("v_bfe_u32 v18, v1, 4, 1")
        a("v_lshrrev_b32 v19, 5, v1")
        a("v_bfe_u32 v20, v1, 3, 1")
        a(f"v_lshl_add_u32 v21, v19, 9, v16\nv_lshl_add_u32 v21, v17, 6, v21\nv_lshl_add_u32 v21, v18, 5, v21\nv_add_u32 v{self.gTQ}, {WQI}, v21")
        a("v_lshl_add_u32 v21, v18, 11, v16\nv_lshl_add_u32 v21, v19, 10, v21\nv_lshl_add_u32 v21, v17, 7, v21")
        a("v_lshl_add_u32 v22, v18, 1, v20\nv_lshl_add_u32 v21, v22, 5, v21")
        a(f"v_mov_b32 v{gT}, v21")
        for mt in range(1, 4):
            a(f"v_xor_b32 v{gT+mt}, {32*mt}, v21")
        a(f"v_and_b32 v21, 3, v1\nv_lshlrev_b32 v21, 2, v21\nv_add_u32 v{self.gFL}, {LFL}, v21")
        a(f"s_lshl_b32 s{sT0}, s{sW}, 2\ns_add_u32 s{sT0}, s{sT0}, {LFL}\nv_mov_b32 v{self.gMY}, s{sT0}")
        nl = f2u(-LOG2E)
        a(f"s_mov_b32 s{sNL2}, {nl:#x}\ns_mov_b32 s{sNL2+1}, {nl:#x}")
        a(f"s_mov_b32 s{sONE}, 1.0\ns_mov_b32 s{sONE+1}, 1.0")
        qs = f2u(0.25 * LOG2E)
        a(f"s_mov_b32 s{sQS}, {qs:#x}\ns_mov_b32 s{sQS+1}, {qs:#x}")
        a("v_and_b32 v21, 3, v1\nv_lshlrev_b32 v21, 7, v21")
        a(f"s_lshl_b32 s{sT0}, s{sG}, 2\ns_add_u32 s{sT0}, s{sT0}, s{sW}\ns_lshl_b32 s{sT2}, s{sT0}, 9\ns_add_u32 s{sT2}, s{sT2}, {F0}")
        a(f"s_lshl_b32 s{sT3}, s{sT0}, 15")
        if XN:
            a(f"s_add_u32 s{sT3}, s{sT3}, {XN}")
        vm.wait("wq")
        a("s_barrier")
        self.stamp(3)
        for s in range(4):
            self.tr_pair(gA + 4 * s, self.gTQ, 1024 * s, 256)
        self.poll_global(21, f"s{sT2}", 22, 1, vm)
        self.stamp(4)
        for s in range(32):
            a(f"buffer_load_dwordx4 {vr(gX+4*s,4)}, v2, {srd(R_WS)}, s{sT3} offen offset:{1024*(s&3)} sc1")
            vm.issue(("x", s))
            if s & 3 == 3 and s < 31:
                a(f"s_add_u32 s{sT3}, s{sT3}, 4096")
        for s in range(32):
            left = min(3, 31 - s)
            vm.wait(("x", s), f"lgkmcnt({2*left})")
            c = "0" if s == 0 else vr(gQ, 16)
            a(f"v_mfma_f32_32x32x16_bf16 {vr(gQ,16)}, {vr(gA+4*(s%4),4)}, {vr(gX+4*s,4)}, {c}")
            if s + 4 < 32:
                self.tr_pair(gA + 4 * (s % 4), self.gTQ, 1024 * (s + 4), 256)
        self.stamp(5)
        a(f"v_mov_b32 v{self.gTMP}, 1")
        a(f"ds_write_b32 v{self.gMY}, v{self.gTMP}")
        a(f"s_lshl_b32 s{sT0}, s{sW}, 11\ns_add_u32 s{sT0}, s{sT0}, {QX}")
        a(f"v_add_u32 v7, s{sT0}, v2")
        a("s_nop 7")
        for i in range(8):
            a(f"v_pk_mul_f32 {vr(gQ+2*i,2)}, {vr(gQ+2*i,2)}, s[{sQS}:{sQS+1}]")
        for i in range(8):
            a(f"v_cvt_pk_bf16_f32 v{gP+i}, v{gQ+2*i}, v{gQ+2*i+1}")
        a(f"ds_write_b128 v7, {vr(gP,4)}")
        a(f"ds_write_b128 v7, {vr(gP+4,4)} offset:1024")
        a(f"v_mul_f32 v{gE}, v{gQ}, v{gQ}\nv_mul_f32 v{gE+1}, v{gQ+8}, v{gQ+8}")
        for i in range(1, 8):
            a(f"v_fmac_f32 v{gE}, v{gQ+i}, v{gQ+i}\nv_fmac_f32 v{gE+1}, v{gQ+8+i}, v{gQ+8+i}")
        a("s_nop 1")
        a(f"v_permlane32_swap_b32 v{gE}, v{gE+1}")
        a(f"v_add_f32 v{gE}, v{gE}, v{gE+1}")
        a(f"v_and_b32 v{gE}, 0x7fffffff, v{gE}")
        self.reduce64("v_max_u32", gE, gE + 1)
        a("s_waitcnt lgkmcnt(0)")
        a(f"ds_write_b32 v{self.gMY}, v{gE} offset:16")
        self.stamp(6)
        LA = 4
        pending = []
        nitem = 0
        def mf(it):
            (n, b, ks, mt) = it
            kk = 4 * (b & 7) + ks
            c = "0" if kk == 0 else vr(gC + 16 * mt, 16)
            a(f"v_mfma_f32_32x32x16_bf16 {vr(gC+16*mt,16)}, {vr(gA+4*(n%LA),4)}, {vr(gX+4*kk,4)}, {c}")
        def rd(it):
            (n, b, ks, mt) = it
            self.tr_pair(gA + 4 * (n % LA), gT + mt, (b & 3) * 16384 + ks * 4096, 512)
        self.sH_ready = False
        for b in range(17):
            if b > 0:
                if b < 16:
                    vm.wait(("ring", b), "lgkmcnt(0)")
                else:
                    a("s_waitcnt lgkmcnt(0)")
                a(f"v_mov_b32 v{self.gTMP}, {b+1}")
                a(f"ds_write_b32 v{self.gMY}, v{self.gTMP}")
                for it in pending[:2]:
                    mf(it)
                if b < 16:
                    a(f"ds_read_b32 v{self.gTMP}, v{self.gFL}")
                for it in pending[2:]:
                    mf(it)
                pending = []
            if b < 16:
                self.spin_lds(self.gFL, self.gTMP, f"v_cmp_gt_u32 vcc, {b+1}, v{self.gTMP}", first_issued=(b > 0))
                if b >= 1 and b + 3 <= 15:
                    self.ring_dma(b + 3, vm)
                if b == 13:
                    self.down_setup(vm)
                nm = 4 if b < 8 else 3
                items = []
                for ks in range(4):
                    for mt in range(nm):
                        items.append((nitem, b, ks, mt)); nitem += 1
                for it in items[:LA]:
                    rd(it)
            if b == 8:
                self.silu_store(0, 4, vm)
            if b == 16:
                self.silu_store(4, 3, vm)
                break
            for idx, it in enumerate(items[:-LA]):
                a(f"s_waitcnt lgkmcnt({2*(LA-1)})")
                mf(it)
                rd(items[idx + LA])
            pending = items[-LA:]
        self.stamp(7)
        self.down(vm)

    def silu_store(self, mt0, nm, vm):
        a = self.a
        gC, gE, gP = self.gC, self.gE, self.gP
        a(f"s_lshl_b32 s{sT0}, s{sG}, 2\ns_add_u32 s{sT0}, s{sT0}, s{sW}\ns_mul_i32 s{sT0}, s{sT0}, 112")
        a(f"s_mul_i32 s{sT1}, s{sJ}, 7\ns_add_u32 s{sT0}, s{sT0}, s{sT1}\ns_lshl_b32 s{sT0}, s{sT0}, 10\ns_add_u32 s{sT0}, s{sT0}, {HF + 1024*mt0}")
        if mt0 == 4:
            a("s_nop 3")
        for m in range(nm):
            G, U, E, P = gC + 16 * m, gC + 16 * m + 8, gE, gP + 4 * (m & 1)
            for i in range(4):
                a(f"v_pk_mul_f32 {vr(E+2*i,2)}, {vr(G+2*i,2)}, s[{sNL2}:{sNL2+1}]")
            for i in range(8):
                a(f"v_exp_f32 v{E+i}, v{E+i}")
            for i in range(4):
                a(f"v_pk_mul_f32 {vr(G+2*i,2)}, {vr(G+2*i,2)}, {vr(U+2*i,2)}")
                if i == 0:
                    pass
            for i in range(4):
                a(f"v_pk_add_f32 {vr(E+2*i,2)}, {vr(E+2*i,2)}, s[{sONE}:{sONE+1}]")
            for i in range(8):
                a(f"v_rcp_f32 v{E+i}, v{E+i}")
            a("s_nop 0")
            for i in range(4):
                a(f"v_pk_mul_f32 {vr(G+2*i,2)}, {vr(G+2*i,2)}, {vr(E+2*i,2)}")
            for i in range(4):
                a(f"v_cvt_pk_bf16_f32 v{P+i}, v{G+2*i}, v{G+2*i+1}")
            a(f"buffer_store_dwordx4 {vr(P,4)}, v2, {srd(R_WS)}, s{sT0} offen offset:{1024*m} sc1")
            vm.issue(("h", mt0 + m))

    dV = 7
    dXR = 32
    dT = 40
    dF = 42
    dXA = 43
    dH = 128

    def w2_dma(self, n, vm):
        a = self.a
        a(f"s_add_u32 m0, s{sRB}, {(n & 7) * 2048}")
        if n < 28:
            R, s, k = R_W2, sW2, n
        else:
            R, s, k = R_WO, sWO, n - 28
        a(f"s_add_u32 s{sT0}, s{s}, {k*16384}")
        a(f"s_add_u32 s{sT1}, s{s}, {k*16384 + 8192 - 1024}")
        a(f"buffer_load_dwordx4 v{self.dV}, {srd(R)}, s{sT0} offen lds")
        a(f"buffer_load_dwordx4 v{self.dV}, {srd(R)}, s{sT1} offen offset:1024 lds")
        vm.issue(("w2", n)); vm.issue(("w2", n))

    def down_setup(self, vm):
        a = self.a
        dV, dT = self.dV, self.dT
        a(f"s_and_b32 s{sT2}, s{sI}, 3\ns_lshl2_add_u32 s{sT2}, s{sX8}, s{sT2}")
        a(f"s_lshr_b32 s{sT3}, s{sI}, 2")
        a(f"s_lshl_b32 s{sT4}, s{sT3}, 7")
        a(f"s_mul_i32 s{sW2}, s{sW}, {28*16384}\ns_add_u32 s{sW2}, s{sW2}, s{sT4}")
        a(f"s_lshl_b32 s{sWO}, s{sW}, 17\ns_add_u32 s{sWO}, s{sWO}, s{sT4}")
        a(f"s_lshl_b32 s{sRB}, s{sW}, 14\ns_add_u32 s{sRB}, s{sRB}, {RB0}")
        a("v_bfe_u32 v40, v1, 2, 1\nv_bfe_u32 v41, v1, 4, 1\nv_xor_b32 v40, v40, v41\nv_lshlrev_b32 v40, 6, v40")
        a("v_and_b32 v41, 3, v1\nv_lshl_add_u32 v40, v41, 4, v40\nv_lshrrev_b32 v41, 3, v1")
        a(f"v_lshl_add_u32 v{dV}, v41, 10, v40")
        for n in range(8):
            self.w2_dma(n, vm)
        a(f"s_lshr_b32 s{sT0}, s{sW}, 1\ns_lshl1_add_u32 s{sT0}, s{sT2}, s{sT0}\ns_xor_b32 s{sT1}, s{sT0}, 1")
        a(f"s_mul_i32 s{sT5}, s{sW}, 28")
        for sH, sO, st in ((sH0, sO0, sT0), (sH1, sO1, sT1)):
            a(f"s_mul_i32 s{sH}, s{st}, 112\ns_add_u32 s{sH}, s{sH}, s{sT5}\ns_lshl_b32 s{sH}, s{sH}, 10\ns_add_u32 s{sH}, s{sH}, {HF}")
            a(f"s_lshl_b32 s{sO}, s{st}, 2\ns_add_u32 s{sO}, s{sO}, s{sW}\ns_lshl_b32 s{sO}, s{sO}, 13\ns_add_u32 s{sO}, s{sO}, {OF}")
        a(f"s_lshl_b32 s{sOUT}, s{sT0}, 15\ns_add_u32 s{sOUT}, s{sOUT}, s{sT4}\ns_and_b32 s{sT1}, s{sW}, 1\ns_lshl_b32 s{sT1}, s{sT1}, 6\ns_add_u32 s{sOUT}, s{sOUT}, s{sT1}")
        a("v_and_b32 v42, 3, v1\nv_lshlrev_b32 v42, 3, v42\nv_bfe_u32 v43, v1, 4, 1\nv_lshl_add_u32 v42, v43, 5, v42")
        a("v_bfe_u32 v43, v1, 2, 2\nv_lshl_add_u32 v42, v43, 7, v42\nv_lshrrev_b32 v43, 5, v1\nv_lshl_add_u32 v42, v43, 9, v42")
        a(f"v_bfe_u32 v43, v1, 3, 1\nv_lshl_add_u32 v42, v43, 6, v42\nv_xor_b32 v42, s{sT1}, v42")
        a(f"v_add_u32 v{dT}, s{sRB}, v42\nv_xor_b32 v{dT+1}, 64, v{dT}")
        a(f"s_lshr_b32 s{sT0}, s{sT2}, 1\ns_lshl2_add_u32 s{sT0}, s{sT0}, s{sW}\ns_lshl_b32 s{sT0}, s{sT0}, 4")
        a(f"s_and_b32 s{sT1}, s{sT2}, 1\ns_lshl1_add_u32 s{sT0}, s{sT1}, s{sT0}\ns_lshl_b32 s{sT0}, s{sT0}, 7")
        a(f"v_and_b32 v42, 3, v1\nv_lshlrev_b32 v42, 9, v42\nv_bfe_u32 v43, v1, 2, 1\nv_lshl_add_u32 v42, v43, 7, v42\nv_add_u32 v{self.dF}, s{sT0}, v42")
        a(f"v_and_b32 v43, 31, v1\nv_lshlrev_b32 v43, 10, v43\nv_lshrrev_b32 v44, 5, v1\nv_lshl_add_u32 v{self.dXA}, v44, 3, v43")
        for i in range(4):
            a(f"buffer_load_dwordx2 {vr(self.dXR+2*i,2)}, v{self.dXA}, {srd(R_X)}, s{sOUT} offen offset:{16*i}")
            vm.issue("xres")

    def down(self, vm):
        a = self.a
        gA, gC, gP, dT, dH = self.gA, self.gC, self.gP, self.dT, self.dH
        vm.drain()
        a(f"s_lshl2_add_u32 s{sT0}, s{sP}, s{sW}\ns_lshl_b32 s{sT0}, s{sT0}, 7\ns_add_u32 s{sT0}, s{sT0}, {FH}")
        a(f"v_mov_b32 v16, s{sE}\nv_mov_b32 v17, 0")
        a("s_mov_b64 exec, 1")
        a(f"buffer_store_dword v16, v17, {srd(R_WS)}, s{sT0} offen sc1")
        a("s_mov_b64 exec, -1")
        for i in range(8):
            a(f"v_lshlrev_b32 v{gC+2*i}, 16, v{self.dXR+i}")
            a(f"v_and_b32 v{gC+2*i+1}, s{sMASK}, v{self.dXR+i}")
        def rdA(n):
            buf = gA + 8 * (n & 1)
            self.tr_pair(buf, dT, (n & 7) * 2048, 1024)
            self.tr_pair(buf + 4, dT + 1, (n & 7) * 2048, 1024)
        def ldB(n):
            for bp in range(2):
                if n < 28:
                    s, k = (sH0, sH1)[bp], n
                else:
                    s, k = (sO0, sO1)[bp], n - 28
                a(f"buffer_load_dwordx4 {vr(dH+8*(n&7)+4*bp,4)}, v2, {srd(R_WS)}, s{s} offen offset:{1024*(k&3)} sc1")
                vm.issue(("b", n))
                if k & 3 == 3:
                    a(f"s_add_u32 s{s}, s{s}, 4096")
        rdA(0)
        a(f"s_mov_b32 s{sT2}, {FH}")
        self.poll_global(self.dF, f"s{sT2}", 16, 1, vm)
        self.stamp(8)
        for n in range(8):
            ldB(n)
        for n in range(36):
            if n == 28:
                self.stamp(9)
                a(f"s_mov_b32 s{sT2}, {FO}")
                self.poll_global(self.dF, f"s{sT2}", 16, 1, vm)
                self.stamp(10)
                for m in range(28, 36):
                    ldB(m)
            if n + 1 < 36:
                vm.wait(("w2", n + 1))
                rdA(n + 1)
                vm.wait(("b", n), "lgkmcnt(4)")
            else:
                vm.wait(("b", n), "lgkmcnt(0)")
            buf = gA + 8 * (n & 1)
            for u in range(4):
                ap, bp = u & 1, u >> 1
                c = "0" if (n == 0 and u) else vr(gC + 16 * u, 16)
                a(f"v_mfma_f32_32x32x16_bf16 {vr(gC+16*u,16)}, {vr(buf+4*ap,4)}, {vr(dH+8*(n&7)+4*bp,4)}, {c}")
            if n + 8 < 36:
                self.w2_dma(n + 8, vm)
            if n + 8 < 28:
                ldB(n + 8)
        self.stamp(11)
        a(f"v_add_u32 v16, s{sRB}, v2")
        for u in range(1, 4):
            a(f"s_xor_b32 s{sT0}, s{sW}, {u}\ns_lshl_b32 s{sT0}, s{sT0}, 14\ns_add_u32 s{sT0}, s{sT0}, {RB0 + (u-1)*4096}")
            a(f"v_add_u32 v{16+u}, s{sT0}, v2")
        a(f"v_mov_b32 v{self.gTMP}, 18")
        a("s_nop 1")
        for u in range(1, 4):
            for q in range(4):
                a(f"ds_write_b128 v16, {vr(gC+16*u+4*q,4)} offset:{(u-1)*4096+q*1024}")
        a("s_waitcnt lgkmcnt(0)")
        a(f"ds_write_b32 v{self.gMY}, v{self.gTMP}")
        self.spin_lds(self.gFL, self.gTMP, f"v_cmp_gt_u32 vcc, 18, v{self.gTMP}")
        for u in range(1, 4):
            for q in range(4):
                a(f"ds_read_b128 {vr(gC+16*u+4*q,4)}, v{16+u} offset:{q*1024}")
        a(f"v_lshrrev_b32 v20, 5, v1\nv_lshl_add_u32 v20, v20, 3, v{self.dXA}")
        for u in range(1, 4):
            a(f"s_waitcnt lgkmcnt({4*(3-u)})")
            for i in range(8):
                a(f"v_pk_add_f32 {vr(gC+2*i,2)}, {vr(gC+2*i,2)}, {vr(gC+16*u+2*i,2)}")
        for i in range(8):
            a(f"v_cvt_pk_bf16_f32 v{gP+i}, v{gC+2*i}, v{gC+2*i+1}")
        a("s_nop 0")
        for k in (0, 4):
            a(f"v_permlane32_swap_b32 v{gP+k}, v{gP+k+2}\nv_permlane32_swap_b32 v{gP+k+1}, v{gP+k+3}")
        a(f"buffer_store_dwordx4 {vr(gP,4)}, v20, {srd(R_OUT)}, s{sOUT} offen")
        a(f"buffer_store_dwordx4 {vr(gP+4,4)}, v20, {srd(R_OUT)}, s{sOUT} offen offset:32")
        self.stamp(12)
        if self.ts:
            a("s_waitcnt vmcnt(0)")
            self.stamp(13)
        self.stamp_flush()
        a("s_endpgm")

    aK = (40, 52)
    aV = (44, 56)
    aIDX, aOK, aOV = 39, 37, 38
    aS = (64, 80)
    aQ = 96
    aO = 128

    def kv_load_k(self, buf):
        self.a(f"buffer_load_dwordx4 {vr(self.aK[buf],4)}, v{self.aOK}, {srd(R_WS)}, s{sK} offen sc1")
    def kv_load_v(self, buf):
        a = self.a
        a(f"s_mov_b64 exec, s[{sXM}:{sXM+1}]")
        a(f"buffer_load_dwordx4 {vr(self.aV[buf],4)}, v{self.aOV}, {srd(R_WS)}, s{sK} offen sc1")
        a(f"buffer_load_dwordx4 {vr(self.aV[buf]+4,4)}, v{self.aOV}, {srd(R_WS)}, s{sK} offen offset:512 sc1")
        a("s_mov_b64 exec, -1")

    def a_main(self):
        a = self.a
        vm = Vm(a)
        aK, aV, aS, aQ, aO = self.aK, self.aV, self.aS, self.aQ, self.aO
        a("L_a_main:")
        a("v_and_b32 v3, 31, v1\nv_cmp_eq_u32 vcc, 16, v3\nv_mov_b32 v4, 0x3f803f80")
        a(f"v_mov_b32 v{self.aIDX}, 0xdddddddd")
        a("v_cndmask_b32 v4, 0, v4, vcc")
        for r in list(range(aV[0], aV[0] + 8)) + list(range(aV[1], aV[1] + 8)):
            a(f"v_mov_b32 v{r}, v4")
        for r in range(aS[1] + 8, aS[1] + 16):
            a(f"v_mov_b32 v{r}, 0")
        a(f"v_mov_b32 v{self.aOK}, v2")
        a(f"v_and_b32 v3, 15, v1\nv_lshlrev_b32 v3, 4, v3\nv_lshrrev_b32 v4, 5, v1\nv_lshl_add_u32 v3, v4, 8, v3\nv_add_u32 v{self.aOV}, {VF-KF}, v3")
        a(f"s_mov_b32 s{sXM}, 0xffff\ns_mov_b32 s{sXM+1}, 0xffff")
        a(f"s_lshl_b32 s{sK}, s{sWA}, 14\ns_add_u32 s{sK}, s{sK}, {KF}")
        a(f"v_lshlrev_b32 v3, 7, v1\ns_lshl_b32 s{sT2}, s{sWA}, 13\ns_add_u32 s{sT2}, s{sT2}, {F0}")
        self.poll_global(3, f"s{sT2}", 4, 2, vm)
        self.stamp(4)
        self.kv_load_k(0)
        self.kv_load_v(0)
        a(f"s_add_u32 s{sK}, s{sK}, 1024")
        self.kv_load_k(1)
        self.reduce64("v_max_u32", 5, 6)
        a(f"s_lshl_b32 s{sT0}, s{sWA}, 2\ns_add_u32 s{sT0}, s{sT0}, {LFL+32}\nv_mov_b32 v6, s{sT0}")
        a("ds_write_b32 v6, v5")
        a(f"v_and_b32 v7, 7, v1\nv_lshlrev_b32 v7, 2, v7\nv_add_u32 v7, {LFL+16}, v7")
        self.spin_lds(7, 8, "v_cmp_eq_u32 vcc, -1, v8")
        self.stamp(5)
        for t in range(8):
            a(f"s_lshl1_add_u32 s{sT0}, s{sWA}, {t}\ns_and_b32 s{sT0}, s{sT0}, 7\ns_lshl_b32 s{sT0}, s{sT0}, 10\ns_add_u32 s{sT0}, s{sT0}, {QX}")
            a(f"v_add_u32 v{10+t}, s{sT0}, v2")
            a(f"ds_read_b128 {vr(aQ+4*t,4)}, v{10+t}")
        Lne = self.lab("noep")
        a(f"s_or_b32 s{sT0}, s2, s{sWA}\ns_cmp_lg_u32 s{sT0}, 0\ns_cbranch_scc1 {Lne}")
        a(f"v_mov_b32 v9, s{sE}\nv_mov_b32 v3, 0\ns_mov_b32 s{sT0}, {FL}")
        a("s_mov_b64 exec, 1")
        a(f"buffer_store_dword v9, v3, {srd(R_WS)}, s{sT0} offen sc1")
        a("s_mov_b64 exec, -1")
        a(f"{Lne}:")
        for ctl in ("quad_perm:[1,0,3,2]", "quad_perm:[2,3,0,1]"):
            a(f"s_nop 1\nv_max_u32_dpp v8, v8, v8 {ctl} row_mask:0xf bank_mask:0xf")
        a("s_nop 1\nv_mov_b32_dpp v9, v8 row_half_mirror row_mask:0xf bank_mask:0xf")
        a("v_mul_f32 v8, v8, v9")
        a(f"v_cmp_nge_f32 vcc, {f2u(THRESH2):#x}, v8")
        if self.force_slow:
            a("s_branch L_a_slow")
        else:
            a("s_cbranch_vccnz L_a_slow")
        a(f"s_setprio {self.prioA}")
        a("s_waitcnt vmcnt(1) lgkmcnt(0)")
        a(f"v_mfma_f32_32x32x16_bf16 {vr(aS[0],16)}, {vr(aK[0],4)}, {vr(aQ,4)}, 0")
        a(f"s_mov_b32 s{sCNT}, 8")
        a("s_nop 7\ns_nop 2")
        self.stamp(6)
        a(".p2align 3")
        a("L_a_loop:")
        for kb in range(2):
            for t in range(8):
                cur, nxt = aS[t & 1], aS[(t + 1) & 1]
                e = [f"v_exp_f32 v{cur+i}, v{cur+i}" for i in range(16)]
                pt, pkb = (t - 1, kb) if t else (7, kb ^ 1)
                nt, nkb = (t + 1, kb) if t < 7 else (0, kb ^ 1)
                a(e[0]); a(e[1])
                a(f"v_smfmac_f32_32x32x32_bf16 {vr(aO+16*pt,16)}, {vr(aV[pkb]+4,4)}, {vr(nxt+8,8)}, v{self.aIDX}")
                a(e[2])
                if t == 0:
                    self.kv_load_v(kb ^ 1)
                a(e[3]); a(e[4])
                if t == 7:
                    a("s_waitcnt vmcnt(0)")
                a(f"v_mfma_f32_32x32x16_bf16 {vr(nxt,16)}, {vr(aK[nkb],4)}, {vr(aQ+4*nt,4)}, 0")
                a(e[5])
                if t == 7:
                    a(f"s_add_u32 s{sK}, s{sK}, 1024")
                    self.kv_load_k(kb)
                for i in range(6, 10):
                    a(e[i])
                a(f"v_smfmac_f32_32x32x32_bf16 {vr(aO+16*t,16)}, {vr(aV[kb],4)}, {vr(cur,8)}, v{self.aIDX}")
                for i in range(10, 16):
                    a(e[i])
                    if kb == 1 and t == 7 and i == 12:
                        a(f"s_sub_u32 s{sCNT}, s{sCNT}, 1\ns_cmp_lg_u32 s{sCNT}, 0")
        a("s_cbranch_scc1 L_a_loop")
        a("s_nop 0")
        a(f"v_smfmac_f32_32x32x32_bf16 {vr(aO+16*7,16)}, {vr(aV[1]+4,4)}, {vr(aS[1]+8,8)}, v{self.aIDX}")
        a("L_a_merge:")
        self.stamp(7)
        a(f"v_and_b32 v7, 3, v1\nv_lshlrev_b32 v7, 2, v7\nv_add_u32 v7, {LFL}, v7")
        self.spin_lds(7, 8, "v_cmp_gt_u32 vcc, 17, v8")
        a("v_lshlrev_b32 v9, 2, v1")
        for dt in range(1, 4):
            a(f"s_add_u32 s{sT0}, s{sWA}, {dt}\ns_and_b32 s{sT0}, s{sT0}, 3\ns_mul_i32 s{sT0}, s{sT0}, 13824\ns_add_u32 s{sT0}, s{sT0}, {RING + (dt-1)*4608}")
            a(f"v_add_u32 v10, s{sT0}, v2\nv_add_u32 v11, s{sT0}, v9")
            for hd in range(2):
                O = aO + 16 * (2 * dt + hd)
                a(f"ds_write_b128 v10, {vr(O,4)} offset:{hd*2304}")
                a(f"ds_write_b128 v10, {vr(O+4,4)} offset:{hd*2304+1024}")
                a(f"ds_write_b32 v11, v{O+8} offset:{hd*2304+2048}")
        a(f"s_lshl_b32 s{sT0}, s{sWA}, 2\ns_add_u32 s{sT0}, s{sT0}, {LFL+48}\nv_mov_b32 v12, s{sT0}\nv_mov_b32 v13, 1")
        a(f"s_mul_i32 s{sT0}, s{sWA}, 13824")
        if RING:
            a(f"s_add_u32 s{sT0}, s{sT0}, {RING}")
        a(f"v_add_u32 v10, s{sT0}, v2\nv_add_u32 v11, s{sT0}, v9\nv_add_u32 v7, 48, v7")
        a("s_waitcnt lgkmcnt(0)")
        a("ds_write_b32 v12, v13")
        self.spin_lds(7, 8, "v_cmp_gt_u32 vcc, 1, v8")
        T = 64
        for dt in range(3):
            for hd in range(2):
                b = T + 10 * (2 * dt + hd)
                off = dt * 4608 + hd * 2304
                a(f"ds_read_b128 {vr(b,4)}, v10 offset:{off}")
                a(f"ds_read_b128 {vr(b+4,4)}, v10 offset:{off+1024}")
                a(f"ds_read_b32 v{b+8}, v11 offset:{off+2048}")
            if dt:
                a("s_waitcnt lgkmcnt(6)")
                self.acc_add(T, dt - 1)
        a("s_waitcnt lgkmcnt(0)")
        self.acc_add(T, 2)
        a(f"s_lshl2_add_u32 s{sT0}, s{sG}, s{sWA}\ns_lshl_b32 s{sT0}, s{sT0}, 5\ns_lshl1_add_u32 s{sT0}, s{sJ}, s{sT0}\ns_lshl_b32 s{sT0}, s{sT0}, 10\ns_add_u32 s{sT0}, s{sT0}, {OF}")
        a(f"v_mov_b32 v14, v{aO+8}\nv_mov_b32 v15, v{aO+24}")
        a("s_nop 0")
        a(f"v_permlane32_swap_b32 v{aO+8}, v14")
        a(f"v_permlane32_swap_b32 v{aO+24}, v15")
        a(f"v_rcp_f32 v14, v{aO+8}\nv_rcp_f32 v16, v{aO+24}")
        a("s_nop 0")
        for hd in range(2):
            O = aO + 16 * hd
            for i in range(4):
                a(f"v_pk_mul_f32 {vr(O+2*i,2)}, {vr(O+2*i,2)}, {vr(14+2*hd,2)} op_sel_hi:[1,0]")
            for i in range(4):
                a(f"v_cvt_pk_bf16_f32 v{20+4*hd+i}, v{O+2*i}, v{O+2*i+1}")
            a(f"buffer_store_dwordx4 {vr(20+4*hd,4)}, v2, {srd(R_WS)}, s{sT0} offen offset:{1024*hd} sc1")
        a(f"s_lshl2_add_u32 s{sT0}, s{sP}, s{sWA}\ns_lshl_b32 s{sT0}, s{sT0}, 7\ns_add_u32 s{sT0}, s{sT0}, {FO}")
        a(f"v_mov_b32 v16, s{sE}\nv_mov_b32 v17, 0")
        a("s_waitcnt vmcnt(0)")
        a("s_mov_b64 exec, 1")
        a(f"buffer_store_dword v16, v17, {srd(R_WS)}, s{sT0} offen sc1")
        self.stamp(8)
        self.stamp_flush()
        a("s_endpgm")
        self.a_slow()

    def acc_add(self, T, dt):
        a = self.a
        for hd in range(2):
            b = T + 10 * (2 * dt + hd)
            O = self.aO + 16 * hd
            for i in range(4):
                a(f"v_pk_add_f32 {vr(O+2*i,2)}, {vr(O+2*i,2)}, {vr(b+2*i,2)}")
            a(f"v_add_f32 v{O+8}, v{O+8}, v{b+8}")

    def a_slow(self):
        a = self.a
        aK, aV, aS, aQ, aO = self.aK, self.aV, self.aS, self.aQ, self.aO
        a("L_a_slow:")
        a("s_waitcnt vmcnt(0) lgkmcnt(0)")
        S, C = aS[0], aS[1]
        M = 10
        for t in range(8):
            a(f"v_mov_b32 v{M+t}, 0xff800000")
        a(f"s_mov_b32 s{sK}, {KF}\ns_mov_b32 s{sCNT}, 64")
        a("L_slow_max:")
        self.kv_load_k(0)
        a("s_waitcnt vmcnt(0)")
        for t in range(8):
            a(f"v_mfma_f32_32x32x16_bf16 {vr(S,16)}, {vr(aK[0],4)}, {vr(aQ+4*t,4)}, 0")
            a("s_nop 7\ns_nop 3")
            for i in range(8):
                a(f"v_max3_f32 v{M+t}, v{S+2*i}, v{S+2*i+1}, v{M+t}")
        a(f"s_add_u32 s{sK}, s{sK}, 1024\ns_sub_u32 s{sCNT}, s{sCNT}, 1\ns_cmp_lg_u32 s{sCNT}, 0")
        a("s_cbranch_scc1 L_slow_max")
        for t in range(8):
            a(f"v_mov_b32 v9, v{M+t}\ns_nop 1\nv_permlane32_swap_b32 v{M+t}, v9\nv_max_f32 v{M+t}, v{M+t}, v9")
        a(f"s_lshl_b32 s{sK}, s{sWA}, 14\ns_add_u32 s{sK}, s{sK}, {KF}\ns_mov_b32 s{sCNT}, 16")
        a("L_slow_pv:")
        self.kv_load_k(0)
        self.kv_load_v(0)
        a("s_waitcnt vmcnt(0)")
        for t in range(8):
            a(f"v_mfma_f32_32x32x16_bf16 {vr(S,16)}, {vr(aK[0],4)}, {vr(aQ+4*t,4)}, 0")
            a("s_nop 7\ns_nop 3")
            for i in range(16):
                a(f"v_sub_f32 v{S+i}, v{S+i}, v{M+t}")
            for i in range(16):
                a(f"v_exp_f32 v{S+i}, v{S+i}")
            a("s_nop 1")
            for u in range(2):
                a(f"v_smfmac_f32_32x32x32_bf16 {vr(aO+16*t,16)}, {vr(aV[0]+4*u,4)}, {vr(S+8*u,8)}, v{self.aIDX}")
        a(f"s_add_u32 s{sK}, s{sK}, 1024\ns_sub_u32 s{sCNT}, s{sCNT}, 1\ns_cmp_lg_u32 s{sCNT}, 0")
        a("s_cbranch_scc1 L_slow_pv")
        a("s_branch L_a_merge")

    def build(self):
        a = self.a
        self.prologue()
        self.g_dma()
        self.g_main()
        self.a_main()
        a("L_end:")
        a("s_endpgm")
        a("L_code_end:")
        return a

HEADER = """; Fused LayerNorm + MQA attention + SwiGLU FFN, one persistent launch (256 workgroups x 8 waves).
; @launch grid=(256,1,1) block=(512,1,1) lds={lds}
.amdgcn_target "amdgcn-amd-amdhsa--gfx950"
.text
.globl {name}
.p2align 8
.type {name},@function
{name}:
"""
FOOTER = """.section .rodata,"a"
.p2align 6
.amdhsa_kernel {name}
  .amdhsa_next_free_vgpr 256
  .amdhsa_next_free_sgpr 102
  .amdhsa_accum_offset 256
  .amdhsa_group_segment_fixed_size 0
  .amdhsa_kernarg_size 96
  .amdhsa_user_sgpr_count 2
  .amdhsa_user_sgpr_kernarg_segment_ptr 1
  .amdhsa_system_sgpr_workgroup_id_x 1
.end_amdhsa_kernel
"""

def generate(check=True, **kw):
    g = Gen(**kw)
    a = g.build()
    if check:
        errs = check_hazards(a.lines) + check_waits(a.lines)
        for e in errs:
            print(e, file=sys.stderr)
        if errs:
            print(f"{len(errs)} problems", file=sys.stderr)
    return HEADER.format(name=NAME, lds=LDS_SIZE) + a.text() + FOOTER.format(name=NAME)

if __name__ == "__main__":
    ap = argparse.ArgumentParser()
    ap.add_argument("-o", default="parallel_sum__grouped_kv_mqa__glu_gated_swiglu__prompt.s")
    ap.add_argument("--ts", action="store_true")
    ap.add_argument("--slow", action="store_true")
    ap.add_argument("--prioA", type=int, default=1)
    ap.add_argument("--prioG", type=int, default=0)
    ap.add_argument("--nopf", action="store_true")
    args = ap.parse_args()
    txt = generate(ts=args.ts, force_slow=args.slow, prioA=args.prioA, prioG=args.prioG, code_pf=not args.nopf)
    open(args.o, "w").write(txt)
    print("wrote", args.o, len(txt), "bytes")
```

```python
import sys, struct, argparse
from asmlib import Asm, Vm, check_hazards, check_waits

NAME = "parallel_sum__grouped_kv_mqa__glu_gated_swiglu__prompt_kernel"

def f2u(x):
    return struct.unpack("<I", struct.pack("<f", x))[0]

FL = 0x0
F0 = 0x1000
FX = 0x50000
FH = 0x10000
FO = 0x30000
TS = 0x60000
XN = 0x100000
KF = 0x300000
VF = 0x310000
OF = 0x400000
HF = 0x600000
WS_SIZE = 0x1000000
RING = 0
WQI = 65536
WKV = 98304
XROW = 131072
PITCH = 1040
QX = 140288
LFL = 148480
LDS_SIZE = 163840
RB0 = 65536

R_X, R_WS, R_WQ, R_WK, R_WV, R_W1, R_W3, R_W2, R_WO, R_OUT = [4 * i + 4 for i in range(10)]
sW, sG, sJ, sP, sE = 44, 45, 46, 47, 48
sMASK = 49
sT0, sT1, sT2, sT3, sT4, sT5 = 50, 51, 52, 53, 54, 55
sCNT = 56
sX8, sI = 57, 58
sXM = 60
sNL2 = 62
sONE = 64
sQS = 66
sBASE, sW4096 = 68, 69
sH0, sH1, sO0, sO1 = 70, 71, 72, 73
sW2, sWO, sRB, sOUT = 74, 75, 76, 77
sK = 78
sWA = 79
sPC = 80
sTS = 84
sROT, sIDX, sKB = 59, 3, 100

def srd(r):
    return f"s[{r}:{r+3}]"
def vr(a, n):
    return f"v[{a}:{a+n-1}]" if n > 1 else f"v{a}"

LOG2E = 1.4426950408889634
THRESH2 = 60.0 * 60.0
SPIN_G = 4000
SPIN_L = 400000


class Gen:
    def __init__(self, ts=False, force_slow=False, prioA=1, prioG=0, prioGhi=2, code_pf=True, l2pf=False, early=0, only='', tlb=0, clk=False, rot=1, psleep=0, gate=0, asleep=0, wq_at='early', ring_at='afterx', xnt='nt', wnt=''):
        self.a = Asm()
        self.ts = ts
        self.nts = 0
        self.force_slow = force_slow
        self.prioA, self.prioG, self.prioGhi = prioA, prioG, prioGhi
        self.early = early
        self.only = only
        self.tlb = tlb
        self.clk = clk
        self.rot = rot
        self.xnt, self.wnt = xnt, wnt
        self.wq_at, self.ring_at = wq_at, ring_at
        self.psleep = psleep
        self.gate = gate
        self.asleep = asleep
        self.code_pf = code_pf
        self.l2pf = l2pf
        self.uid = 0

    def lab(self, s):
        self.uid += 1
        return f"L_{s}_{self.uid}"

    def stamp(self, i):
        if self.ts:
            self.a(f"s_memrealtime s[82:83]\ns_waitcnt lgkmcnt(0)\ns_mov_b32 s{sTS+i}, s82")

    def stamp_flush(self):
        if not self.ts:
            return
        a = self.a
        a(f"s_lshl_b32 s{sT0}, s{sP}, 3\ns_add_u32 s{sT0}, s{sT0}, s{sW}\ns_lshl_b32 s{sT0}, s{sT0}, 6\ns_add_u32 s{sT0}, s{sT0}, {TS}")
        a("s_mov_b64 exec, 1")
        a("v_mov_b32 v2, 0")
        for i in range(16):
            a(f"v_mov_b32 v3, s{sTS+i}")
            a(f"buffer_store_dword v3, v2, {srd(R_WS)}, s{sT0} offen offset:{4*i}")
        a("s_waitcnt vmcnt(0)")

    def reduce64(self, op, v, t):
        a = self.a
        for ctl in ("quad_perm:[1,0,3,2]", "quad_perm:[2,3,0,1]", "row_half_mirror", "row_mirror"):
            a("s_nop 1")
            a(f"{op}_dpp v{v}, v{v}, v{v} {ctl} row_mask:0xf bank_mask:0xf")
        for sw in ("v_permlane16_swap_b32", "v_permlane32_swap_b32"):
            a(f"v_mov_b32 v{t}, v{v}")
            a("s_nop 1")
            a(f"{sw} v{v}, v{t}")
            a(f"{op} v{v}, v{v}, v{t}")

    def poll_global(self, vaddr, soff, vdst, ndw, vm, lanes=64, sleep=None):
        a = self.a
        sleep = self.psleep if sleep is None else sleep
        L, Lo, Lc = self.lab("poll"), self.lab("pollx"), self.lab("pollc")
        ld = "buffer_load_dword" if ndw == 1 else "buffer_load_dwordx2"
        a(f"s_mov_b32 s{sCNT}, 0")
        if lanes < 64:
            a(f"s_mov_b64 exec, {(1 << lanes) - 1:#x}")
        if sleep:
            a(f"s_branch {Lc}")
        a(f"{L}:")
        if sleep:
            a(f"s_sleep {sleep}")
            a(f"{Lc}:")
        a(f"{ld} {vr(vdst, ndw)}, v{vaddr}, {srd(R_WS)}, {soff} offen sc1")
        a(f"s_add_u32 s{sCNT}, s{sCNT}, 1")
        a("s_waitcnt vmcnt(0)")
        a(f"v_cmp_ne_u32 vcc, s{sE}, v{vdst}")
        a(f"s_cmp_gt_u32 s{sCNT}, {SPIN_G}")
        a(f"s_cbranch_scc1 {Lo}")
        a(f"s_cbranch_vccnz {L}")
        a(f"{Lo}:")
        if lanes < 64:
            a("s_mov_b64 exec, -1")
        vm.q = []

    def spin_lds(self, vaddr, vdst, cmp, first_issued=False, sleep=0):
        a = self.a
        L, Lo, Lc = self.lab("spin"), self.lab("spinx"), self.lab("spinc")
        a(f"s_mov_b32 s{sCNT}, 0")
        if first_issued:
            a(f"s_branch {Lc}")
        a(f"{L}:")
        if sleep:
            a(f"s_sleep {sleep}")
        a(f"ds_read_b32 v{vdst}, v{vaddr}")
        a(f"{Lc}:")
        a(f"s_add_u32 s{sCNT}, s{sCNT}, 1")
        a("s_waitcnt lgkmcnt(0)")
        a(cmp)
        a(f"s_cmp_gt_u32 s{sCNT}, {SPIN_L}")
        a(f"s_cbranch_scc1 {Lo}")
        a(f"s_cbranch_vccnz {L}")
        a(f"{Lo}:")

    def prologue(self):
        a = self.a
        a("s_cmp_ge_u32 s2, 256")
        a("s_cbranch_scc1 L_end")
        if self.ts:
            a("s_memrealtime s[82:83]")
        for r, off in ((R_X, 0), (R_WK, 16), (R_WV, 24), (R_WQ, 8), (R_W1, 48), (R_W3, 56), (R_WS, 88), (R_W2, 64), (R_WO, 32), (R_OUT, 72)):
            a(f"s_load_dwordx2 s[{r}:{r+1}], s[0:1], {off}")
        a(f"s_getpc_b64 s[{sPC}:{sPC+1}]")
        a("L_pc:")
        a("v_lshrrev_b32 v3, 6, v0")
        a("v_and_b32 v1, 63, v0")
        a(f"v_readfirstlane_b32 s{sW}, v3")
        a("v_lshlrev_b32 v2, 4, v1")
        a("v_mov_b32 v4, 0\nv_mov_b32 v5, 0\nv_mov_b32 v6, 0")
        a(f"s_and_b32 s{sX8}, s2, 7\ns_lshr_b32 s{sI}, s2, 3")
        a(f"s_and_b32 s{sT0}, s{sX8}, 1\ns_and_b32 s{sT1}, s{sI}, 7\ns_lshl3_add_u32 s{sG}, s{sT0}, s{sT1}")
        a(f"s_lshr_b32 s{sT0}, s{sX8}, 1\ns_lshr_b32 s{sT1}, s{sI}, 3\ns_lshl2_add_u32 s{sJ}, s{sT0}, s{sT1}")
        a(f"s_lshl4_add_u32 s{sP}, s{sG}, s{sJ}")
        if self.rot:
            a(f"s_lshl1_add_u32 s{sROT}, s{sJ}, s{sG}\ns_and_b32 s{sROT}, s{sROT}, 7")
        else:
            a(f"s_mov_b32 s{sROT}, 0")
        for r, size in ((R_X, 2097152), (R_WK, 16384), (R_WV, 16384), (R_WQ, 524288), (R_W1, 1835008), (R_W3, 1835008),
                        (R_WS, WS_SIZE), (R_W2, 1835008), (R_WO, 524288), (R_OUT, 2097152)):
            a(f"s_mov_b32 s{r+2}, {size}\ns_mov_b32 s{r+3}, 0x20000")
        a(f"s_lshl3_add_u32 s{sT0}, s{sP}, s{sW}\ns_lshl_b32 s{sT0}, s{sT0}, 10")
        a(f"s_mov_b32 s{sMASK}, 0xffff0000")
        a("s_waitcnt lgkmcnt(0)")
        if self.ts:
            a(f"s_mov_b32 s{sTS}, s82")
            for i in range(1, 16):
                a(f"s_mov_b32 s{sTS+i}, 0")
        a(f"buffer_load_dwordx4 v[8:11], v2, {srd(R_X)}, s{sT0} offen {self.xnt}")
        a(f"s_load_dword s{sE}, s[{R_WS}:{R_WS+1}], {FL}")
        a(f"s_cmp_lt_u32 s{sW}, 4")
        a("s_cbranch_scc1 L_g_dma")
        a(f"s_sub_u32 s{sWA}, s{sW}, 4")
        a(f"s_lshl_b32 s{sT0}, s{sWA}, 12")
        a(f"s_add_u32 m0, s{sT0}, {WKV}")
        a("s_nop 0")
        for n in range(4):
            a(f"buffer_load_dwordx4 v2, {srd(R_WK)}, s{sT0} offen offset:{1024*n} lds")
        a(f"s_add_u32 m0, s{sT0}, {WKV+16384}")
        a("s_nop 0")
        for n in range(4):
            a(f"buffer_load_dwordx4 v2, {srd(R_WV)}, s{sT0} offen offset:{1024*n} lds")
        a("s_waitcnt vmcnt(8)")
        a("L_ln:")
        self.stamp(1)
        for i in range(4):
            a(f"v_lshlrev_b32 v{12+2*i}, 16, v{8+i}")
            a(f"v_and_b32 v{13+2*i}, s{sMASK}, v{8+i}")
        a("v_add_f32 v20, v12, v13\nv_add_f32 v21, v14, v15\nv_add_f32 v22, v16, v17\nv_add_f32 v23, v18, v19")
        a("v_add_f32 v20, v20, v21\nv_add_f32 v22, v22, v23\nv_add_f32 v20, v20, v22")
        self.reduce64("v_add_f32", 20, 21)
        a(f"v_mul_f32 v20, {f2u(1/512):#x}, v20")
        for i in range(8):
            a(f"v_sub_f32 v{24+i}, v{12+i}, v20")
        a("v_mul_f32 v21, v24, v24\nv_mul_f32 v22, v25, v25")
        for i in range(2, 8):
            a(f"v_fmac_f32 v{21+(i&1)}, v{24+i}, v{24+i}")
        a("v_add_f32 v21, v21, v22")
        self.reduce64("v_add_f32", 21, 22)
        a(f"v_mul_f32 v21, {f2u(1/512):#x}, v21")
        a("v_cvt_pk_bf16_f32 v22, v20, v21")
        a("v_lshlrev_b32 v23, 16, v22")
        a(f"v_and_b32 v22, s{sMASK}, v22")
        a(f"v_add_f32 v22, {f2u(1e-5):#x}, v22")
        for i in range(8):
            a(f"v_sub_f32 v{12+i}, v{12+i}, v23")
        a("v_cvt_pk_bf16_f32 v22, v22, v22")
        a("v_lshlrev_b32 v22, 16, v22")
        a("v_sqrt_f32 v22, v22")
        for i in range(4):
            a(f"v_cvt_pk_bf16_f32 v{8+i}, v{12+2*i}, v{13+2*i}")
        a("v_cvt_pk_bf16_f32 v22, v22, v22")
        a("v_lshlrev_b32 v22, 16, v22")
        a("v_rcp_f32 v22, v22")
        for i in range(4):
            a(f"v_lshlrev_b32 v{12+2*i}, 16, v{8+i}")
            a(f"v_and_b32 v{13+2*i}, s{sMASK}, v{8+i}")
        for i in range(8):
            a(f"v_mul_f32 v{12+i}, v{12+i}, v22")
        a(f"s_mul_i32 s{sT0}, s{sW}, {PITCH}\ns_add_u32 s{sT0}, s{sT0}, {XROW}")
        for i in range(4):
            a(f"v_cvt_pk_bf16_f32 v{8+i}, v{12+2*i}, v{13+2*i}")
        a(f"v_add_u32 v32, s{sT0}, v2")
        a("ds_write_b128 v32, v[8:11]")
        a("v_and_b32 v33, 31, v1")
        a("v_add_u32 v34, -4, v33")
        a("v_cmp_gt_u32 vcc, 8, v34")
        a(f"v_lshlrev_b32 v33, 2, v33\nv_add_u32 v33, {LFL}, v33")
        a("v_cndmask_b32 v34, 0, -1, vcc")
        a("ds_write_b32 v33, v34")
        a("s_waitcnt lgkmcnt(0)")
        a(f"s_mul_i32 s{sE}, s{sE}, 0x9E3779B1\ns_add_u32 s{sE}, s{sE}, 0x7F4A7C15")
        a(f"s_cmp_lt_u32 s{sW}, 4")
        a("s_cbranch_scc1 L_g_bar1")
        a("s_waitcnt vmcnt(0)")
        a("s_barrier")
        self.stamp(2)
        a(f"s_cmp_ge_u32 s{sW}, 6")
        a("s_cbranch_scc1 L_xn_store")
        self.kv_proj()
        a("L_xn_store:")
        self.xn_store()
        a(f"s_lshl1_add_u32 s{sT0}, s{sP}, s{sW}\ns_sub_u32 s{sT0}, s{sT0}, 6\ns_lshl_b32 s{sT0}, s{sT0}, 7\ns_add_u32 s{sT0}, s{sT0}, {FX}")
        a(f"v_mov_b32 v4, s{sE}\nv_mov_b32 v3, 0")
        a("s_waitcnt vmcnt(0)")
        self.stamp(3)
        a("s_mov_b64 exec, 1")
        a(f"buffer_store_dword v4, v3, {srd(R_WS)}, s{sT0} offen sc1")
        a("s_mov_b64 exec, -1")
        a("s_branch L_a_main")

    def kv_proj(self):
        a = self.a
        a("v_and_b32 v3, 7, v1\nv_lshrrev_b32 v5, 4, v1")
        a(f"v_mul_u32_u24 v3, {PITCH}, v3\nv_lshl_add_u32 v3, v5, 4, v3\nv_add_u32 v3, {XROW}, v3")
        a("v_and_b32 v4, 15, v1\nv_lshlrev_b32 v4, 3, v4")
        a("v_lshl_add_u32 v4, v5, 8, v4")
        a(f"s_lshl_b32 s{sT0}, s{sWA}, 14\ns_add_u32 s{sT0}, s{sT0}, {WKV}")
        a(f"v_add_u32 v4, s{sT0}, v4")
        NB = 5
        def rd(s):
            b = 64 + 8 * (s % NB)
            a(f"ds_read_b128 {vr(b,4)}, v3 offset:{64*s}")
            a(f"ds_read_b64_tr_b16 {vr(b+4,2)}, v4 offset:{1024*s}")
            a(f"ds_read_b64_tr_b16 {vr(b+6,2)}, v4 offset:{1024*s+128}")
        for s in range(NB):
            rd(s)
        a(f"s_cmp_eq_u32 s{sW}, 5")
        a("s_cbranch_scc1 L_vproj")
        for var in ("K", "V"):
            if var == "V":
                a("L_vproj:")
            for s in range(16):
                left = min(NB - 1, 15 - s)
                a(f"s_waitcnt lgkmcnt({3*left})")
                b = 64 + 8 * (s % NB)
                X, Wf = vr(b, 4), vr(b + 4, 4)
                c = "0" if s == 0 else "v[112:115]"
                if var == "K":
                    a(f"v_mfma_f32_16x16x32_bf16 v[112:115], {Wf}, {X}, {c}")
                else:
                    a(f"v_mfma_f32_16x16x32_bf16 v[112:115], {X}, {Wf}, {c}")
                if s + NB < 16:
                    rd(s + NB)
            a(f"s_lshr_b32 s{sT0}, s{sP}, 2\ns_lshl_b32 s{sT0}, s{sT0}, 10\ns_and_b32 s{sT1}, s{sJ}, 3")
            if var == "K":
                a(f"s_lshl_b32 s{sT1}, s{sT1}, 7\ns_add_u32 s{sT0}, s{sT0}, s{sT1}\ns_add_u32 s{sT0}, s{sT0}, {KF}")
                a("v_and_b32 v3, 15, v1\nv_lshlrev_b32 v3, 4, v3\nv_bfe_u32 v4, v1, 4, 1\nv_lshl_add_u32 v3, v4, 9, v3")
                a("v_lshrrev_b32 v4, 5, v1\nv_lshl_add_u32 v3, v4, 3, v3")
                a(f"s_mov_b32 s{sXM}, 0x00ff00ff\ns_mov_b32 s{sXM+1}, 0x00ff00ff")
                a("v_cvt_pk_bf16_f32 v8, v112, v113\nv_cvt_pk_bf16_f32 v9, v114, v115")
                a(f"s_mov_b64 exec, s[{sXM}:{sXM+1}]")
                a(f"buffer_store_dwordx2 v[8:9], v3, {srd(R_WS)}, s{sT0} offen sc1")
                a("s_mov_b64 exec, -1")
                a("v_mul_f32 v6, v112, v112\nv_fmac_f32 v6, v113, v113\nv_fmac_f32 v6, v114, v114\nv_fmac_f32 v6, v115, v115")
                for sw in ("v_permlane16_swap_b32", "v_permlane32_swap_b32"):
                    a(f"v_mov_b32 v5, v6\ns_nop 1\n{sw} v6, v5\nv_add_f32 v6, v6, v5")
                a("v_and_b32 v6, 0x7fffffff, v6")
                for ctl in ("quad_perm:[1,0,3,2]", "quad_perm:[2,3,0,1]", "row_half_mirror"):
                    a(f"s_nop 1\nv_max_u32_dpp v6, v6, v6 {ctl} row_mask:0xf bank_mask:0xf")
                a(f"v_mov_b32 v7, {LFL+80}")
                a(f"s_lshl_b32 s{sT0}, s{sP}, 7\ns_add_u32 s{sT0}, s{sT0}, {F0}")
                a(f"v_mov_b32 v4, s{sE}\nv_mov_b32 v5, v6\nv_mov_b32 v3, 0")
                self.spin_lds(7, 8, "v_cmp_gt_u32 vcc, 1, v8")
                a("s_waitcnt vmcnt(0)")
                self.stamp(3)
                a("s_mov_b64 exec, 1")
                a(f"buffer_store_dwordx2 v[4:5], v3, {srd(R_WS)}, s{sT0} offen sc1")
                a("s_mov_b64 exec, -1")
                a("s_branch L_a_main")
            else:
                a(f"s_lshl_b32 s{sT1}, s{sT1}, 8\ns_add_u32 s{sT0}, s{sT0}, s{sT1}\ns_add_u32 s{sT0}, s{sT0}, {VF}")
                a("v_and_b32 v3, 15, v1\nv_lshlrev_b32 v3, 4, v3\nv_lshrrev_b32 v4, 4, v1\nv_lshl_add_u32 v3, v4, 3, v3")
                a("s_nop 1")
                a("v_cvt_pk_bf16_f32 v8, v112, v113\nv_cvt_pk_bf16_f32 v9, v114, v115")
                a("s_mov_b32 exec_hi, 0")
                a(f"buffer_store_dwordx2 v[8:9], v3, {srd(R_WS)}, s{sT0} offen sc1")
                a("s_mov_b64 exec, -1")
                a(f"v_mov_b32 v7, {LFL+80}\nv_mov_b32 v8, 1")
                a("s_waitcnt vmcnt(0)")
                self.stamp(3)
                a("ds_write_b32 v7, v8")
                a("s_branch L_a_main")

    def xn_store(self):
        a = self.a
        a("v_and_b32 v3, 7, v1\nv_lshrrev_b32 v4, 3, v1")
        a(f"v_mul_u32_u24 v5, {PITCH}, v3\nv_lshl_add_u32 v5, v4, 4, v5")
        a(f"s_sub_u32 s{sT1}, s{sW}, 6\ns_lshl_b32 s{sT0}, s{sT1}, 9\ns_add_u32 s{sT0}, s{sT0}, {XROW}")
        a(f"v_add_u32 v5, s{sT0}, v5")
        for n in range(4):
            a(f"ds_read_b128 {vr(64+4*n,4)}, v5 offset:{128*n}")
        a("v_lshlrev_b32 v3, 4, v3\nv_and_b32 v6, 1, v4\nv_lshl_add_u32 v3, v6, 9, v3\nv_lshrrev_b32 v4, 1, v4\nv_lshl_add_u32 v3, v4, 10, v3")
        a(f"s_lshr_b32 s{sT0}, s{sP}, 2\ns_lshl_b32 s{sT0}, s{sT0}, 15\ns_lshl_b32 s{sT1}, s{sT1}, 14\ns_add_u32 s{sT0}, s{sT0}, s{sT1}")
        a(f"s_and_b32 s{sT1}, s{sJ}, 3\ns_lshl_b32 s{sT1}, s{sT1}, 7\ns_add_u32 s{sT0}, s{sT0}, s{sT1}")
        if XN:
            a(f"s_add_u32 s{sT0}, s{sT0}, {XN}")
        for n in range(4):
            a(f"s_waitcnt lgkmcnt({3-n})")
            a(f"buffer_store_dwordx4 {vr(64+4*n,4)}, v3, {srd(R_WS)}, s{sT0} offen sc1")
            if n < 3:
                a(f"s_add_u32 s{sT0}, s{sT0}, 4096")

    gRG0, gRU0, gRG1, gRU1 = 3, 4, 5, 6
    gT = 8
    gTQ = 12
    gFL = 13
    gMY = 14
    gTMP = 15
    gE = 16
    gP = 24
    gQ = 32
    gA = 48
    gC = 64
    gX = 128

    def ring_dma(self, b, vm):
        a = self.a
        p, sl = b >> 3, b & 7
        vg, vu = (self.gRG0, self.gRU0) if p == 0 else (self.gRG1, self.gRU1)
        a(f"s_add_u32 s{sT0}, s{sROT}, {sl}\ns_and_b32 s{sT0}, s{sT0}, 7\ns_mul_i32 s{sT0}, s{sT0}, {64*3584}\ns_add_u32 s{sT0}, s{sT0}, s{sBASE}")
        a(f"s_add_u32 m0, s{sW4096}, {(b & 3) * 16384}")
        a(f"s_add_u32 s{sT1}, s{sT0}, {p*128 + 8*3584 - 1024}")
        if p:
            a(f"s_add_u32 s{sT0}, s{sT0}, {p*128}")
        a(f"buffer_load_dwordx4 v{vg}, {srd(R_W1)}, s{sT0} offen {self.wnt} lds")
        a(f"buffer_load_dwordx4 v{vg}, {srd(R_W1)}, s{sT1} offen offset:1024 {self.wnt} lds")
        a("s_add_u32 m0, m0, 2048")
        a("s_nop 0")
        a(f"buffer_load_dwordx4 v{vu}, {srd(R_W3)}, s{sT0} offen {self.wnt} lds")
        a(f"buffer_load_dwordx4 v{vu}, {srd(R_W3)}, s{sT1} offen offset:1024 {self.wnt} lds")
        for _ in range(4):
            vm.issue(("ring", b))

    def g_early(self):
        a = self.a
        vm = self.vmG = Vm(a)
        vm.issue("xrow")
        a("L_g_dma:")
        if self.code_pf:
            a(f"s_sub_u32 s{sPC}, s{sPC}, L_pc-{NAME}\ns_subb_u32 s{sPC+1}, s{sPC+1}, 0")
            a(f"s_lshl_b32 s{sT0}, s{sW}, 13")
            a(f"v_lshlrev_b32 v3, 7, v1\nv_add_u32 v3, s{sT0}, v3")
            a(f"v_min_u32 v3, L_code_end-{NAME}-4, v3")
            a(f"global_load_dword v7, v3, s[{sPC}:{sPC+1}]")
            vm.issue("pf")
        if self.tlb:
            L = self.lab("tlb")
            a(f"s_cmp_lg_u32 s{sW}, 0\ns_cbranch_scc1 {L}")
            a("v_lshlrev_b32 v3, 20, v1\ns_mov_b64 exec, 0x3fff")
            a(f"buffer_load_dword v7, v3, {srd(R_WS)}, 0 offen offset:2048")
            a("s_mov_b64 exec, 3")
            for R in (R_W1, R_W3, R_W2):
                a(f"buffer_load_dword v7, v3, {srd(R)}, 0 offen")
            a("s_mov_b64 exec, 1")
            for R in (R_WQ, R_WO, R_OUT):
                a(f"buffer_load_dword v7, v3, {srd(R)}, 0 offen")
            a("s_mov_b64 exec, -1")
            a("s_waitcnt vmcnt(8)")
            a("s_branch L_ln")
            a(f"{L}:")
        if self.wq_at == "early":
            self.wq_dma(vm)
        if self.ring_at == "early":
            self.ring_setup(vm)
            self.ring_fill(vm)
        vm.wait("xrow")
        a("s_branch L_ln")

    def wq_dma(self, vm):
        a = self.a
        a("v_lshrrev_b32 v3, 2, v1\nv_lshlrev_b32 v3, 10, v3\nv_and_b32 v4, 3, v1\nv_lshl_add_u32 v3, v4, 4, v3")
        a(f"s_lshl_b32 s{sT4}, s{sJ}, 6")
        a(f"s_lshl_b32 s{sT1}, s{sW}, 13\ns_add_u32 m0, s{sT1}, {WQI}")
        for n in range(8):
            if n:
                a(f"s_add_u32 m0, m0, 1024")
            if n & 3 == 0:
                a(f"s_lshl1_add_u32 s{sT0}, s{sW}, s{sROT}\ns_add_u32 s{sT0}, s{sT0}, {n>>2}\ns_and_b32 s{sT0}, s{sT0}, 7\ns_lshl_b32 s{sT0}, s{sT0}, 16\ns_add_u32 s{sT0}, s{sT0}, s{sT4}")
            else:
                a(f"s_add_u32 s{sT0}, s{sT0}, 16384")
            a(f"buffer_load_dwordx4 v3, {srd(R_WQ)}, s{sT0} offen lds")
            vm.issue("wq")

    def ring_setup(self, vm):
        a = self.a
        RG0, RU0, RG1, RU1 = self.gRG0, self.gRU0, self.gRG1, self.gRU1
        a("v_bfe_u32 v35, v1, 1, 2\nv_bfe_u32 v36, v1, 4, 1\nv_xor_b32 v35, v35, v36")
        a("v_lshrrev_b32 v36, 3, v1\nv_mul_u32_u24 v36, 3584, v36\nv_and_b32 v37, 1, v1\nv_lshl_add_u32 v36, v37, 4, v36")
        a(f"v_lshl_add_u32 v{RG0}, v35, 5, v36")
        a(f"v_xor_b32 v37, 2, v35\nv_lshl_add_u32 v{RU0}, v37, 5, v36")
        a("v_mov_b32 v36, 0x40000000")
        a("v_cmp_eq_u32 vcc, 3, v35\ns_nop 1")
        a(f"v_cndmask_b32 v{RG1}, v{RG0}, v36, vcc")
        a("v_cmp_eq_u32 vcc, 3, v37\ns_nop 1")
        a(f"v_cndmask_b32 v{RU1}, v{RU0}, v36, vcc")
        a(f"s_mul_i32 s{sBASE}, s{sW}, {16*3584}\ns_mul_i32 s{sT0}, s{sJ}, 224\ns_add_u32 s{sBASE}, s{sBASE}, s{sT0}")
        a(f"s_lshl_b32 s{sW4096}, s{sW}, 12")

    def ring_fill(self, vm, lo=0, hi=4):
        for b in range(lo, hi):
            self.ring_dma(b, vm)

    def tr_pair(self, dst, vaddr, off, qstep):
        self.a(f"ds_read_b64_tr_b16 {vr(dst,2)}, v{vaddr} offset:{off}")
        self.a(f"ds_read_b64_tr_b16 {vr(dst+2,2)}, v{vaddr} offset:{off+qstep}")

    def g_main(self):
        a = self.a
        vm = self.vmG
        gT, gA, gC, gX, gQ, gE, gP = self.gT, self.gA, self.gC, self.gX, self.gQ, self.gE, self.gP
        a("L_g_bar1:")
        a("s_barrier")
        self.stamp(2)
        a(f"s_setprio {self.prioGhi}")
        if self.wq_at == "bar1":
            self.wq_dma(vm)
        if self.ring_at != "early":
            self.ring_setup(vm)
        if self.ring_at == "bar1":
            self.ring_fill(vm)
        a("v_and_b32 v16, 3, v1\nv_lshlrev_b32 v16, 3, v16")
        a("v_bfe_u32 v17, v1, 2, 2")
        a("v_bfe_u32 v18, v1, 4, 1")
        a("v_lshrrev_b32 v19, 5, v1")
        a("v_bfe_u32 v20, v1, 3, 1")
        a(f"v_lshl_add_u32 v21, v19, 9, v16\nv_lshl_add_u32 v21, v17, 6, v21\nv_lshl_add_u32 v21, v18, 5, v21\nv_add_u32 v{self.gTQ}, {WQI}, v21")
        a("v_lshl_add_u32 v21, v18, 11, v16\nv_lshl_add_u32 v21, v19, 10, v21\nv_lshl_add_u32 v21, v17, 7, v21")
        a("v_lshl_add_u32 v22, v18, 1, v20\nv_lshl_add_u32 v21, v22, 5, v21")
        a(f"v_mov_b32 v{gT}, v21")
        for mt in range(1, 4):
            a(f"v_xor_b32 v{gT+mt}, {32*mt}, v21")
        a(f"v_and_b32 v21, 3, v1\nv_lshlrev_b32 v21, 2, v21\nv_add_u32 v{self.gFL}, {LFL}, v21")
        a(f"s_lshl_b32 s{sT0}, s{sW}, 2\ns_add_u32 s{sT0}, s{sT0}, {LFL}\nv_mov_b32 v{self.gMY}, s{sT0}")
        nl = f2u(-LOG2E)
        a(f"s_mov_b32 s{sNL2}, {nl:#x}\ns_mov_b32 s{sNL2+1}, {nl:#x}")
        a(f"s_mov_b32 s{sONE}, 1.0\ns_mov_b32 s{sONE+1}, 1.0")
        qs = f2u(0.25 * LOG2E)
        a(f"s_mov_b32 s{sQS}, {qs:#x}\ns_mov_b32 s{sQS+1}, {qs:#x}")
        a("v_and_b32 v21, 7, v1\nv_lshlrev_b32 v21, 7, v21")
        a(f"s_lshl_b32 s{sT0}, s{sG}, 2\ns_add_u32 s{sT0}, s{sT0}, s{sW}\ns_lshl_b32 s{sT2}, s{sT0}, 10\ns_add_u32 s{sT2}, s{sT2}, {FX}")
        a(f"s_lshl_b32 s{sT3}, s{sT0}, 15")
        if XN:
            a(f"s_add_u32 s{sT3}, s{sT3}, {XN}")
        a(f"v_mov_b32 v{self.gTMP}, 1")
        if self.wq_at != "flag":
            vm.wait("wq")
            a(f"ds_write_b32 v{self.gMY}, v{self.gTMP} offset:64")
        self.stamp(3)
        self.poll_global(21, f"s{sT2}", 22, 1, vm, lanes=8)
        self.stamp(4)
        if self.gate:
            a(f"ds_write_b32 v{self.gMY}, v{self.gTMP} offset:96")
        if self.wq_at == "flag":
            self.wq_dma(vm)
        if self.ring_at == "flag":
            self.ring_fill(vm)
        for s in range(32):
            if s & 3 == 0:
                a(f"s_add_u32 s{sT0}, s{sROT}, {s>>2}\ns_and_b32 s{sT0}, s{sT0}, 7\ns_lshl_b32 s{sT0}, s{sT0}, 12\ns_add_u32 s{sT0}, s{sT0}, s{sT3}")
            a(f"buffer_load_dwordx4 {vr(gX+4*s,4)}, v2, {srd(R_WS)}, s{sT0} offen offset:{1024*(s&3)} sc1")
            vm.issue(("x", s))
        if self.ring_at == "afterx":
            self.ring_fill(vm)
        if self.ring_at == "afterx2":
            self.ring_fill(vm, 0, 2)
        if self.ring_at == "afterx1":
            self.ring_fill(vm, 0, 1)
        if self.wq_at == "flag":
            vm.wait("wq")
            a(f"ds_write_b32 v{self.gMY}, v{self.gTMP} offset:64")
        a(f"v_add_u32 v21, 64, v{self.gFL}")
        self.spin_lds(21, 22, "v_cmp_gt_u32 vcc, 1, v22")
        for s in range(4):
            self.tr_pair(gA + 4 * s, self.gTQ, 1024 * s, 256)
        for s in range(32):
            left = min(3, 31 - s)
            vm.wait(("x", s), f"lgkmcnt({2*left})")
            c = "0" if s == 0 else vr(gQ, 16)
            a(f"v_mfma_f32_32x32x16_bf16 {vr(gQ,16)}, {vr(gA+4*(s%4),4)}, {vr(gX+4*s,4)}, {c}")
            if s + 4 < 32:
                self.tr_pair(gA + 4 * (s % 4), self.gTQ, 1024 * (s + 4), 256)
        self.stamp(5)
        a(f"s_lshl_b32 s{sT0}, s{sW}, 11\ns_add_u32 s{sT0}, s{sT0}, {QX}")
        a(f"v_add_u32 v7, s{sT0}, v2")
        a("s_nop 7")
        for i in range(8):
            a(f"v_pk_mul_f32 {vr(gQ+2*i,2)}, {vr(gQ+2*i,2)}, s[{sQS}:{sQS+1}]")
        for i in range(8):
            a(f"v_cvt_pk_bf16_f32 v{gP+i}, v{gQ+2*i}, v{gQ+2*i+1}")
        a(f"ds_write_b128 v7, {vr(gP,4)}")
        a(f"ds_write_b128 v7, {vr(gP+4,4)} offset:1024")
        a(f"v_mul_f32 v{gE}, v{gQ}, v{gQ}\nv_mul_f32 v{gE+1}, v{gQ+8}, v{gQ+8}")
        for i in range(1, 8):
            a(f"v_fmac_f32 v{gE}, v{gQ+i}, v{gQ+i}\nv_fmac_f32 v{gE+1}, v{gQ+8+i}, v{gQ+8+i}")
        a("s_nop 1")
        a(f"v_permlane32_swap_b32 v{gE}, v{gE+1}")
        a(f"v_add_f32 v{gE}, v{gE}, v{gE+1}")
        a(f"v_and_b32 v{gE}, 0x7fffffff, v{gE}")
        self.reduce64("v_max_u32", gE, gE + 1)
        a("s_waitcnt lgkmcnt(0)")
        a(f"ds_write_b32 v{self.gMY}, v{gE} offset:16")
        self.stamp(6)
        if self.ring_at == "afterq":
            self.ring_fill(vm)
        if self.ring_at == "afterx2":
            self.ring_fill(vm, 2, 4)
        if self.ring_at == "afterx1":
            self.ring_fill(vm, 1, 4)
        if self.only == "A":
            a(f"v_mov_b32 v{self.gTMP}, 18\nds_write_b32 v{self.gMY}, v{self.gTMP}\ns_waitcnt vmcnt(0) lgkmcnt(0)")
            self.stamp_flush()
            a("s_endpgm")
            return
        LA = 4
        pending = []
        nitem = 0
        def mf(it):
            (n, b, ks, mt) = it
            kk = 4 * (b & 7) + ks
            c = "0" if kk == 0 else vr(gC + 16 * mt, 16)
            a(f"v_mfma_f32_32x32x16_bf16 {vr(gC+16*mt,16)}, {vr(gA+4*(n%LA),4)}, {vr(gX+4*kk,4)}, {c}")
        def rd(it):
            (n, b, ks, mt) = it
            self.tr_pair(gA + 4 * (n % LA), gT + mt, (b & 3) * 16384 + ks * 4096, 512)
        self.sH_ready = False
        for b in range(17):
            if True:
                a(f"s_setprio {self.prioGhi}")
                if b < 16:
                    vm.wait(("ring", b), "lgkmcnt(0)")
                else:
                    a("s_waitcnt lgkmcnt(0)")
                a(f"v_mov_b32 v{self.gTMP}, {b+1}")
                a(f"ds_write_b32 v{self.gMY}, v{self.gTMP}")
                for it in pending[:2]:
                    mf(it)
                if b < 16:
                    a(f"ds_read_b32 v{self.gTMP}, v{self.gFL}")
                for it in pending[2:]:
                    mf(it)
                pending = []
            if b < 16:
                self.spin_lds(self.gFL, self.gTMP, f"v_cmp_gt_u32 vcc, {b+1}, v{self.gTMP}", first_issued=True)
                if b >= 1 and b + 3 <= 15:
                    self.ring_dma(b + 3, vm)
                if b == 13:
                    self.down_setup(vm)
                nm = 4 if b < 8 else 3
                items = []
                for ks in range(4):
                    for mt in range(nm):
                        items.append((nitem, b, ks, mt)); nitem += 1
                for it in items[:LA]:
                    rd(it)
            if b == 8:
                self.silu_store(0, 4, vm)
            if b == 16:
                self.silu_store(4, 3, vm)
                break
            a(f"s_setprio {self.prioG}")
            for idx, it in enumerate(items[:-LA]):
                a(f"s_waitcnt lgkmcnt({2*(LA-1)})")
                mf(it)
                rd(items[idx + LA])
            pending = items[-LA:]
        self.stamp(7)
        self.down(vm)

    def silu_store(self, mt0, nm, vm):
        a = self.a
        gC, gE, gP = self.gC, self.gE, self.gP
        a(f"s_lshl_b32 s{sT0}, s{sG}, 2\ns_add_u32 s{sT0}, s{sT0}, s{sW}\ns_mul_i32 s{sT0}, s{sT0}, 112")
        a(f"s_mul_i32 s{sT1}, s{sJ}, 7\ns_add_u32 s{sT0}, s{sT0}, s{sT1}\ns_lshl_b32 s{sT0}, s{sT0}, 10\ns_add_u32 s{sT0}, s{sT0}, {HF + 1024*mt0}")
        if mt0 == 4:
            a("s_nop 3")
        for m in range(nm):
            G, U, E, P = gC + 16 * m, gC + 16 * m + 8, gE, gP + 4 * (m & 1)
            for i in range(4):
                a(f"v_pk_mul_f32 {vr(E+2*i,2)}, {vr(G+2*i,2)}, s[{sNL2}:{sNL2+1}]")
            for i in range(8):
                a(f"v_exp_f32 v{E+i}, v{E+i}")
            for i in range(4):
                a(f"v_pk_mul_f32 {vr(G+2*i,2)}, {vr(G+2*i,2)}, {vr(U+2*i,2)}")
                if i == 0:
                    pass
            for i in range(4):
                a(f"v_pk_add_f32 {vr(E+2*i,2)}, {vr(E+2*i,2)}, s[{sONE}:{sONE+1}]")
            for i in range(8):
                a(f"v_rcp_f32 v{E+i}, v{E+i}")
            a("s_nop 0")
            for i in range(4):
                a(f"v_pk_mul_f32 {vr(G+2*i,2)}, {vr(G+2*i,2)}, {vr(E+2*i,2)}")
            for i in range(4):
                a(f"v_cvt_pk_bf16_f32 v{P+i}, v{G+2*i}, v{G+2*i+1}")
            a(f"buffer_store_dwordx4 {vr(P,4)}, v2, {srd(R_WS)}, s{sT0} offen offset:{1024*m} sc1")
            vm.issue(("h", mt0 + m))

    dV = 7
    dXR = 32
    dT = 40
    dF = 42
    dXA = 43
    dH = 128

    def w2_dma(self, n, vm):
        a = self.a
        a(f"s_add_u32 m0, s{sRB}, {(n & 7) * 2048}")
        if n < 28:
            R = R_W2
            a(f"s_lshl_b32 s{sT0}, s{sIDX}, 14\ns_add_u32 s{sT0}, s{sT0}, s{sW2}")
        else:
            R = R_WO
            a(f"s_add_u32 s{sT0}, s{sKB}, {n-28}\ns_and_b32 s{sT0}, s{sT0}, 7\ns_lshl_b32 s{sT0}, s{sT0}, 14\ns_add_u32 s{sT0}, s{sT0}, s{sWO}")
        a(f"s_add_u32 s{sT1}, s{sT0}, {8192 - 1024}")
        a(f"buffer_load_dwordx4 v{self.dV}, {srd(R)}, s{sT0} offen lds")
        a(f"buffer_load_dwordx4 v{self.dV}, {srd(R)}, s{sT1} offen offset:1024 lds")
        vm.issue(("w2", n)); vm.issue(("w2", n))

    def idx_step(self):
        self.a(f"s_add_u32 s{sIDX}, s{sIDX}, 1\ns_cmp_eq_u32 s{sIDX}, 28\ns_cselect_b32 s{sIDX}, 0, s{sIDX}")

    def down_setup(self, vm):
        a = self.a
        dV, dT = self.dV, self.dT
        a(f"s_and_b32 s{sT2}, s{sI}, 3\ns_lshl2_add_u32 s{sT2}, s{sX8}, s{sT2}")
        a(f"s_lshr_b32 s{sT3}, s{sI}, 2")
        a(f"s_lshl_b32 s{sT4}, s{sT3}, 7")
        a(f"s_mul_i32 s{sW2}, s{sW}, {28*16384}\ns_add_u32 s{sW2}, s{sW2}, s{sT4}")
        a(f"s_lshl_b32 s{sWO}, s{sW}, 17\ns_add_u32 s{sWO}, s{sWO}, s{sT4}")
        a(f"s_lshl_b32 s{sRB}, s{sW}, 14\ns_add_u32 s{sRB}, s{sRB}, {RB0}")
        a("v_bfe_u32 v40, v1, 2, 1\nv_bfe_u32 v41, v1, 4, 1\nv_xor_b32 v40, v40, v41\nv_lshlrev_b32 v40, 6, v40")
        a("v_and_b32 v41, 3, v1\nv_lshl_add_u32 v40, v41, 4, v40\nv_lshrrev_b32 v41, 3, v1")
        a(f"v_lshl_add_u32 v{dV}, v41, 10, v40")
        if self.rot:
            a(f"s_lshl1_add_u32 s{sT0}, s{sT2}, s{sT3}\ns_and_b32 s{sT1}, s{sT2}, 3\ns_lshl1_add_u32 s{sT0}, s{sT1}, s{sT3}\ns_mul_i32 s{sT0}, s{sT0}, 7\ns_lshr_b32 s{sT0}, s{sT0}, 1")
            a(f"s_sub_u32 s{sT1}, s{sT0}, 28\ns_cmp_ge_u32 s{sT0}, 28\ns_cselect_b32 s{sROT}, s{sT1}, s{sT0}")
            a(f"s_mov_b32 s{sKB}, s{sT3}")
        else:
            a(f"s_mov_b32 s{sROT}, 0\ns_mov_b32 s{sKB}, 0")
        a(f"s_mov_b32 s{sIDX}, s{sROT}")
        for n in range(8):
            self.w2_dma(n, vm)
            self.idx_step()
        a(f"s_lshr_b32 s{sT0}, s{sW}, 1\ns_lshl1_add_u32 s{sT0}, s{sT2}, s{sT0}\ns_xor_b32 s{sT1}, s{sT0}, 1")
        a(f"s_mul_i32 s{sT5}, s{sW}, 28")
        for sH, sO, st in ((sH0, sO0, sT0), (sH1, sO1, sT1)):
            a(f"s_mul_i32 s{sH}, s{st}, 112\ns_add_u32 s{sH}, s{sH}, s{sT5}\ns_lshl_b32 s{sH}, s{sH}, 10\ns_add_u32 s{sH}, s{sH}, {HF}")
            a(f"s_lshl_b32 s{sO}, s{st}, 2\ns_add_u32 s{sO}, s{sO}, s{sW}\ns_lshl_b32 s{sO}, s{sO}, 13\ns_add_u32 s{sO}, s{sO}, {OF}")
        a(f"s_lshl_b32 s{sOUT}, s{sT0}, 15\ns_add_u32 s{sOUT}, s{sOUT}, s{sT4}\ns_and_b32 s{sT1}, s{sW}, 1\ns_lshl_b32 s{sT1}, s{sT1}, 6\ns_add_u32 s{sOUT}, s{sOUT}, s{sT1}")
        a("v_and_b32 v42, 3, v1\nv_lshlrev_b32 v42, 3, v42\nv_bfe_u32 v43, v1, 4, 1\nv_lshl_add_u32 v42, v43, 5, v42")
        a("v_bfe_u32 v43, v1, 2, 2\nv_lshl_add_u32 v42, v43, 7, v42\nv_lshrrev_b32 v43, 5, v1\nv_lshl_add_u32 v42, v43, 9, v42")
        a(f"v_bfe_u32 v43, v1, 3, 1\nv_lshl_add_u32 v42, v43, 6, v42\nv_xor_b32 v42, s{sT1}, v42")
        a(f"v_add_u32 v{dT}, s{sRB}, v42\nv_xor_b32 v{dT+1}, 64, v{dT}")
        a(f"s_lshr_b32 s{sT0}, s{sT2}, 1\ns_lshl2_add_u32 s{sT0}, s{sT0}, s{sW}\ns_lshl_b32 s{sT0}, s{sT0}, 4")
        a(f"s_and_b32 s{sT1}, s{sT2}, 1\ns_lshl1_add_u32 s{sT0}, s{sT1}, s{sT0}\ns_lshl_b32 s{sT0}, s{sT0}, 7")
        a(f"v_and_b32 v42, 3, v1\nv_lshlrev_b32 v42, 9, v42\nv_bfe_u32 v43, v1, 2, 1\nv_lshl_add_u32 v42, v43, 7, v42\nv_add_u32 v{self.dF}, s{sT0}, v42")
        a(f"v_and_b32 v43, 31, v1\nv_lshlrev_b32 v43, 10, v43\nv_lshrrev_b32 v44, 5, v1\nv_lshl_add_u32 v{self.dXA}, v44, 3, v43")
        for i in range(4):
            a(f"buffer_load_dwordx2 {vr(self.dXR+2*i,2)}, v{self.dXA}, {srd(R_X)}, s{sOUT} offen offset:{16*i}")
            vm.issue("xres")

    def down(self, vm):
        a = self.a
        gA, gC, gP, dT, dH = self.gA, self.gC, self.gP, self.dT, self.dH
        vm.drain()
        a(f"s_lshl2_add_u32 s{sT0}, s{sP}, s{sW}\ns_lshl_b32 s{sT0}, s{sT0}, 7\ns_add_u32 s{sT0}, s{sT0}, {FH}")
        a(f"v_mov_b32 v16, s{sE}\nv_mov_b32 v17, 0")
        a("s_mov_b64 exec, 1")
        a(f"buffer_store_dword v16, v17, {srd(R_WS)}, s{sT0} offen sc1")
        a("s_mov_b64 exec, -1")
        for i in range(8):
            a(f"v_lshlrev_b32 v{gC+2*i}, 16, v{self.dXR+i}")
            a(f"v_and_b32 v{gC+2*i+1}, s{sMASK}, v{self.dXR+i}")
        def rdA(n):
            buf = gA + 8 * (n & 1)
            self.tr_pair(buf, dT, (n & 7) * 2048, 1024)
            self.tr_pair(buf + 4, dT + 1, (n & 7) * 2048, 1024)
        def ldB(n, sI):
            if n < 28:
                a(f"s_lshl_b32 s{sT0}, s{sI}, 10")
            else:
                a(f"s_add_u32 s{sT0}, s{sKB}, {n-28}\ns_and_b32 s{sT0}, s{sT0}, 7\ns_lshl_b32 s{sT0}, s{sT0}, 10")
            for bp in range(2):
                s = (sH0, sH1)[bp] if n < 28 else (sO0, sO1)[bp]
                a(f"s_add_u32 s{sT1}, s{sT0}, s{s}")
                a(f"buffer_load_dwordx4 {vr(dH+8*(n&7)+4*bp,4)}, v2, {srd(R_WS)}, s{sT1} offen sc1")
                vm.issue(("b", n))
        rdA(0)
        a(f"s_mov_b32 s{sT2}, {FH}")
        self.poll_global(self.dF, f"s{sT2}", 16, 1, vm, lanes=8)
        self.stamp(8)
        a(f"s_setprio {self.prioG}")
        for n in range(8):
            ldB(n, sROT)
            a(f"s_add_u32 s{sROT}, s{sROT}, 1\ns_cmp_eq_u32 s{sROT}, 28\ns_cselect_b32 s{sROT}, 0, s{sROT}")
        for n in range(36):
            if n == 28:
                a(f"s_setprio {self.prioGhi}")
                self.stamp(9)
                a(f"s_mov_b32 s{sT2}, {FO}")
                self.poll_global(self.dF, f"s{sT2}", 16, 1, vm, lanes=8)
                self.stamp(10)
                for m in range(28, 36):
                    ldB(m, None)
            if n + 1 < 36:
                vm.wait(("w2", n + 1))
                rdA(n + 1)
                vm.wait(("b", n), "lgkmcnt(4)")
            else:
                vm.wait(("b", n), "lgkmcnt(0)")
            buf = gA + 8 * (n & 1)
            for u in range(4):
                ap, bp = u & 1, u >> 1
                c = "0" if (n == 0 and u) else vr(gC + 16 * u, 16)
                a(f"v_mfma_f32_32x32x16_bf16 {vr(gC+16*u,16)}, {vr(buf+4*ap,4)}, {vr(dH+8*(n&7)+4*bp,4)}, {c}")
            if n + 8 < 36:
                self.w2_dma(n + 8, vm)
            if n + 8 < 28:
                ldB(n + 8, sIDX)
                self.idx_step()
        self.stamp(11)
        a(f"v_add_u32 v16, s{sRB}, v2")
        for u in range(1, 4):
            a(f"s_xor_b32 s{sT0}, s{sW}, {u}\ns_lshl_b32 s{sT0}, s{sT0}, 14\ns_add_u32 s{sT0}, s{sT0}, {RB0 + (u-1)*4096}")
            a(f"v_add_u32 v{16+u}, s{sT0}, v2")
        a(f"v_mov_b32 v{self.gTMP}, 18")
        a("s_nop 1")
        for u in range(1, 4):
            for q in range(4):
                a(f"ds_write_b128 v16, {vr(gC+16*u+4*q,4)} offset:{(u-1)*4096+q*1024}")
        a("s_waitcnt lgkmcnt(0)")
        a(f"ds_write_b32 v{self.gMY}, v{self.gTMP}")
        self.spin_lds(self.gFL, self.gTMP, f"v_cmp_gt_u32 vcc, 18, v{self.gTMP}")
        for u in range(1, 4):
            for q in range(4):
                a(f"ds_read_b128 {vr(gC+16*u+4*q,4)}, v{16+u} offset:{q*1024}")
        a(f"v_lshrrev_b32 v20, 5, v1\nv_lshl_add_u32 v20, v20, 3, v{self.dXA}")
        for u in range(1, 4):
            a(f"s_waitcnt lgkmcnt({4*(3-u)})")
            for i in range(8):
                a(f"v_pk_add_f32 {vr(gC+2*i,2)}, {vr(gC+2*i,2)}, {vr(gC+16*u+2*i,2)}")
        for i in range(8):
            a(f"v_cvt_pk_bf16_f32 v{gP+i}, v{gC+2*i}, v{gC+2*i+1}")
        a("s_nop 0")
        for k in (0, 4):
            a(f"v_permlane32_swap_b32 v{gP+k}, v{gP+k+2}\nv_permlane32_swap_b32 v{gP+k+1}, v{gP+k+3}")
        a(f"buffer_store_dwordx4 {vr(gP,4)}, v20, {srd(R_OUT)}, s{sOUT} offen")
        a(f"buffer_store_dwordx4 {vr(gP+4,4)}, v20, {srd(R_OUT)}, s{sOUT} offen offset:32")
        self.stamp(12)
        if self.ts:
            a("s_waitcnt vmcnt(0)")
            self.stamp(13)
        self.stamp_flush()
        a("s_endpgm")

    aK = (40, 52)
    aV = (44, 56)
    aIDX, aOK, aOV = 39, 37, 38
    aS = (64, 80)
    aQ = 96
    aO = 128

    def k_step(self):
        self.a(f"s_add_u32 s{sIDX}, s{sIDX}, 1\ns_and_b32 s{sIDX}, s{sIDX}, 15\ns_lshl_b32 s{sK}, s{sIDX}, 10\ns_add_u32 s{sK}, s{sK}, s{sKB}")
    def kv_load_k(self, buf):
        self.a(f"buffer_load_dwordx4 {vr(self.aK[buf],4)}, v{self.aOK}, {srd(R_WS)}, s{sK} offen sc1")
    def kv_load_v(self, buf):
        a = self.a
        a(f"s_mov_b64 exec, s[{sXM}:{sXM+1}]")
        a(f"buffer_load_dwordx4 {vr(self.aV[buf],4)}, v{self.aOV}, {srd(R_WS)}, s{sK} offen sc1")
        a(f"buffer_load_dwordx4 {vr(self.aV[buf]+4,4)}, v{self.aOV}, {srd(R_WS)}, s{sK} offen offset:512 sc1")
        a("s_mov_b64 exec, -1")

    def a_main(self):
        a = self.a
        vm = Vm(a)
        aK, aV, aS, aQ, aO = self.aK, self.aV, self.aS, self.aQ, self.aO
        a("L_a_main:")
        a("v_and_b32 v3, 31, v1\nv_cmp_eq_u32 vcc, 16, v3\nv_mov_b32 v4, 0x3f803f80")
        a(f"v_mov_b32 v{self.aIDX}, 0xdddddddd")
        a("v_cndmask_b32 v4, 0, v4, vcc")
        for r in list(range(aV[0], aV[0] + 8)) + list(range(aV[1], aV[1] + 8)):
            a(f"v_mov_b32 v{r}, v4")
        for r in range(aS[1] + 8, aS[1] + 16):
            a(f"v_mov_b32 v{r}, 0")
        a(f"v_mov_b32 v{self.aOK}, v2")
        a(f"v_and_b32 v3, 15, v1\nv_lshlrev_b32 v3, 4, v3\nv_lshrrev_b32 v4, 5, v1\nv_lshl_add_u32 v3, v4, 8, v3\nv_add_u32 v{self.aOV}, {VF-KF}, v3")
        for r in range(128, 256):
            a(f"v_mov_b32 v{r}, 0")
        a(f"s_mov_b32 s{sXM}, 0xffff\ns_mov_b32 s{sXM+1}, 0xffff")
        a(f"s_lshl_b32 s{sKB}, s{sWA}, 14\ns_add_u32 s{sKB}, s{sKB}, {KF}")
        if self.rot:
            a(f"s_and_b32 s{sIDX}, s{sI}, 15")
        else:
            a(f"s_mov_b32 s{sIDX}, 0")
        a(f"s_lshl_b32 s{sK}, s{sIDX}, 10\ns_add_u32 s{sK}, s{sK}, s{sKB}")
        a(f"v_lshlrev_b32 v3, 7, v1\ns_lshl_b32 s{sT2}, s{sWA}, 13\ns_add_u32 s{sT2}, s{sT2}, {F0}")
        if self.gate:
            a(f"v_and_b32 v7, 3, v1\nv_lshlrev_b32 v7, 2, v7\nv_add_u32 v7, {LFL+96}, v7")
            self.spin_lds(7, 8, "v_cmp_gt_u32 vcc, 1, v8", sleep=2)
        self.poll_global(3, f"s{sT2}", 4, 2, vm, sleep=self.asleep)
        self.stamp(4)
        self.kv_load_k(0)
        self.kv_load_v(0)
        self.k_step()
        self.kv_load_k(1)
        self.reduce64("v_max_u32", 5, 6)
        a(f"s_lshl_b32 s{sT0}, s{sWA}, 2\ns_add_u32 s{sT0}, s{sT0}, {LFL+32}\nv_mov_b32 v6, s{sT0}")
        a("ds_write_b32 v6, v5")
        a(f"v_and_b32 v7, 7, v1\nv_lshlrev_b32 v7, 2, v7\nv_add_u32 v7, {LFL+16}, v7")
        self.spin_lds(7, 8, "v_cmp_eq_u32 vcc, -1, v8")
        self.stamp(5)
        for t in range(8):
            a(f"s_lshl1_add_u32 s{sT0}, s{sWA}, {t}\ns_and_b32 s{sT0}, s{sT0}, 7\ns_lshl_b32 s{sT0}, s{sT0}, 10\ns_add_u32 s{sT0}, s{sT0}, {QX}")
            a(f"v_add_u32 v{10+t}, s{sT0}, v2")
            a(f"ds_read_b128 {vr(aQ+4*t,4)}, v{10+t}")
        Lne = self.lab("noep")
        a(f"s_or_b32 s{sT0}, s2, s{sWA}\ns_cmp_lg_u32 s{sT0}, 0\ns_cbranch_scc1 {Lne}")
        a(f"v_mov_b32 v9, s{sE}\nv_mov_b32 v3, 0\ns_mov_b32 s{sT0}, {FL}")
        a("s_mov_b64 exec, 1")
        a(f"buffer_store_dword v9, v3, {srd(R_WS)}, s{sT0} offen sc1")
        a("s_mov_b64 exec, -1")
        a(f"{Lne}:")
        for ctl in ("quad_perm:[1,0,3,2]", "quad_perm:[2,3,0,1]"):
            a(f"s_nop 1\nv_max_u32_dpp v8, v8, v8 {ctl} row_mask:0xf bank_mask:0xf")
        a("s_nop 1\nv_mov_b32_dpp v9, v8 row_half_mirror row_mask:0xf bank_mask:0xf")
        a("v_mul_f32 v8, v8, v9")
        a(f"v_cmp_nge_f32 vcc, {f2u(THRESH2):#x}, v8")
        if self.force_slow:
            a("s_branch L_a_slow")
        else:
            a("s_cbranch_vccnz L_a_slow")
        a(f"s_setprio {self.prioA}")
        a("s_waitcnt vmcnt(1) lgkmcnt(0)")
        if self.only == "G":
            a("s_branch L_a_merge")
        a(f"v_mfma_f32_32x32x16_bf16 {vr(aS[0],16)}, {vr(aK[0],4)}, {vr(aQ,4)}, 0")
        a(f"s_mov_b32 s{sCNT}, 8")
        a("s_nop 7\ns_nop 2")
        self.stamp(6)
        if self.ts:
            a(f"s_memtime s[82:83]\ns_waitcnt lgkmcnt(0)\ns_mov_b32 s{sTS+14}, s82")
        a(".p2align 3")
        a("L_a_loop:")
        if self.clk:
            a("s_memrealtime s[82:83]\ns_memtime s[0:1]\ns_waitcnt lgkmcnt(0)")
            a(f"v_mov_b32 v30, s82\nv_mov_b32 v31, s0\ns_lshl_b32 s{sT0}, s{sP}, 2\ns_add_u32 s{sT0}, s{sT0}, s{sWA}\ns_lshl_b32 s{sT0}, s{sT0}, 7\ns_lshl3_add_u32 s{sT0}, s{sCNT}, s{sT0}\ns_add_u32 s{sT0}, s{sT0}, {0xE00000}")
            a(f"v_mov_b32 v29, 0\ns_mov_b64 exec, 1\nbuffer_store_dwordx2 v[30:31], v29, {srd(R_WS)}, s{sT0} offen\ns_mov_b64 exec, -1")
        for kb in range(2):
            for t in range(8):
                cur, nxt = aS[t & 1], aS[(t + 1) & 1]
                e = [f"v_exp_f32 v{cur+i}, v{cur+i}" for i in range(16)]
                pt, pkb = (t - 1, kb) if t else (7, kb ^ 1)
                nt, nkb = (t + 1, kb) if t < 7 else (0, kb ^ 1)
                a(e[0]); a(e[1])
                a(f"v_smfmac_f32_32x32x32_bf16 {vr(aO+16*pt,16)}, {vr(aV[pkb]+4,4)}, {vr(nxt+8,8)}, v{self.aIDX}")
                a(e[2])
                if t == 0:
                    self.kv_load_v(kb ^ 1)
                a(e[3]); a(e[4])
                if t == 7:
                    a("s_waitcnt vmcnt(0)")
                a(f"v_mfma_f32_32x32x16_bf16 {vr(nxt,16)}, {vr(aK[nkb],4)}, {vr(aQ+4*nt,4)}, 0")
                a(e[5])
                if t == 7:
                    self.k_step()
                    self.kv_load_k(kb)
                for i in range(6, 10):
                    a(e[i])
                a(f"v_smfmac_f32_32x32x32_bf16 {vr(aO+16*t,16)}, {vr(aV[kb],4)}, {vr(cur,8)}, v{self.aIDX}")
                for i in range(10, 16):
                    a(e[i])
                    if kb == 1 and t == 7 and i == 12:
                        a(f"s_sub_u32 s{sCNT}, s{sCNT}, 1\ns_cmp_lg_u32 s{sCNT}, 0")
        a("s_cbranch_scc1 L_a_loop")
        a("s_nop 0")
        a(f"v_smfmac_f32_32x32x32_bf16 {vr(aO+16*7,16)}, {vr(aV[1]+4,4)}, {vr(aS[1]+8,8)}, v{self.aIDX}")
        a("L_a_merge:")
        self.stamp(7)
        if self.ts:
            a(f"s_memtime s[82:83]\ns_waitcnt lgkmcnt(0)\ns_sub_u32 s{sTS+14}, s82, s{sTS+14}")
        a(f"v_and_b32 v7, 3, v1\nv_lshlrev_b32 v7, 2, v7\nv_add_u32 v7, {LFL}, v7")
        self.spin_lds(7, 8, "v_cmp_gt_u32 vcc, 17, v8")
        self.stamp(9)
        a("v_lshlrev_b32 v9, 2, v1")
        for dt in range(1, 4):
            a(f"s_add_u32 s{sT0}, s{sWA}, {dt}\ns_and_b32 s{sT0}, s{sT0}, 3\ns_mul_i32 s{sT0}, s{sT0}, 13824\ns_add_u32 s{sT0}, s{sT0}, {RING + (dt-1)*4608}")
            a(f"v_add_u32 v10, s{sT0}, v2\nv_add_u32 v11, s{sT0}, v9")
            for hd in range(2):
                O = aO + 16 * (2 * dt + hd)
                a(f"ds_write_b128 v10, {vr(O,4)} offset:{hd*2304}")
                a(f"ds_write_b128 v10, {vr(O+4,4)} offset:{hd*2304+1024}")
                a(f"ds_write_b32 v11, v{O+8} offset:{hd*2304+2048}")
        a(f"s_lshl_b32 s{sT0}, s{sWA}, 2\ns_add_u32 s{sT0}, s{sT0}, {LFL+48}\nv_mov_b32 v12, s{sT0}\nv_mov_b32 v13, 1")
        a(f"s_mul_i32 s{sT0}, s{sWA}, 13824")
        if RING:
            a(f"s_add_u32 s{sT0}, s{sT0}, {RING}")
        a(f"v_add_u32 v10, s{sT0}, v2\nv_add_u32 v11, s{sT0}, v9\nv_add_u32 v7, 48, v7")
        a("s_waitcnt lgkmcnt(0)")
        a("ds_write_b32 v12, v13")
        self.stamp(10)
        self.spin_lds(7, 8, "v_cmp_gt_u32 vcc, 1, v8")
        self.stamp(11)
        T = 64
        for dt in range(3):
            for hd in range(2):
                b = T + 10 * (2 * dt + hd)
                off = dt * 4608 + hd * 2304
                a(f"ds_read_b128 {vr(b,4)}, v10 offset:{off}")
                a(f"ds_read_b128 {vr(b+4,4)}, v10 offset:{off+1024}")
                a(f"ds_read_b32 v{b+8}, v11 offset:{off+2048}")
            if dt:
                a("s_waitcnt lgkmcnt(6)")
                self.acc_add(T, dt - 1)
        a("s_waitcnt lgkmcnt(0)")
        self.acc_add(T, 2)
        a(f"s_lshl2_add_u32 s{sT0}, s{sG}, s{sWA}\ns_lshl_b32 s{sT0}, s{sT0}, 5\ns_lshl1_add_u32 s{sT0}, s{sJ}, s{sT0}\ns_lshl_b32 s{sT0}, s{sT0}, 10\ns_add_u32 s{sT0}, s{sT0}, {OF}")
        a(f"v_mov_b32 v14, v{aO+8}\nv_mov_b32 v15, v{aO+24}")
        a("s_nop 0")
        a(f"v_permlane32_swap_b32 v{aO+8}, v14")
        a(f"v_permlane32_swap_b32 v{aO+24}, v15")
        a(f"v_rcp_f32 v14, v{aO+8}\nv_rcp_f32 v16, v{aO+24}")
        a("s_nop 0")
        for hd in range(2):
            O = aO + 16 * hd
            for i in range(4):
                a(f"v_pk_mul_f32 {vr(O+2*i,2)}, {vr(O+2*i,2)}, {vr(14+2*hd,2)} op_sel_hi:[1,0]")
            for i in range(4):
                a(f"v_cvt_pk_bf16_f32 v{20+4*hd+i}, v{O+2*i}, v{O+2*i+1}")
            a(f"buffer_store_dwordx4 {vr(20+4*hd,4)}, v2, {srd(R_WS)}, s{sT0} offen offset:{1024*hd} sc1")
        a(f"s_lshl2_add_u32 s{sT0}, s{sP}, s{sWA}\ns_lshl_b32 s{sT0}, s{sT0}, 7\ns_add_u32 s{sT0}, s{sT0}, {FO}")
        a(f"v_mov_b32 v16, s{sE}\nv_mov_b32 v17, 0")
        self.stamp(12)
        a("s_waitcnt vmcnt(0)")
        a("s_mov_b64 exec, 1")
        a(f"buffer_store_dword v16, v17, {srd(R_WS)}, s{sT0} offen sc1")
        self.stamp(8)
        self.stamp_flush()
        a("s_endpgm")
        self.a_slow()

    def acc_add(self, T, dt):
        a = self.a
        for hd in range(2):
            b = T + 10 * (2 * dt + hd)
            O = self.aO + 16 * hd
            for i in range(4):
                a(f"v_pk_add_f32 {vr(O+2*i,2)}, {vr(O+2*i,2)}, {vr(b+2*i,2)}")
            a(f"v_add_f32 v{O+8}, v{O+8}, v{b+8}")

    def a_slow(self):
        a = self.a
        aK, aV, aS, aQ, aO = self.aK, self.aV, self.aS, self.aQ, self.aO
        a("L_a_slow:")
        a("s_waitcnt vmcnt(0) lgkmcnt(0)")
        S, C = aS[0], aS[1]
        M = 10
        for t in range(8):
            a(f"v_mov_b32 v{M+t}, 0xff800000")
        a(f"s_mov_b32 s{sK}, {KF}\ns_mov_b32 s{sCNT}, 64")
        a("L_slow_max:")
        self.kv_load_k(0)
        a("s_waitcnt vmcnt(0)")
        for t in range(8):
            a(f"v_mfma_f32_32x32x16_bf16 {vr(S,16)}, {vr(aK[0],4)}, {vr(aQ+4*t,4)}, 0")
            a("s_nop 7\ns_nop 3")
            for i in range(8):
                a(f"v_max3_f32 v{M+t}, v{S+2*i}, v{S+2*i+1}, v{M+t}")
        a(f"s_add_u32 s{sK}, s{sK}, 1024\ns_sub_u32 s{sCNT}, s{sCNT}, 1\ns_cmp_lg_u32 s{sCNT}, 0")
        a("s_cbranch_scc1 L_slow_max")
        for t in range(8):
            a(f"v_mov_b32 v9, v{M+t}\ns_nop 1\nv_permlane32_swap_b32 v{M+t}, v9\nv_max_f32 v{M+t}, v{M+t}, v9")
        a(f"s_lshl_b32 s{sK}, s{sWA}, 14\ns_add_u32 s{sK}, s{sK}, {KF}\ns_mov_b32 s{sCNT}, 16")
        a("L_slow_pv:")
        self.kv_load_k(0)
        self.kv_load_v(0)
        a("s_waitcnt vmcnt(0)")
        for t in range(8):
            a(f"v_mfma_f32_32x32x16_bf16 {vr(S,16)}, {vr(aK[0],4)}, {vr(aQ+4*t,4)}, 0")
            a("s_nop 7\ns_nop 3")
            for i in range(16):
                a(f"v_sub_f32 v{S+i}, v{S+i}, v{M+t}")
            for i in range(16):
                a(f"v_exp_f32 v{S+i}, v{S+i}")
            a("s_nop 1")
            for u in range(2):
                a(f"v_smfmac_f32_32x32x32_bf16 {vr(aO+16*t,16)}, {vr(aV[0]+4*u,4)}, {vr(S+8*u,8)}, v{self.aIDX}")
        a(f"s_add_u32 s{sK}, s{sK}, 1024\ns_sub_u32 s{sCNT}, s{sCNT}, 1\ns_cmp_lg_u32 s{sCNT}, 0")
        a("s_cbranch_scc1 L_slow_pv")
        a("s_branch L_a_merge")

    def build(self):
        a = self.a
        if self.only == "A":
            self.prioA = 1
        self.prologue()
        self.g_early()
        self.g_main()
        self.a_main()
        a("L_end:")
        a("s_endpgm")
        a("L_code_end:")
        return a

HEADER = """; Fused LayerNorm + MQA attention + SwiGLU FFN, one persistent launch (256 workgroups x 8 waves).
; @launch grid=(256,1,1) block=(512,1,1) lds={lds}
.amdgcn_target "amdgcn-amd-amdhsa--gfx950"
.text
.globl {name}
.p2align 8
.type {name},@function
{name}:
"""
FOOTER = """.section .rodata,"a"
.p2align 6
.amdhsa_kernel {name}
  .amdhsa_next_free_vgpr 256
  .amdhsa_next_free_sgpr 102
  .amdhsa_accum_offset 256
  .amdhsa_group_segment_fixed_size 0
  .amdhsa_kernarg_size 96
  .amdhsa_user_sgpr_count 2
  .amdhsa_user_sgpr_kernarg_segment_ptr 1
  .amdhsa_system_sgpr_workgroup_id_x 1
.end_amdhsa_kernel
"""

def generate(check=True, **kw):
    g = Gen(**kw)
    a = g.build()
    if check:
        errs = check_hazards(a.lines) + check_waits(a.lines)
        for e in errs:
            print(e, file=sys.stderr)
        if errs:
            print(f"{len(errs)} problems", file=sys.stderr)
    return HEADER.format(name=NAME, lds=LDS_SIZE) + a.text() + FOOTER.format(name=NAME)

if __name__ == "__main__":
    ap = argparse.ArgumentParser()
    ap.add_argument("-o", default="parallel_sum__grouped_kv_mqa__glu_gated_swiglu__prompt.s")
    ap.add_argument("--ts", action="store_true")
    ap.add_argument("--slow", action="store_true")
    ap.add_argument("--prioA", type=int, default=1)
    ap.add_argument("--prioG", type=int, default=0)
    ap.add_argument("--nopf", action="store_true")
    ap.add_argument("--prioGhi", type=int, default=2)
    ap.add_argument("--early", type=int, default=0)
    ap.add_argument("--only", default="")
    ap.add_argument("--tlb", type=int, default=0)
    ap.add_argument("--clk", action="store_true")
    ap.add_argument("--rot", type=int, default=1)
    ap.add_argument("--psleep", type=int, default=0)
    ap.add_argument("--asleep", type=int, default=0)
    ap.add_argument("--gate", type=int, default=0)
    ap.add_argument("--xnt", default="nt")
    ap.add_argument("--wnt", default="")
    ap.add_argument("--wq", default="early")
    ap.add_argument("--ring", default="afterx")
    args = ap.parse_args()
    txt = generate(ts=args.ts, force_slow=args.slow, prioA=args.prioA, prioG=args.prioG, code_pf=not args.nopf, prioGhi=args.prioGhi, early=args.early, only=args.only, tlb=args.tlb, clk=args.clk, rot=args.rot, psleep=args.psleep, gate=args.gate, asleep=args.asleep, wq_at=args.wq, ring_at=args.ring, xnt=args.xnt, wnt=args.wnt)
    open(args.o, "w").write(txt)
    print("wrote", args.o, len(txt), "bytes")
```

```python
import re

class Asm:
    def __init__(self):
        self.lines = []
    def __call__(self, s):
        for ln in s.split("\n"):
            ln = ln.strip()
            if ln:
                self.lines.append(ln)
    def text(self):
        out = []
        for ln in self.lines:
            if ln.endswith(":") or ln.startswith("."):
                out.append(ln)
            else:
                out.append("    " + ln)
        return "\n".join(out) + "\n"

class Vm:
    def __init__(self, a):
        self.a = a
        self.q = []
    def issue(self, tag):
        self.q.append(tag)
    def need(self, tag):
        idx = None
        for i, t in enumerate(self.q):
            if t == tag:
                idx = i
        if idx is None:
            return None
        n = len(self.q) - 1 - idx
        return n
    def wait(self, tag, extra=""):
        n = self.need(tag)
        if n is None:
            if extra:
                self.a(f"s_waitcnt {extra}")
            return
        assert n <= 63, (tag, n)
        self.a(f"s_waitcnt vmcnt({n}) {extra}".strip())
        self.q = self.q[len(self.q) - n:] if n else []
    def drain(self):
        self.a("s_waitcnt vmcnt(0)")
        self.q = []

class Lg(Vm):
    def cnt(self, tag):
        n = self.need(tag)
        if n is None:
            return None
        assert n <= 15, (tag, n)
        self.q = self.q[len(self.q) - n:] if n else []
        return n

def waitcnt(a, vm=None, vtag=None, lg=None, ltag=None):
    parts = []
    if vm is not None:
        n = vm.need(vtag)
        if n is not None:
            assert n <= 63
            vm.q = vm.q[len(vm.q) - n:] if n else []
            parts.append(f"vmcnt({n})")
    if lg is not None:
        n = lg.cnt(ltag)
        if n is not None:
            parts.append(f"lgkmcnt({n})")
    if parts:
        a("s_waitcnt " + " ".join(parts))

REG_RE = re.compile(r"^(-?)(\|?)([vsa])(\d+)(\|?)$")
RNG_RE = re.compile(r"^(-?)([vsa])\[(\d+):(\d+)\]$")
def regs_of(op):
    op = op.strip()
    if op.startswith("abs(") and op.endswith(")"):
        op = op[4:-1]
    m = REG_RE.match(op)
    if m:
        return [(m.group(3), int(m.group(4)))]
    m = RNG_RE.match(op)
    if m:
        return [(m.group(2), i) for i in range(int(m.group(3)), int(m.group(4)) + 1)]
    if op == "vcc":
        return [("s", "vcc")]
    if op in ("exec", "exec_lo", "exec_hi"):
        return [("s", "exec")]
    if op == "m0":
        return [("s", "m0")]
    return []

TRANS = ("v_exp_f32", "v_log_f32", "v_rcp_f32", "v_rsq_f32", "v_sqrt_f32", "v_sin_f32", "v_cos_f32")
class Ins:
    def __init__(self, text, idx):
        self.text = text; self.idx = idx
        t = text.split(";")[0].strip()
        self.label = None
        if t.endswith(":"):
            self.label = t[:-1]; self.op = None; return
        if t.startswith("."):
            self.op = None; return
        parts = t.split(None, 1)
        self.op = parts[0]
        rest = parts[1] if len(parts) > 1 else ""
        ops = []; depth = 0; cur = ""
        for ch in rest:
            if ch == "[": depth += 1
            if ch == "]": depth -= 1
            if ch == "," and depth == 0:
                ops.append(cur.strip()); cur = ""
            else:
                cur += ch
        if cur.strip(): ops.append(cur.strip())
        mods = ""
        if ops:
            last = ops[-1].split()
            if len(last) > 1:
                ops[-1] = last[0]; mods = " ".join(last[1:])
        self.ops = ops; self.mods = mods
        op = self.op
        self.w = []; self.r = []
        self.cls = "other"
        self.states = 1
        self.mfma_pass = 0; self.srcC = []; self.srcAB = []
        self.vm = False; self.lgkm = False; self.ld_dst = []; self.st_data = []; self.dma = False
        R = regs_of
        if op == "s_nop":
            self.states = int(ops[0]) + 1; self.cls = "salu"
        elif op.startswith("v_mfma") or op.startswith("v_smfmac"):
            self.cls = "mfma"
            self.mfma_pass = 8 if "32x32" in op else 4
            self.w = R(ops[0])
            self.srcAB = R(ops[1]) + R(ops[2])
            if op.startswith("v_smfmac"):
                self.srcAB += R(ops[3]); self.srcC = R(ops[0])
            else:
                self.srcC = R(ops[3])
            self.r = self.srcAB + self.srcC
        elif op.startswith("v_cmp"):
            self.cls = "valu"; self.w = R(ops[0]); self.r = sum((R(o) for o in ops[1:]), [])
        elif op.startswith("v_permlane") and "swap" in op:
            self.cls = "valu"; self.w = R(ops[0]) + R(ops[1]); self.r = list(self.w)
        elif op.startswith("v_"):
            self.cls = "valu"; self.w = R(ops[0]); self.r = sum((R(o) for o in ops[1:]), [])
            if op.startswith(("v_fmac", "v_dot2c")) or "_dpp" in op:
                self.r += R(ops[0])
            if op.startswith("v_cndmask") and len(ops) == 3:
                self.r += [("s", "vcc")]
        elif op.startswith("ds_read"):
            self.cls = "ds"; self.lgkm = True; self.ld_dst = R(ops[0]); self.r = R(ops[1])
        elif op.startswith("ds_write") or op.startswith("ds_add"):
            self.cls = "ds"; self.lgkm = True; self.r = sum((R(o) for o in ops), [])
        elif op.startswith("buffer_load"):
            self.cls = "vmem"; self.vm = True
            if "lds" in mods.split():
                self.dma = True; self.r = sum((R(o) for o in ops), []) + [("s", "m0")]
            else:
                self.ld_dst = R(ops[0]); self.r = sum((R(o) for o in ops[1:]), [])
        elif op.startswith("buffer_store"):
            self.cls = "vmem"; self.vm = True; self.r = sum((R(o) for o in ops), [])
            if "x4" in op or "x3" in op: self.st_data = R(ops[0])
        elif op.startswith("global_load"):
            self.cls = "vmem"; self.vm = True; self.ld_dst = R(ops[0]); self.r = sum((R(o) for o in ops[1:]), [])
        elif op.startswith("global_store"):
            self.cls = "vmem"; self.vm = True; self.r = sum((R(o) for o in ops), [])
            if "x4" in op or "x3" in op: self.st_data = R(ops[1])
        elif op.startswith("s_load") or op.startswith("s_mem"):
            self.cls = "smem"; self.lgkm = True; self.ld_dst = R(ops[0]); self.r = sum((R(o) for o in ops[1:]), [])
        elif op in ("s_waitcnt", "s_barrier", "s_setprio", "s_endpgm", "s_branch", "s_sleep") or op.startswith("s_cbranch"):
            self.cls = "ctl"
            if op == "s_cbranch_vccnz" or op == "s_cbranch_vccz": self.r = [("s", "vcc")]
        elif op.startswith("s_cmp"):
            self.cls = "salu"; self.r = sum((R(o) for o in ops), [])
        elif op.startswith("s_"):
            self.cls = "salu"; self.w = R(ops[0]); self.r = sum((R(o) for o in ops[1:]), [])
        else:
            raise ValueError("unknown op " + text)

def parse(lines):
    ins = [Ins(t, i) for i, t in enumerate(lines)]
    labels = {x.label: i for i, x in enumerate(ins) if x.label}
    return ins, labels

def succ(ins, labels, i):
    x = ins[i]
    if x.op is None:
        return [i + 1] if i + 1 < len(ins) else []
    if x.op == "s_endpgm": return []
    if x.op == "s_branch": return [labels[x.ops[0]]]
    if x.op.startswith("s_cbranch"): return [i + 1, labels[x.ops[0]]]
    return [i + 1] if i + 1 < len(ins) else []

def required(p, c):
    need = 0; why = ""
    def upd(n, w):
        nonlocal need, why
        if n > need: need, why = n, w
    pw = set(p.w)
    pwv = {x for x in pw if x[0] == "v"}
    pws = {x for x in pw if x[0] == "s"}
    if p.cls == "valu":
        if c.cls == "mfma" and pwv & set(c.r): upd(2, "valu->mfma")
        if c.cls == "valu":
            if p.op.replace("_e32", "").replace("_e64", "") in TRANS and c.op.replace("_e32", "") not in TRANS and pwv & set(c.r): upd(1, "trans->valu")
            if c.op.startswith(("v_readfirstlane", "v_readlane")) and pwv & set(c.r): upd(1, "valu->readlane")
            if c.op.startswith("v_permlane") and pwv & set(c.r): upd(2, "valu->permlane")
            if "_dpp" in c.op and pwv & set(c.r): upd(2, "valu->dpp")
            if pws & set(c.r): upd(2, "valu sgpr->valu")
        if c.cls == "vmem" and pws & set(c.r): upd(5, "valu sgpr->vmem")
    if p.cls == "mfma":
        n_valu = 12 if p.mfma_pass == 8 else 8
        n_c = 10 if p.mfma_pass == 8 else 6
        if c.cls == "valu" and pw & (set(c.r) | set(c.w)): upd(n_valu, "mfma->valu")
        if c.cls in ("vmem", "ds") and pw & (set(c.r) | set(c.ld_dst)): upd(n_valu, "mfma->mem")
        if c.cls == "mfma":
            if pw & set(c.srcAB): upd(n_valu, "mfma->mfma AB")
            if pw & set(c.srcC):
                if not (set(c.srcC) == pw and c.mfma_pass == p.mfma_pass): upd(n_c, "mfma->mfma C overlap")
        if c.cls == "valu" and set(p.srcC) & set(c.w): upd(7 if p.mfma_pass == 8 else 3, "mfma C WAR")
    if p.cls == "salu" and ("s", "m0") in pw and c.op is not None and c.dma: upd(1, "m0->dma")
    if p.st_data:
        if c.cls == "valu" and set(p.st_data) & set(c.w): upd(2, "store data WAR valu")
        elif set(p.st_data) & (set(c.w) | set(c.ld_dst)): upd(1, "store data WAR")
    return need, why

def check_hazards(lines):
    ins, labels = parse(lines)
    errs = []
    for i, p in enumerate(ins):
        if p.op is None or p.cls in ("ctl", "smem", "other"): continue
        if p.cls == "salu" and ("s", "m0") not in p.w: continue
        if p.cls in ("vmem", "ds") and not p.st_data: continue
        seen = {}
        stack = [(j, 0) for j in succ(ins, labels, i)]
        while stack:
            j, d = stack.pop()
            if d >= 12: continue
            if j in seen and seen[j] <= d: continue
            seen[j] = d
            c = ins[j]
            if c.op is not None:
                need, why = required(p, c)
                if need > d:
                    errs.append(f"HAZARD {why}: need {need} have {d}: [{i}] {p.text}  ->  [{j}] {c.text}")
                nd = d + c.states
            else:
                nd = d
            for k in succ(ins, labels, j):
                stack.append((k, nd))
    return errs

WAIT_RE = re.compile(r"(vmcnt|lgkmcnt)\((\d+)\)")
def check_waits(lines, max_states=400000):
    ins, labels = parse(lines)
    errs = set()
    seen = set()
    stack = [(0, (), (), frozenset())]
    n = 0
    while stack:
        i, vq, lq, back = stack.pop()
        while True:
            n += 1
            if n > max_states * 50:
                errs.add("check_waits: too many states"); return sorted(errs)
            x = ins[i]
            if x.label:
                key = (i, vq, lq)
                if key in seen: break
                seen.add(key)
            if x.op is not None:
                touched = set(x.r) | set(x.w) | set(x.ld_dst)
                for q, nm in ((vq, "vm"), (lq, "lgkm")):
                    for (dst, src) in q:
                        if dst & touched:
                            if not (dst & (set(x.r) | set(x.w))) and nm == ("vm" if x.vm else "lgkm"):
                                continue
                            errs.add(f"WAIT {nm}: [{src}] {ins[src].text} still in flight at [{i}] {x.text}")
                if x.op == "s_waitcnt":
                    for m in WAIT_RE.finditer(x.text):
                        c = int(m.group(2))
                        if m.group(1) == "vmcnt": vq = vq[len(vq) - c:] if c and len(vq) > c else (vq if c else ())
                        else:
                            if any(ins[s].cls == "smem" for _, s in lq) and c != 0:
                                pass
                            else:
                                lq = lq[len(lq) - c:] if c and len(lq) > c else (lq if c else ())
                if x.vm: vq = (vq + ((frozenset(x.ld_dst), i),))[-64:]
                if x.lgkm: lq = (lq + ((frozenset(x.ld_dst), i),))[-40:]
            ss = succ(ins, labels, i)
            if not ss: break
            for k in ss[1:]:
                stack.append((k, vq, lq, back))
            i = ss[0]
    return sorted(errs)
```

```python
import sys, struct, argparse
from asmlib import Asm, Vm, Lg, waitcnt, check_hazards, check_waits

NAME = "parallel_sum__grouped_kv_mqa__glu_gated_swiglu__prompt_kernel"

def f2u(x):
    return struct.unpack("<I", struct.pack("<f", x))[0]

FL = 0x0
F0 = 0x1000
FX = 0x50000
FH = 0x10000
FO = 0x30000
TS = 0x60000
XN = 0x100000
KF = 0x300000
VF = 0x310000
OF = 0x400000
HF = 0x600000
WS_SIZE = 0x1000000
RING = 0
WQI = 65536
WKV = 98304
XROW = 131072
PITCH = 1040
QX = 140288
LFL = 148480
LDS_SIZE = 163840
RB0 = 65536

R_X, R_WS, R_WQ, R_WK, R_WV, R_W1, R_W3, R_W2, R_WO, R_OUT = [4 * i + 4 for i in range(10)]
sW, sG, sJ, sP, sE = 44, 45, 46, 47, 48
sMASK = 49
sT0, sT1, sT2, sT3, sT4, sT5 = 50, 51, 52, 53, 54, 55
sCNT = 56
sX8, sI = 57, 58
sXM = 60
sNL2 = 62
sONE = 64
sQS = 66
sBASE, sW4096 = 68, 69
sH0, sH1, sO0, sO1 = 70, 71, 72, 73
sW2, sWO, sRB, sOUT = 74, 75, 76, 77
sK = 78
sWA = 79
sPC = 80
sTS = 84
sROT, sIDX, sKB, sRD = 59, 3, 100, 101

def srd(r):
    return f"s[{r}:{r+3}]"
def vr(a, n):
    return f"v[{a}:{a+n-1}]" if n > 1 else f"v{a}"

LOG2E = 1.4426950408889634
THRESH2 = 60.0 * 60.0
SPIN_G = 4000
SPIN_L = 400000


class Gen:
    def __init__(self, ts=False, force_slow=False, prioA=1, prioG=0, prioGhi=2, code_pf=True, l2pf=False, early=0, only='', tlb=0, clk=False, rot=1, psleep=0, gate=0, asleep=0, wq_at='early', ring_at='afterx', xnt='nt', wnt='', n0=-1, gtrace=False, nodma=False, rotup=0, pf0=0, amap=8, ptouch=0, dbg=False):
        self.a = Asm()
        self.ts = ts
        self.nts = 0
        self.force_slow = force_slow
        self.prioA, self.prioG, self.prioGhi = prioA, prioG, prioGhi
        self.early = early
        self.only = only
        self.tlb = tlb
        self.clk = clk
        self.rot = rot
        self.n0 = n0
        self.dbg = dbg
        self.amap = amap
        self.ptouch = ptouch
        self.rotup = rotup
        self.pf0 = pf0
        self.nodma = nodma
        self.gtrace = gtrace
        self.xnt, self.wnt = xnt, wnt
        self.wq_at, self.ring_at = wq_at, ring_at
        self.psleep = psleep
        self.gate = gate
        self.asleep = asleep
        self.code_pf = code_pf
        self.l2pf = l2pf
        self.uid = 0

    def lab(self, s):
        self.uid += 1
        return f"L_{s}_{self.uid}"

    def stamp(self, i):
        if self.ts:
            self.a(f"s_memrealtime s[82:83]\ns_waitcnt lgkmcnt(0)\ns_mov_b32 s{sTS+i}, s82")

    def stamp_flush(self):
        if not self.ts:
            return
        a = self.a
        if self.dbg:
            L = self.lab("dbg")
            a(f"s_lshl_b32 s{sT0}, s2, 3\ns_add_u32 s{sT0}, s{sT0}, s{sW}\ns_cmp_lg_u32 s{sT0}, {100*8}\ns_cbranch_scc1 {L}")
            a(f"s_load_dwordx2 s[{sXM}:{sXM+1}], s[0:1], 80\ns_waitcnt lgkmcnt(0)")
            a("s_mov_b64 exec, 1\nv_mov_b32 v2, 0")
            for i in range(14):
                a(f"s_sub_u32 s{sT1}, s{sTS+i}, s{sTS}\nv_mov_b32 v3, s{sT1}\nglobal_store_dword v2, v3, s[{sXM}:{sXM+1}] offset:{4*i}")
            a(f"{L}:")
        a(f"s_lshl_b32 s{sT0}, s{sP}, 3\ns_add_u32 s{sT0}, s{sT0}, s{sW}\ns_lshl_b32 s{sT0}, s{sT0}, 6\ns_add_u32 s{sT0}, s{sT0}, {TS}")
        a("s_mov_b64 exec, 1")
        a("v_mov_b32 v2, 0")
        for i in range(16):
            a(f"v_mov_b32 v3, s{sTS+i}")
            a(f"buffer_store_dword v3, v2, {srd(R_WS)}, s{sT0} offen offset:{4*i}")
        a("s_waitcnt vmcnt(0)")

    def reduce64(self, op, v, t):
        a = self.a
        for ctl in ("quad_perm:[1,0,3,2]", "quad_perm:[2,3,0,1]", "row_half_mirror", "row_mirror"):
            a("s_nop 1")
            a(f"{op}_dpp v{v}, v{v}, v{v} {ctl} row_mask:0xf bank_mask:0xf")
        for sw in ("v_permlane16_swap_b32", "v_permlane32_swap_b32"):
            a(f"v_mov_b32 v{t}, v{v}")
            a("s_nop 1")
            a(f"{sw} v{v}, v{t}")
            a(f"{op} v{v}, v{v}, v{t}")

    def poll_global(self, vaddr, soff, vdst, ndw, vm, lanes=64, sleep=None):
        a = self.a
        sleep = self.psleep if sleep is None else sleep
        L, Lo, Lc = self.lab("poll"), self.lab("pollx"), self.lab("pollc")
        ld = "buffer_load_dword" if ndw == 1 else "buffer_load_dwordx2"
        a(f"s_mov_b32 s{sCNT}, 0")
        if lanes < 64:
            a(f"s_mov_b64 exec, {(1 << lanes) - 1:#x}")
        if sleep:
            a(f"s_branch {Lc}")
        a(f"{L}:")
        if sleep:
            a(f"s_sleep {sleep}")
            a(f"{Lc}:")
        a(f"{ld} {vr(vdst, ndw)}, v{vaddr}, {srd(R_WS)}, {soff} offen sc1")
        a(f"s_add_u32 s{sCNT}, s{sCNT}, 1")
        a("s_waitcnt vmcnt(0)")
        a(f"v_cmp_ne_u32 vcc, s{sE}, v{vdst}")
        a(f"s_cmp_gt_u32 s{sCNT}, {SPIN_G}")
        a(f"s_cbranch_scc1 {Lo}")
        a(f"s_cbranch_vccnz {L}")
        a(f"{Lo}:")
        if lanes < 64:
            a("s_mov_b64 exec, -1")
        vm.q = []

    def spin_lds(self, vaddr, vdst, cmp, first_issued=False, sleep=0):
        a = self.a
        L, Lo, Lc = self.lab("spin"), self.lab("spinx"), self.lab("spinc")
        a(f"s_mov_b32 s{sCNT}, 0")
        if first_issued:
            a(f"s_branch {Lc}")
        a(f"{L}:")
        if sleep:
            a(f"s_sleep {sleep}")
        a(f"ds_read_b32 v{vdst}, v{vaddr}")
        a(f"{Lc}:")
        a(f"s_add_u32 s{sCNT}, s{sCNT}, 1")
        a("s_waitcnt lgkmcnt(0)")
        a(cmp)
        a(f"s_cmp_gt_u32 s{sCNT}, {SPIN_L}")
        a(f"s_cbranch_scc1 {Lo}")
        a(f"s_cbranch_vccnz {L}")
        a(f"{Lo}:")

    def prologue(self):
        a = self.a
        a("s_cmp_ge_u32 s2, 256")
        a("s_cbranch_scc1 L_end")
        if self.ts:
            a("s_memrealtime s[82:83]")
        for r, off in ((R_X, 0), (R_WK, 16), (R_WV, 24), (R_WQ, 8), (R_W1, 48), (R_W3, 56), (R_WS, 88), (R_W2, 64), (R_WO, 32), (R_OUT, 72)):
            a(f"s_load_dwordx2 s[{r}:{r+1}], s[0:1], {off}")
        a(f"s_getpc_b64 s[{sPC}:{sPC+1}]")
        a("L_pc:")
        a("v_lshrrev_b32 v3, 6, v0")
        a("v_and_b32 v1, 63, v0")
        a(f"v_readfirstlane_b32 s{sW}, v3")
        a("v_lshlrev_b32 v2, 4, v1")
        a("v_mov_b32 v4, 0\nv_mov_b32 v5, 0\nv_mov_b32 v6, 0")
        a(f"s_and_b32 s{sX8}, s2, 7\ns_lshr_b32 s{sI}, s2, 3")
        if self.amap == 8:
            a(f"s_and_b32 s{sT0}, s{sX8}, 1\ns_and_b32 s{sT1}, s{sI}, 7\ns_lshl3_add_u32 s{sG}, s{sT0}, s{sT1}")
            a(f"s_lshr_b32 s{sT0}, s{sX8}, 1\ns_lshr_b32 s{sT1}, s{sI}, 3\ns_lshl2_add_u32 s{sJ}, s{sT0}, s{sT1}")
        elif self.amap == 4:
            a(f"s_and_b32 s{sT0}, s{sX8}, 3\ns_and_b32 s{sT1}, s{sI}, 3\ns_lshl2_add_u32 s{sG}, s{sT0}, s{sT1}")
            a(f"s_lshr_b32 s{sT0}, s{sX8}, 2\ns_lshr_b32 s{sT1}, s{sI}, 2\ns_lshl3_add_u32 s{sJ}, s{sT0}, s{sT1}")
        else:
            a(f"s_lshr_b32 s{sT1}, s{sI}, 4\ns_lshl1_add_u32 s{sG}, s{sX8}, s{sT1}\ns_and_b32 s{sJ}, s{sI}, 15")
        a(f"s_lshl4_add_u32 s{sP}, s{sG}, s{sJ}")
        if self.rotup:
            a(f"s_lshl1_add_u32 s{sROT}, s{sJ}, s{sG}\ns_and_b32 s{sROT}, s{sROT}, {self.rotup}")
        else:
            a(f"s_mov_b32 s{sROT}, 0")
        for r, size in ((R_X, 2097152), (R_WK, 16384), (R_WV, 16384), (R_WQ, 524288), (R_W1, 1835008), (R_W3, 1835008),
                        (R_WS, WS_SIZE), (R_W2, 1835008), (R_WO, 524288), (R_OUT, 2097152)):
            a(f"s_mov_b32 s{r+2}, {size}\ns_mov_b32 s{r+3}, 0x20000")
        a(f"s_lshl3_add_u32 s{sT0}, s{sP}, s{sW}\ns_lshl_b32 s{sT0}, s{sT0}, 10")
        a(f"s_mov_b32 s{sMASK}, 0xffff0000")
        a("s_waitcnt lgkmcnt(0)")
        if self.ts:
            a(f"s_mov_b32 s{sTS}, s82")
            for i in range(1, 16):
                a(f"s_mov_b32 s{sTS+i}, 0")
        a(f"buffer_load_dwordx4 v[8:11], v2, {srd(R_X)}, s{sT0} offen {self.xnt}")
        a(f"s_load_dword s{sE}, s[{R_WS}:{R_WS+1}], {FL}")
        a(f"s_cmp_lt_u32 s{sW}, 4")
        a("s_cbranch_scc1 L_g_dma")
        a(f"s_sub_u32 s{sWA}, s{sW}, 4")
        a(f"s_lshl_b32 s{sT0}, s{sWA}, 12")
        a(f"s_add_u32 m0, s{sT0}, {WKV}")
        a("s_nop 0")
        for n in range(4):
            a(f"buffer_load_dwordx4 v2, {srd(R_WK)}, s{sT0} offen offset:{1024*n} lds")
        a(f"s_add_u32 m0, s{sT0}, {WKV+16384}")
        a("s_nop 0")
        for n in range(4):
            a(f"buffer_load_dwordx4 v2, {srd(R_WV)}, s{sT0} offen offset:{1024*n} lds")
        a("s_waitcnt vmcnt(8)")
        a("L_ln:")
        self.stamp(1)
        for i in range(4):
            a(f"v_lshlrev_b32 v{12+2*i}, 16, v{8+i}")
            a(f"v_and_b32 v{13+2*i}, s{sMASK}, v{8+i}")
        a("v_add_f32 v20, v12, v13\nv_add_f32 v21, v14, v15\nv_add_f32 v22, v16, v17\nv_add_f32 v23, v18, v19")
        a("v_add_f32 v20, v20, v21\nv_add_f32 v22, v22, v23\nv_add_f32 v20, v20, v22")
        self.reduce64("v_add_f32", 20, 21)
        a(f"v_mul_f32 v20, {f2u(1/512):#x}, v20")
        for i in range(8):
            a(f"v_sub_f32 v{24+i}, v{12+i}, v20")
        a("v_mul_f32 v21, v24, v24\nv_mul_f32 v22, v25, v25")
        for i in range(2, 8):
            a(f"v_fmac_f32 v{21+(i&1)}, v{24+i}, v{24+i}")
        a("v_add_f32 v21, v21, v22")
        self.reduce64("v_add_f32", 21, 22)
        a(f"v_mul_f32 v21, {f2u(1/512):#x}, v21")
        a("v_cvt_pk_bf16_f32 v22, v20, v21")
        a("v_lshlrev_b32 v23, 16, v22")
        a(f"v_and_b32 v22, s{sMASK}, v22")
        a(f"v_add_f32 v22, {f2u(1e-5):#x}, v22")
        for i in range(8):
            a(f"v_sub_f32 v{12+i}, v{12+i}, v23")
        a("v_cvt_pk_bf16_f32 v22, v22, v22")
        a("v_lshlrev_b32 v22, 16, v22")
        a("v_sqrt_f32 v22, v22")
        for i in range(4):
            a(f"v_cvt_pk_bf16_f32 v{8+i}, v{12+2*i}, v{13+2*i}")
        a("v_cvt_pk_bf16_f32 v22, v22, v22")
        a("v_lshlrev_b32 v22, 16, v22")
        a("v_rcp_f32 v22, v22")
        for i in range(4):
            a(f"v_lshlrev_b32 v{12+2*i}, 16, v{8+i}")
            a(f"v_and_b32 v{13+2*i}, s{sMASK}, v{8+i}")
        for i in range(8):
            a(f"v_mul_f32 v{12+i}, v{12+i}, v22")
        a(f"s_mul_i32 s{sT0}, s{sW}, {PITCH}\ns_add_u32 s{sT0}, s{sT0}, {XROW}")
        for i in range(4):
            a(f"v_cvt_pk_bf16_f32 v{8+i}, v{12+2*i}, v{13+2*i}")
        a(f"v_add_u32 v32, s{sT0}, v2")
        a("ds_write_b128 v32, v[8:11]")
        a("v_and_b32 v33, 31, v1")
        a("v_add_u32 v34, -4, v33")
        a("v_cmp_gt_u32 vcc, 8, v34")
        a(f"v_lshlrev_b32 v33, 2, v33\nv_add_u32 v33, {LFL}, v33")
        a("v_cndmask_b32 v34, 0, -1, vcc")
        a("ds_write_b32 v33, v34")
        a("s_waitcnt lgkmcnt(0)")
        a(f"s_mul_i32 s{sE}, s{sE}, 0x9E3779B1\ns_add_u32 s{sE}, s{sE}, 0x7F4A7C15")
        a(f"s_cmp_lt_u32 s{sW}, 4")
        a("s_cbranch_scc1 L_g_bar1")
        a("s_waitcnt vmcnt(0)")
        a("s_barrier")
        self.stamp(2)
        a(f"s_cmp_ge_u32 s{sW}, 6")
        a("s_cbranch_scc1 L_xn_store")
        self.kv_proj()
        a("L_xn_store:")
        self.xn_store()
        a(f"s_lshl1_add_u32 s{sT0}, s{sP}, s{sW}\ns_sub_u32 s{sT0}, s{sT0}, 6\ns_lshl_b32 s{sT0}, s{sT0}, 7\ns_add_u32 s{sT0}, s{sT0}, {FX}")
        a(f"v_mov_b32 v4, s{sE}\nv_mov_b32 v3, 0")
        a("s_waitcnt vmcnt(0)")
        self.stamp(3)
        a("s_mov_b64 exec, 1")
        a(f"buffer_store_dword v4, v3, {srd(R_WS)}, s{sT0} offen sc1")
        a("s_mov_b64 exec, -1")
        if self.ptouch & 1:
            a(f"v_lshlrev_b32 v3, 9, v1\ns_mov_b64 exec, 0xffffffff")
            a(f"buffer_load_dword v9, v3, {srd(R_WS)}, s{sT5} offen sc1")
            a("s_mov_b64 exec, -1")
        a("s_branch L_a_main")

    def kv_proj(self):
        a = self.a
        a("v_and_b32 v3, 7, v1\nv_lshrrev_b32 v5, 4, v1")
        a(f"v_mul_u32_u24 v3, {PITCH}, v3\nv_lshl_add_u32 v3, v5, 4, v3\nv_add_u32 v3, {XROW}, v3")
        a("v_and_b32 v4, 15, v1\nv_lshlrev_b32 v4, 3, v4")
        a("v_lshl_add_u32 v4, v5, 8, v4")
        a(f"s_lshl_b32 s{sT0}, s{sWA}, 14\ns_add_u32 s{sT0}, s{sT0}, {WKV}")
        a(f"v_add_u32 v4, s{sT0}, v4")
        NB = 5
        def rd(s):
            b = 64 + 8 * (s % NB)
            a(f"ds_read_b128 {vr(b,4)}, v3 offset:{64*s}")
            a(f"ds_read_b64_tr_b16 {vr(b+4,2)}, v4 offset:{1024*s}")
            a(f"ds_read_b64_tr_b16 {vr(b+6,2)}, v4 offset:{1024*s+128}")
        for s in range(NB):
            rd(s)
        a(f"s_cmp_eq_u32 s{sW}, 5")
        a("s_cbranch_scc1 L_vproj")
        for var in ("K", "V"):
            if var == "V":
                a("L_vproj:")
            for s in range(16):
                left = min(NB - 1, 15 - s)
                a(f"s_waitcnt lgkmcnt({3*left})")
                b = 64 + 8 * (s % NB)
                X, Wf = vr(b, 4), vr(b + 4, 4)
                c = "0" if s == 0 else "v[112:115]"
                if var == "K":
                    a(f"v_mfma_f32_16x16x32_bf16 v[112:115], {Wf}, {X}, {c}")
                else:
                    a(f"v_mfma_f32_16x16x32_bf16 v[112:115], {X}, {Wf}, {c}")
                if s + NB < 16:
                    rd(s + NB)
            a(f"s_lshr_b32 s{sT0}, s{sP}, 2\ns_lshl_b32 s{sT0}, s{sT0}, 10\ns_and_b32 s{sT1}, s{sJ}, 3")
            if var == "K":
                a(f"s_lshl_b32 s{sT1}, s{sT1}, 7\ns_add_u32 s{sT0}, s{sT0}, s{sT1}\ns_add_u32 s{sT0}, s{sT0}, {KF}")
                a("v_and_b32 v3, 15, v1\nv_lshlrev_b32 v3, 4, v3\nv_bfe_u32 v4, v1, 4, 1\nv_lshl_add_u32 v3, v4, 9, v3")
                a("v_lshrrev_b32 v4, 5, v1\nv_lshl_add_u32 v3, v4, 3, v3")
                a(f"s_mov_b32 s{sXM}, 0x00ff00ff\ns_mov_b32 s{sXM+1}, 0x00ff00ff")
                a("v_cvt_pk_bf16_f32 v8, v112, v113\nv_cvt_pk_bf16_f32 v9, v114, v115")
                a(f"s_mov_b64 exec, s[{sXM}:{sXM+1}]")
                a(f"buffer_store_dwordx2 v[8:9], v3, {srd(R_WS)}, s{sT0} offen sc1")
                a("s_mov_b64 exec, -1")
                a("v_mul_f32 v6, v112, v112\nv_fmac_f32 v6, v113, v113\nv_fmac_f32 v6, v114, v114\nv_fmac_f32 v6, v115, v115")
                for sw in ("v_permlane16_swap_b32", "v_permlane32_swap_b32"):
                    a(f"v_mov_b32 v5, v6\ns_nop 1\n{sw} v6, v5\nv_add_f32 v6, v6, v5")
                a("v_and_b32 v6, 0x7fffffff, v6")
                for ctl in ("quad_perm:[1,0,3,2]", "quad_perm:[2,3,0,1]", "row_half_mirror"):
                    a(f"s_nop 1\nv_max_u32_dpp v6, v6, v6 {ctl} row_mask:0xf bank_mask:0xf")
                a(f"v_mov_b32 v7, {LFL+80}")
                a(f"s_lshl_b32 s{sT0}, s{sP}, 7\ns_add_u32 s{sT0}, s{sT0}, {F0}")
                a(f"v_mov_b32 v4, s{sE}\nv_mov_b32 v5, v6\nv_mov_b32 v3, 0")
                self.spin_lds(7, 8, "v_cmp_gt_u32 vcc, 1, v8")
                a("s_waitcnt vmcnt(0)")
                self.stamp(3)
                a("s_mov_b64 exec, 1")
                a(f"buffer_store_dwordx2 v[4:5], v3, {srd(R_WS)}, s{sT0} offen sc1")
                a("s_mov_b64 exec, -1")
                a("s_branch L_a_main")
            else:
                a(f"s_lshl_b32 s{sT1}, s{sT1}, 8\ns_add_u32 s{sT0}, s{sT0}, s{sT1}\ns_add_u32 s{sT0}, s{sT0}, {VF}")
                a("v_and_b32 v3, 15, v1\nv_lshlrev_b32 v3, 4, v3\nv_lshrrev_b32 v4, 4, v1\nv_lshl_add_u32 v3, v4, 3, v3")
                a("s_nop 1")
                a("v_cvt_pk_bf16_f32 v8, v112, v113\nv_cvt_pk_bf16_f32 v9, v114, v115")
                a("s_mov_b32 exec_hi, 0")
                a(f"buffer_store_dwordx2 v[8:9], v3, {srd(R_WS)}, s{sT0} offen sc1")
                a("s_mov_b64 exec, -1")
                a(f"v_mov_b32 v7, {LFL+80}\nv_mov_b32 v8, 1")
                a("s_waitcnt vmcnt(0)")
                self.stamp(3)
                a("ds_write_b32 v7, v8")
                a("s_branch L_a_main")

    def xn_store(self):
        a = self.a
        a("v_and_b32 v3, 7, v1\nv_lshrrev_b32 v4, 3, v1")
        a(f"v_mul_u32_u24 v5, {PITCH}, v3\nv_lshl_add_u32 v5, v4, 4, v5")
        a(f"s_sub_u32 s{sT1}, s{sW}, 6\ns_lshl_b32 s{sT0}, s{sT1}, 9\ns_add_u32 s{sT0}, s{sT0}, {XROW}")
        a(f"v_add_u32 v5, s{sT0}, v5")
        for n in range(4):
            a(f"ds_read_b128 {vr(64+4*n,4)}, v5 offset:{128*n}")
        a("v_lshlrev_b32 v3, 4, v3\nv_and_b32 v6, 1, v4\nv_lshl_add_u32 v3, v6, 9, v3\nv_lshrrev_b32 v4, 1, v4\nv_lshl_add_u32 v3, v4, 10, v3")
        a(f"s_lshr_b32 s{sT0}, s{sP}, 2\ns_lshl_b32 s{sT0}, s{sT0}, 15\ns_lshl_b32 s{sT1}, s{sT1}, 14\ns_add_u32 s{sT0}, s{sT0}, s{sT1}")
        a(f"s_and_b32 s{sT1}, s{sJ}, 3\ns_lshl_b32 s{sT1}, s{sT1}, 7\ns_add_u32 s{sT0}, s{sT0}, s{sT1}")
        if XN:
            a(f"s_add_u32 s{sT0}, s{sT0}, {XN}")
        a(f"s_mov_b32 s{sT5}, s{sT0}")
        for n in range(4):
            a(f"s_waitcnt lgkmcnt({3-n})")
            a(f"buffer_store_dwordx4 {vr(64+4*n,4)}, v3, {srd(R_WS)}, s{sT0} offen sc1")
            if n < 3:
                a(f"s_add_u32 s{sT0}, s{sT0}, 4096")

    gRG0, gRU0, gRG1, gRU1 = 3, 4, 5, 6
    gT = 8
    gTQ = 12
    gFL = 13
    gMY = 14
    gTMP = 15
    gONE = 47
    gE = 16
    gP = 24
    gQ = 32
    gA = 48
    gC = 64
    gX = 128

    def ring_dma_parts(self, b, vm):
        a = self.a
        p, sl = b >> 3, b & 7
        vg, vu = (self.gRG0, self.gRU0) if p == 0 else (self.gRG1, self.gRU1)
        def p0():
            a(f"s_add_u32 s{sT0}, s{sROT}, {sl}\ns_and_b32 s{sT0}, s{sT0}, 7\ns_mul_i32 s{sT0}, s{sT0}, {64*3584}\ns_add_u32 s{sT0}, s{sT0}, s{sBASE}")
            a(f"s_add_u32 m0, s{sW4096}, {(b & 3) * 16384}")
            a(f"s_add_u32 s{sT1}, s{sT0}, {p*128 + 8*3584 - 1024}")
            if p:
                a(f"s_add_u32 s{sT0}, s{sT0}, {p*128}")
            a(f"buffer_load_dwordx4 v{vg}, {srd(R_W1)}, s{sT0} offen {self.wnt} lds"); vm.issue(("ring", b))
        def p1():
            a(f"buffer_load_dwordx4 v{vg}, {srd(R_W1)}, s{sT1} offen offset:1024 {self.wnt} lds"); vm.issue(("ring", b))
            a("s_add_u32 m0, m0, 2048")
        def p2():
            a(f"buffer_load_dwordx4 v{vu}, {srd(R_W3)}, s{sT0} offen {self.wnt} lds"); vm.issue(("ring", b))
        def p3():
            a(f"buffer_load_dwordx4 v{vu}, {srd(R_W3)}, s{sT1} offen offset:1024 {self.wnt} lds"); vm.issue(("ring", b))
        return [p0, p1, p2, p3]

    def ring_dma(self, b, vm):
        ps = self.ring_dma_parts(b, vm)
        ps[0](); ps[1](); self.a("s_nop 0"); ps[2](); ps[3]()

    def g_early(self):
        a = self.a
        vm = self.vmG = Vm(a)
        vm.issue("xrow")
        a("L_g_dma:")
        if self.code_pf:
            a(f"s_sub_u32 s{sPC}, s{sPC}, L_pc-{NAME}\ns_subb_u32 s{sPC+1}, s{sPC+1}, 0")
            a(f"s_lshl_b32 s{sT0}, s{sW}, 13")
            a(f"v_lshlrev_b32 v3, 7, v1\nv_add_u32 v3, s{sT0}, v3")
            a(f"v_min_u32 v3, L_code_end-{NAME}-4, v3")
            a(f"global_load_dword v7, v3, s[{sPC}:{sPC+1}]")
            vm.issue("pf")
        if self.tlb:
            L = self.lab("tlb")
            a(f"s_cmp_lg_u32 s{sW}, 0\ns_cbranch_scc1 {L}")
            a("v_lshlrev_b32 v3, 20, v1\ns_mov_b64 exec, 0x3fff")
            a(f"buffer_load_dword v7, v3, {srd(R_WS)}, 0 offen offset:2048")
            a("s_mov_b64 exec, 3")
            for R in (R_W1, R_W3, R_W2):
                a(f"buffer_load_dword v7, v3, {srd(R)}, 0 offen")
            a("s_mov_b64 exec, 1")
            for R in (R_WQ, R_WO, R_OUT):
                a(f"buffer_load_dword v7, v3, {srd(R)}, 0 offen")
            a("s_mov_b64 exec, -1")
            a("s_waitcnt vmcnt(8)")
            a("s_branch L_ln")
            a(f"{L}:")
        if self.wq_at == "early":
            self.wq_dma(vm)
        if self.ring_at == "early":
            self.ring_setup(vm)
            self.ring_fill(vm)
        vm.wait("xrow")
        a("s_branch L_ln")

    def wq_dma(self, vm):
        a = self.a
        a("v_lshrrev_b32 v3, 2, v1\nv_lshlrev_b32 v3, 10, v3\nv_and_b32 v4, 3, v1\nv_lshl_add_u32 v3, v4, 4, v3")
        a(f"s_lshl_b32 s{sT4}, s{sJ}, 6")
        a(f"s_lshl_b32 s{sT1}, s{sW}, 13\ns_add_u32 m0, s{sT1}, {WQI}")
        for n in range(8):
            if n:
                a(f"s_add_u32 m0, m0, 1024")
            if n & 3 == 0:
                a(f"s_lshl1_add_u32 s{sT0}, s{sW}, s{sROT}\ns_add_u32 s{sT0}, s{sT0}, {n>>2}\ns_and_b32 s{sT0}, s{sT0}, 7\ns_lshl_b32 s{sT0}, s{sT0}, 16\ns_add_u32 s{sT0}, s{sT0}, s{sT4}")
            else:
                a(f"s_add_u32 s{sT0}, s{sT0}, 16384")
            a(f"buffer_load_dwordx4 v3, {srd(R_WQ)}, s{sT0} offen lds")
            vm.issue("wq")

    def ring_setup(self, vm):
        a = self.a
        RG0, RU0, RG1, RU1 = self.gRG0, self.gRU0, self.gRG1, self.gRU1
        a("v_bfe_u32 v35, v1, 1, 2\nv_bfe_u32 v36, v1, 4, 1\nv_xor_b32 v35, v35, v36")
        a("v_lshrrev_b32 v36, 3, v1\nv_mul_u32_u24 v36, 3584, v36\nv_and_b32 v37, 1, v1\nv_lshl_add_u32 v36, v37, 4, v36")
        a(f"v_lshl_add_u32 v{RG0}, v35, 5, v36")
        a(f"v_xor_b32 v37, 2, v35\nv_lshl_add_u32 v{RU0}, v37, 5, v36")
        a("v_mov_b32 v36, 0x40000000")
        a("v_cmp_eq_u32 vcc, 3, v35\ns_nop 1")
        a(f"v_cndmask_b32 v{RG1}, v{RG0}, v36, vcc")
        a("v_cmp_eq_u32 vcc, 3, v37\ns_nop 1")
        a(f"v_cndmask_b32 v{RU1}, v{RU0}, v36, vcc")
        a(f"s_mul_i32 s{sBASE}, s{sW}, {16*3584}\ns_mul_i32 s{sT0}, s{sJ}, 224\ns_add_u32 s{sBASE}, s{sBASE}, s{sT0}")
        a(f"s_lshl_b32 s{sW4096}, s{sW}, 12")

    def ring_fill(self, vm, lo=0, hi=4):
        for b in range(lo, hi):
            self.ring_dma(b, vm)

    def tr_pair(self, dst, vaddr, off, qstep):
        self.a(f"ds_read_b64_tr_b16 {vr(dst,2)}, v{vaddr} offset:{off}")
        self.a(f"ds_read_b64_tr_b16 {vr(dst+2,2)}, v{vaddr} offset:{off+qstep}")

    def g_main(self):
        a = self.a
        vm = self.vmG
        gT, gA, gC, gX, gQ, gE, gP = self.gT, self.gA, self.gC, self.gX, self.gQ, self.gE, self.gP
        a("L_g_bar1:")
        a("s_barrier")
        self.stamp(2)
        a(f"s_setprio {self.prioGhi}")
        if self.wq_at == "bar1":
            self.wq_dma(vm)
        if self.ring_at != "early":
            self.ring_setup(vm)
        if self.ring_at == "bar1":
            self.ring_fill(vm)
        a("v_and_b32 v16, 3, v1\nv_lshlrev_b32 v16, 3, v16")
        a("v_bfe_u32 v17, v1, 2, 2")
        a("v_bfe_u32 v18, v1, 4, 1")
        a("v_lshrrev_b32 v19, 5, v1")
        a("v_bfe_u32 v20, v1, 3, 1")
        a(f"v_lshl_add_u32 v21, v19, 9, v16\nv_lshl_add_u32 v21, v17, 6, v21\nv_lshl_add_u32 v21, v18, 5, v21\nv_add_u32 v{self.gTQ}, {WQI}, v21")
        a("v_lshl_add_u32 v21, v18, 11, v16\nv_lshl_add_u32 v21, v19, 10, v21\nv_lshl_add_u32 v21, v17, 7, v21")
        a("v_lshl_add_u32 v22, v18, 1, v20\nv_lshl_add_u32 v21, v22, 5, v21")
        a(f"v_mov_b32 v{gT}, v21")
        for mt in range(1, 4):
            a(f"v_xor_b32 v{gT+mt}, {32*mt}, v21")
        a(f"v_and_b32 v21, 3, v1\nv_lshlrev_b32 v21, 2, v21\nv_add_u32 v{self.gFL}, {LFL}, v21")
        a(f"s_lshl_b32 s{sT0}, s{sW}, 2\ns_add_u32 s{sT0}, s{sT0}, {LFL}\nv_mov_b32 v{self.gMY}, s{sT0}")
        nl = f2u(-LOG2E)
        a(f"s_mov_b32 s{sNL2}, {nl:#x}\ns_mov_b32 s{sNL2+1}, {nl:#x}")
        a(f"s_mov_b32 s{sONE}, 1.0\ns_mov_b32 s{sONE+1}, 1.0")
        qs = f2u(0.25 * LOG2E)
        a(f"s_mov_b32 s{sQS}, {qs:#x}\ns_mov_b32 s{sQS+1}, {qs:#x}")
        a("v_and_b32 v21, 7, v1\nv_lshlrev_b32 v21, 7, v21")
        a(f"s_lshl_b32 s{sT0}, s{sG}, 2\ns_add_u32 s{sT0}, s{sT0}, s{sW}\ns_lshl_b32 s{sT2}, s{sT0}, 10\ns_add_u32 s{sT2}, s{sT2}, {FX}")
        a(f"s_lshl_b32 s{sT3}, s{sT0}, 15")
        if XN:
            a(f"s_add_u32 s{sT3}, s{sT3}, {XN}")
        a(f"v_mov_b32 v{self.gTMP}, 1")
        if self.wq_at != "flag":
            vm.wait("wq")
            a(f"ds_write_b32 v{self.gMY}, v{self.gTMP} offset:64")
        self.stamp(3)
        self.poll_global(21, f"s{sT2}", 22, 1, vm, lanes=8)
        self.stamp(4)
        if self.gate:
            a(f"ds_write_b32 v{self.gMY}, v{self.gTMP} offset:96")
        if self.wq_at == "flag":
            self.wq_dma(vm)
        if self.ring_at == "flag":
            self.ring_fill(vm)
        for s in range(32):
            if s & 3 == 0:
                a(f"s_add_u32 s{sT0}, s{sROT}, {s>>2}\ns_and_b32 s{sT0}, s{sT0}, 7\ns_lshl_b32 s{sT0}, s{sT0}, 12\ns_add_u32 s{sT0}, s{sT0}, s{sT3}")
            a(f"buffer_load_dwordx4 {vr(gX+4*s,4)}, v2, {srd(R_WS)}, s{sT0} offen offset:{1024*(s&3)} sc1")
            vm.issue(("x", s))
        if self.ring_at == "afterx":
            self.ring_fill(vm)
        if self.ring_at == "afterx2":
            self.ring_fill(vm, 0, 2)
        if self.ring_at == "afterx1":
            self.ring_fill(vm, 0, 1)
        if self.wq_at == "flag":
            vm.wait("wq")
            a(f"ds_write_b32 v{self.gMY}, v{self.gTMP} offset:64")
        a(f"v_add_u32 v21, 64, v{self.gFL}")
        self.spin_lds(21, 22, "v_cmp_gt_u32 vcc, 1, v22")
        for s in range(4):
            self.tr_pair(gA + 4 * s, self.gTQ, 1024 * s, 256)
        for s in range(32):
            left = min(3, 31 - s)
            vm.wait(("x", s), f"lgkmcnt({2*left})")
            c = "0" if s == 0 else vr(gQ, 16)
            a(f"v_mfma_f32_32x32x16_bf16 {vr(gQ,16)}, {vr(gA+4*(s%4),4)}, {vr(gX+4*s,4)}, {c}")
            if s + 4 < 32:
                self.tr_pair(gA + 4 * (s % 4), self.gTQ, 1024 * (s + 4), 256)
        self.stamp(5)
        a(f"s_lshl_b32 s{sT0}, s{sW}, 11\ns_add_u32 s{sT0}, s{sT0}, {QX}")
        a(f"v_add_u32 v7, s{sT0}, v2")
        a("s_nop 8")
        for i in range(8):
            a(f"v_pk_mul_f32 {vr(gQ+2*i,2)}, {vr(gQ+2*i,2)}, s[{sQS}:{sQS+1}]")
        for i in range(8):
            a(f"v_cvt_pk_bf16_f32 v{gP+i}, v{gQ+2*i}, v{gQ+2*i+1}")
        a(f"ds_write_b128 v7, {vr(gP,4)}")
        a(f"ds_write_b128 v7, {vr(gP+4,4)} offset:1024")
        a(f"v_mul_f32 v{gE}, v{gQ}, v{gQ}\nv_mul_f32 v{gE+1}, v{gQ+8}, v{gQ+8}")
        for i in range(1, 8):
            a(f"v_fmac_f32 v{gE}, v{gQ+i}, v{gQ+i}\nv_fmac_f32 v{gE+1}, v{gQ+8+i}, v{gQ+8+i}")
        a("s_nop 1")
        a(f"v_permlane32_swap_b32 v{gE}, v{gE+1}")
        a(f"v_add_f32 v{gE}, v{gE}, v{gE+1}")
        a(f"v_and_b32 v{gE}, 0x7fffffff, v{gE}")
        self.reduce64("v_max_u32", gE, gE + 1)
        a("s_waitcnt lgkmcnt(0)")
        a(f"ds_write_b32 v{self.gMY}, v{gE} offset:16")
        self.stamp(6)
        if self.ring_at == "afterq":
            self.ring_fill(vm)
        if self.ring_at == "afterx2":
            self.ring_fill(vm, 2, 4)
        if self.ring_at == "afterx1":
            self.ring_fill(vm, 1, 4)
        if self.only == "A":
            a(f"v_mov_b32 v{self.gTMP}, 18\nds_write_b32 v{self.gMY}, v{self.gTMP}\ns_waitcnt vmcnt(0) lgkmcnt(0)")
            self.stamp_flush()
            a("s_endpgm")
            return
        LA = 4
        lg = Lg(a)
        items = []
        for b in range(16):
            for ks in range(4):
                for mt in range(4 if b < 8 else 3):
                    items.append((len(items), b, ks, mt))
        def mf(it):
            (n, b, ks, mt) = it
            kk = 4 * (b & 7) + ks
            c = "0" if kk == 0 else vr(gC + 16 * mt, 16)
            a(f"v_mfma_f32_32x32x16_bf16 {vr(gC+16*mt,16)}, {vr(gA+4*(n%LA),4)}, {vr(gX+4*kk,4)}, {c}")
        def rd(it):
            (n, b, ks, mt) = it
            self.tr_pair(gA + 4 * (n % LA), gT + mt, (b & 3) * 16384 + ks * 4096, 512)
            lg.issue(("r", n)); lg.issue(("r", n))
        ONE, TMP, FLG, MY = self.gONE, self.gTMP, self.gFL, self.gMY
        def signal():
            a(f"s_mov_b64 exec, 1\nds_add_u32 v{MY}, v{ONE}\ns_mov_b64 exec, -1"); lg.issue("sig")
        def peek():
            a(f"ds_read_b32 v{TMP}, v{FLG}"); lg.issue("peek")
        def check(target):
            L, Lo = self.lab("chk"), self.lab("chkx")
            waitcnt(a, lg=lg, ltag="peek")
            a(f"s_setprio {self.prioGhi}")
            a(f"v_cmp_gt_u32 vcc, {target}, v{TMP}")
            a(f"s_mov_b32 s{sCNT}, 0")
            a(f"s_cbranch_vccz {Lo}")
            a(f"{L}:")
            a(f"ds_read_b32 v{TMP}, v{FLG}")
            a(f"s_add_u32 s{sCNT}, s{sCNT}, 1")
            a("s_waitcnt lgkmcnt(0)")
            a(f"v_cmp_gt_u32 vcc, {target}, v{TMP}")
            a(f"s_cmp_gt_u32 s{sCNT}, {SPIN_L}")
            a(f"s_cbranch_scc1 {Lo}")
            a(f"s_cbranch_vccnz {L}")
            a(f"{Lo}:")
            a(f"s_setprio {self.prioG}")
        a(f"v_mov_b32 v{ONE}, 1")
        self.touch_setup()
        vm.wait(("ring", 0))
        signal(); peek(); check(1)
        for it in items[:LA]:
            rd(it)
        extras = {}
        def at(n, f):
            extras.setdefault(n, []).append(f)
        first = {b: min(n for (n, bb, _, _) in items if bb == b) for b in range(16)}
        touch = self.touch_parts(vm)
        w2q = []
        for b in range(16):
            f0, nb = first[b], (16 if b < 8 else 12)
            if b < 15:
                at(f0 + 1, lambda b=b: (vm.wait(("ring", b + 1)), signal()))
                at(f0 + 2, peek)
                at(f0 + 5, lambda b=b: check(b + 2))
            if 1 <= b <= 12 and not self.nodma:
                for k, part in enumerate(self.ring_dma_parts(b + 3, vm)):
                    at(f0 + 6 + k, part)
            if b in touch:
                at(f0 + 10, touch[b])
            if b >= 13:
                for k in range(3):
                    n = 3 * (b - 13) + k
                    if n < 8:
                        at(f0 + 6 + 2 * k, lambda n=n: (self.w2_dma(n, vm), self.idx_step()))
                    else:
                        at(f0 + 6 + 2 * k, lambda: self.resid_load(vm))
        a(f"s_setprio {self.prioG}")
        for it in items:
            n, b = it[0], it[1]
            if self.gtrace and n == first[b] and b in (1, 4, 8, 12):
                self.stamp({1: 1, 4: 2, 8: 3, 12: 5}[b])
            if n == first[8]:
                a(f"s_setprio {self.prioGhi}")
                self.down_setup()
                self.silu_store(0, 4, vm)
                a(f"s_setprio {self.prioG}")
                if self.gtrace:
                    self.stamp(4)
            waitcnt(a, lg=lg, ltag=("r", n))
            mf(it)
            if n + LA < len(items):
                rd(items[n + LA])
            for f in extras.get(n, []):
                f()
        signal()
        a(f"s_setprio {self.prioGhi}")
        a("s_nop 7\ns_nop 1")
        self.silu_store(4, 3, vm)
        self.stamp(7)
        self.down(vm)

    def touch_setup(self):
        a = self.a
        if not self.l2pf:
            return
        a(f"s_and_b32 s{sT0}, s{sG}, 7\ns_lshl_b32 s{sT0}, s{sT0}, 6\nv_add_u32 v44, s{sT0}, v1\nv_mul_u32_u24 v44, 3584, v44")
        a(f"s_mul_i32 s{sT0}, s{sJ}, 224\ns_lshr_b32 s{sT1}, s{sW}, 1\ns_mul_i32 s{sT1}, s{sT1}, 92\ns_add_u32 s{sT0}, s{sT0}, s{sT1}\ns_add_u32 s{sT0}, s{sT0}, 128")
        a(f"v_add_u32 v44, s{sT0}, v44")
        a("v_lshlrev_b32 v45, 7, v1")
        if self.pf0:
            a(f"s_and_b32 s{sT0}, s{sG}, 7\ns_lshl_b32 s{sT0}, s{sT0}, 5\ns_add_u32 s{sT0}, s{sT0}, 256\nv_and_b32 v43, 31, v1\nv_add_u32 v43, s{sT0}, v43\nv_mul_u32_u24 v43, 3584, v43")
            a(f"v_lshrrev_b32 v46, 5, v1\nv_mul_u32_u24 v46, 92, v46\nv_add_u32 v43, v43, v46\ns_mul_i32 s{sT0}, s{sJ}, 224\nv_add_u32 v43, s{sT0}, v43")

    def touch_parts(self, vm):
        a = self.a
        if not self.l2pf:
            return {}
        def t_p1():
            L = self.lab("tw3")
            L2 = self.lab("tw3x")
            a(f"s_bitcmp1_b32 s{sW}, 0\ns_cbranch_scc1 {L}")
            a(f"buffer_load_dword v46, v44, {srd(R_W1)}, 0 offen\ns_branch {L2}")
            a(f"{L}:\nbuffer_load_dword v46, v44, {srd(R_W3)}, 0 offen\n{L2}:")
            vm.issue("touch")
        def t_w2(k):
            def f():
                a(f"s_mul_i32 s{sT2}, s{sI}, 7\ns_add_u32 s{sT2}, s{sT2}, s{sW}\ns_add_u32 s{sT2}, s{sT2}, {4*k}\ns_lshl_b32 s{sT2}, s{sT2}, 13")
                a(f"buffer_load_dword v46, v45, {srd(R_W2)}, s{sT2} offen")
                vm.issue("touch")
            return f
        def t_wo():
            a(f"s_and_b32 s{sT2}, s{sW}, 1\ns_lshl1_add_u32 s{sT2}, s{sI}, s{sT2}\ns_lshl_b32 s{sT2}, s{sT2}, 13")
            a(f"buffer_load_dword v46, v45, {srd(R_WO)}, s{sT2} offen")
            vm.issue("touch")
        def t_p0():
            L = self.lab("tw3")
            L2 = self.lab("tw3x")
            a(f"s_lshr_b32 s{sT2}, s{sW}, 1\ns_mul_i32 s{sT2}, s{sT2}, 32")
            a(f"s_bitcmp1_b32 s{sW}, 0\ns_cbranch_scc1 {L}")
            a(f"buffer_load_dword v46, v43, {srd(R_W1)}, s{sT2} offen\ns_branch {L2}")
            a(f"{L}:\nbuffer_load_dword v46, v43, {srd(R_W3)}, s{sT2} offen\n{L2}:")
            vm.issue("touch")
        d = {1: t_p1, 8: t_w2(0), 9: t_w2(1), 10: t_wo}
        if self.pf0:
            d[0] = t_p0
        return d

    def silu_store(self, mt0, nm, vm):
        a = self.a
        gC, gE, gP = self.gC, self.gE, self.gP
        a(f"s_lshl_b32 s{sT0}, s{sG}, 2\ns_add_u32 s{sT0}, s{sT0}, s{sW}\ns_mul_i32 s{sT0}, s{sT0}, 112")
        a(f"s_mul_i32 s{sT1}, s{sJ}, 7\ns_add_u32 s{sT0}, s{sT0}, s{sT1}\ns_lshl_b32 s{sT0}, s{sT0}, 10\ns_add_u32 s{sT0}, s{sT0}, {HF + 1024*mt0}")
        if mt0 == 4:
            a("s_nop 3")
        for m in range(nm):
            G, U, E, P = gC + 16 * m, gC + 16 * m + 8, gE, gP + 4 * (m & 1)
            for i in range(4):
                a(f"v_pk_mul_f32 {vr(E+2*i,2)}, {vr(G+2*i,2)}, s[{sNL2}:{sNL2+1}]")
            for i in range(8):
                a(f"v_exp_f32 v{E+i}, v{E+i}")
            for i in range(4):
                a(f"v_pk_mul_f32 {vr(G+2*i,2)}, {vr(G+2*i,2)}, {vr(U+2*i,2)}")
                if i == 0:
                    pass
            for i in range(4):
                a(f"v_pk_add_f32 {vr(E+2*i,2)}, {vr(E+2*i,2)}, s[{sONE}:{sONE+1}]")
            for i in range(8):
                a(f"v_rcp_f32 v{E+i}, v{E+i}")
            a("s_nop 0")
            for i in range(4):
                a(f"v_pk_mul_f32 {vr(G+2*i,2)}, {vr(G+2*i,2)}, {vr(E+2*i,2)}")
            for i in range(4):
                a(f"v_cvt_pk_bf16_f32 v{P+i}, v{G+2*i}, v{G+2*i+1}")
            a(f"buffer_store_dwordx4 {vr(P,4)}, v2, {srd(R_WS)}, s{sT0} offen offset:{1024*m} sc1")
            vm.issue(("h", mt0 + m))

    dV = 7
    dXR = 32
    dT = 40
    dF = 42
    dXA = 43
    dH = 128

    def w2_dma(self, n, vm):
        a = self.a
        a(f"s_add_u32 m0, s{sRB}, {(n & 7) * 2048}")
        if n < 28:
            R = R_W2
            a(f"s_lshl_b32 s{sT0}, s{sIDX}, 14\ns_add_u32 s{sT0}, s{sT0}, s{sW2}")
        else:
            R = R_WO
            a(f"s_add_u32 s{sT0}, s{sKB}, {n-28}\ns_and_b32 s{sT0}, s{sT0}, 7\ns_lshl_b32 s{sT0}, s{sT0}, 14\ns_add_u32 s{sT0}, s{sT0}, s{sWO}")
        a(f"s_add_u32 s{sT1}, s{sT0}, {8192 - 1024}")
        a(f"buffer_load_dwordx4 v{self.dV}, {srd(R)}, s{sT0} offen lds")
        a(f"buffer_load_dwordx4 v{self.dV}, {srd(R)}, s{sT1} offen offset:1024 lds")
        vm.issue(("w2", n)); vm.issue(("w2", n))

    def idx_step(self):
        self.a(f"s_add_u32 s{sIDX}, s{sIDX}, 1\ns_cmp_eq_u32 s{sIDX}, 28\ns_cselect_b32 s{sIDX}, 0, s{sIDX}")

    def down_setup(self):
        a = self.a
        dV, dT = self.dV, self.dT
        a(f"s_and_b32 s{sT2}, s{sI}, 3\ns_lshl2_add_u32 s{sT2}, s{sX8}, s{sT2}")
        a(f"s_lshr_b32 s{sT3}, s{sI}, 2")
        a(f"s_lshl_b32 s{sT4}, s{sT3}, 7")
        a(f"s_mul_i32 s{sW2}, s{sW}, {28*16384}\ns_add_u32 s{sW2}, s{sW2}, s{sT4}")
        a(f"s_lshl_b32 s{sWO}, s{sW}, 17\ns_add_u32 s{sWO}, s{sWO}, s{sT4}")
        a(f"s_lshl_b32 s{sRB}, s{sW}, 14\ns_add_u32 s{sRB}, s{sRB}, {RB0}")
        a("v_bfe_u32 v40, v1, 2, 1\nv_bfe_u32 v41, v1, 4, 1\nv_xor_b32 v40, v40, v41\nv_lshlrev_b32 v40, 6, v40")
        a("v_and_b32 v41, 3, v1\nv_lshl_add_u32 v40, v41, 4, v40\nv_lshrrev_b32 v41, 3, v1")
        a(f"v_lshl_add_u32 v{dV}, v41, 10, v40")
        if self.rot:
            a(f"s_lshl1_add_u32 s{sT0}, s{sT2}, s{sT3}\ns_and_b32 s{sT1}, s{sT2}, 3\ns_lshl1_add_u32 s{sT0}, s{sT1}, s{sT3}\ns_mul_i32 s{sT0}, s{sT0}, 7\ns_lshr_b32 s{sT0}, s{sT0}, 1")
            a(f"s_sub_u32 s{sT1}, s{sT0}, 28\ns_cmp_ge_u32 s{sT0}, 28\ns_cselect_b32 s{sRD}, s{sT1}, s{sT0}")
            a(f"s_mov_b32 s{sKB}, s{sT3}")
        else:
            a(f"s_mov_b32 s{sRD}, 0\ns_mov_b32 s{sKB}, 0")
        a(f"s_mov_b32 s{sIDX}, s{sRD}")
        a(f"s_lshr_b32 s{sT0}, s{sW}, 1\ns_lshl1_add_u32 s{sT0}, s{sT2}, s{sT0}\ns_xor_b32 s{sT1}, s{sT0}, 1")
        a(f"s_mul_i32 s{sT5}, s{sW}, 28")
        for sH, sO, st in ((sH0, sO0, sT0), (sH1, sO1, sT1)):
            a(f"s_mul_i32 s{sH}, s{st}, 112\ns_add_u32 s{sH}, s{sH}, s{sT5}\ns_lshl_b32 s{sH}, s{sH}, 10\ns_add_u32 s{sH}, s{sH}, {HF}")
            a(f"s_lshl_b32 s{sO}, s{st}, 2\ns_add_u32 s{sO}, s{sO}, s{sW}\ns_lshl_b32 s{sO}, s{sO}, 13\ns_add_u32 s{sO}, s{sO}, {OF}")
        a(f"s_lshl_b32 s{sOUT}, s{sT0}, 15\ns_add_u32 s{sOUT}, s{sOUT}, s{sT4}\ns_and_b32 s{sT1}, s{sW}, 1\ns_lshl_b32 s{sT1}, s{sT1}, 6\ns_add_u32 s{sOUT}, s{sOUT}, s{sT1}")
        a("v_and_b32 v42, 3, v1\nv_lshlrev_b32 v42, 3, v42\nv_bfe_u32 v43, v1, 4, 1\nv_lshl_add_u32 v42, v43, 5, v42")
        a("v_bfe_u32 v43, v1, 2, 2\nv_lshl_add_u32 v42, v43, 7, v42\nv_lshrrev_b32 v43, 5, v1\nv_lshl_add_u32 v42, v43, 9, v42")
        a(f"v_bfe_u32 v43, v1, 3, 1\nv_lshl_add_u32 v42, v43, 6, v42\nv_xor_b32 v42, s{sT1}, v42")
        a(f"v_add_u32 v{dT}, s{sRB}, v42\nv_xor_b32 v{dT+1}, 64, v{dT}")
        a(f"s_lshr_b32 s{sT0}, s{sT2}, 1\ns_lshl2_add_u32 s{sT0}, s{sT0}, s{sW}\ns_lshl_b32 s{sT0}, s{sT0}, 4")
        a(f"s_and_b32 s{sT1}, s{sT2}, 1\ns_lshl1_add_u32 s{sT0}, s{sT1}, s{sT0}\ns_lshl_b32 s{sT0}, s{sT0}, 7")
        a(f"v_and_b32 v42, 3, v1\nv_lshlrev_b32 v42, 9, v42\nv_bfe_u32 v43, v1, 2, 1\nv_lshl_add_u32 v42, v43, 7, v42\nv_add_u32 v{self.dF}, s{sT0}, v42")
        a(f"v_and_b32 v43, 31, v1\nv_lshlrev_b32 v43, 10, v43\nv_lshrrev_b32 v44, 5, v1\nv_lshl_add_u32 v{self.dXA}, v44, 3, v43")

    def resid_load(self, vm):
        a = self.a
        for i in range(4):
            a(f"buffer_load_dwordx2 {vr(self.dXR+2*i,2)}, v{self.dXA}, {srd(R_X)}, s{sOUT} offen offset:{16*i}")
            vm.issue("xres")

    def down(self, vm):
        a = self.a
        gA, gC, gP, dT, dH = self.gA, self.gC, self.gP, self.dT, self.dH
        vm.drain()
        a(f"s_lshl2_add_u32 s{sT0}, s{sP}, s{sW}\ns_lshl_b32 s{sT0}, s{sT0}, 7\ns_add_u32 s{sT0}, s{sT0}, {FH}")
        a(f"v_mov_b32 v16, s{sE}\nv_mov_b32 v17, 0")
        a("s_mov_b64 exec, 1")
        a(f"buffer_store_dword v16, v17, {srd(R_WS)}, s{sT0} offen sc1")
        a("s_mov_b64 exec, -1")
        if self.ptouch & 2:
            a(f"s_lshl_b32 s{sT0}, s{sG}, 2\ns_add_u32 s{sT0}, s{sT0}, s{sW}\ns_mul_i32 s{sT0}, s{sT0}, 112")
            a(f"s_mul_i32 s{sT1}, s{sJ}, 7\ns_add_u32 s{sT0}, s{sT0}, s{sT1}\ns_lshl_b32 s{sT0}, s{sT0}, 10\ns_add_u32 s{sT0}, s{sT0}, {HF}")
            a("v_lshlrev_b32 v18, 7, v1\ns_mov_b32 exec_hi, 0xffffff")
            a(f"buffer_load_dword v19, v18, {srd(R_WS)}, s{sT0} offen sc1")
            a("s_mov_b64 exec, -1")
        for i in range(8):
            a(f"v_lshlrev_b32 v{gC+2*i}, 16, v{self.dXR+i}")
            a(f"v_and_b32 v{gC+2*i+1}, s{sMASK}, v{self.dXR+i}")
        def rdA(n):
            buf = gA + 8 * (n & 1)
            self.tr_pair(buf, dT, (n & 7) * 2048, 1024)
            self.tr_pair(buf + 4, dT + 1, (n & 7) * 2048, 1024)
        def ldB(n, sI):
            if n < 28:
                a(f"s_lshl_b32 s{sT0}, s{sI}, 10")
            else:
                a(f"s_add_u32 s{sT0}, s{sKB}, {n-28}\ns_and_b32 s{sT0}, s{sT0}, 7\ns_lshl_b32 s{sT0}, s{sT0}, 10")
            for bp in range(2):
                s = (sH0, sH1)[bp] if n < 28 else (sO0, sO1)[bp]
                a(f"s_add_u32 s{sT1}, s{sT0}, s{s}")
                a(f"buffer_load_dwordx4 {vr(dH+8*(n&7)+4*bp,4)}, v2, {srd(R_WS)}, s{sT1} offen sc1")
                vm.issue(("b", n))
        rdA(0)
        a(f"s_mov_b32 s{sT2}, {FH}")
        self.poll_global(self.dF, f"s{sT2}", 16, 1, vm, lanes=8)
        self.stamp(8)
        a(f"s_setprio {self.prioG}")
        for n in range(8):
            ldB(n, sRD)
            a(f"s_add_u32 s{sRD}, s{sRD}, 1\ns_cmp_eq_u32 s{sRD}, 28\ns_cselect_b32 s{sRD}, 0, s{sRD}")
        for n in range(36):
            if n == 28:
                a(f"s_setprio {self.prioGhi}")
                self.stamp(9)
                a(f"s_mov_b32 s{sT2}, {FO}")
                self.poll_global(self.dF, f"s{sT2}", 16, 1, vm, lanes=8)
                self.stamp(10)
                for m in range(28, 36):
                    ldB(m, None)
            if n == self.n0:
                a(f"s_setprio {self.prioGhi}")
                a(f"v_add_u32 v20, 112, v{self.gMY}")
                self.spin_lds(20, 21, "v_cmp_gt_u32 vcc, 1, v21", sleep=2)
            if n + 1 < 36:
                vm.wait(("w2", n + 1))
                rdA(n + 1)
                vm.wait(("b", n), "lgkmcnt(4)")
            else:
                vm.wait(("b", n), "lgkmcnt(0)")
            buf = gA + 8 * (n & 1)
            for u in range(4):
                ap, bp = u & 1, u >> 1
                c = "0" if (n == 0 and u) else vr(gC + 16 * u, 16)
                a(f"v_mfma_f32_32x32x16_bf16 {vr(gC+16*u,16)}, {vr(buf+4*ap,4)}, {vr(dH+8*(n&7)+4*bp,4)}, {c}")
            if n + 8 < 36:
                self.w2_dma(n + 8, vm)
            if n + 8 < 28:
                ldB(n + 8, sIDX)
                self.idx_step()
        self.stamp(11)
        a(f"v_add_u32 v16, s{sRB}, v2")
        for u in range(1, 4):
            a(f"s_xor_b32 s{sT0}, s{sW}, {u}\ns_lshl_b32 s{sT0}, s{sT0}, 14\ns_add_u32 s{sT0}, s{sT0}, {RB0 + (u-1)*4096}")
            a(f"v_add_u32 v{16+u}, s{sT0}, v2")
        a(f"v_mov_b32 v{self.gTMP}, 18")
        a("s_nop 1")
        for u in range(1, 4):
            for q in range(4):
                a(f"ds_write_b128 v16, {vr(gC+16*u+4*q,4)} offset:{(u-1)*4096+q*1024}")
        a("s_waitcnt lgkmcnt(0)")
        a(f"ds_write_b32 v{self.gMY}, v{self.gTMP}")
        self.spin_lds(self.gFL, self.gTMP, f"v_cmp_gt_u32 vcc, 18, v{self.gTMP}")
        for u in range(1, 4):
            for q in range(4):
                a(f"ds_read_b128 {vr(gC+16*u+4*q,4)}, v{16+u} offset:{q*1024}")
        a(f"v_lshrrev_b32 v20, 5, v1\nv_lshl_add_u32 v20, v20, 3, v{self.dXA}")
        for u in range(1, 4):
            a(f"s_waitcnt lgkmcnt({4*(3-u)})")
            for i in range(8):
                a(f"v_pk_add_f32 {vr(gC+2*i,2)}, {vr(gC+2*i,2)}, {vr(gC+16*u+2*i,2)}")
        for i in range(8):
            a(f"v_cvt_pk_bf16_f32 v{gP+i}, v{gC+2*i}, v{gC+2*i+1}")
        a("s_nop 0")
        for k in (0, 4):
            a(f"v_permlane32_swap_b32 v{gP+k}, v{gP+k+2}\nv_permlane32_swap_b32 v{gP+k+1}, v{gP+k+3}")
        a(f"buffer_store_dwordx4 {vr(gP,4)}, v20, {srd(R_OUT)}, s{sOUT} offen")
        a(f"buffer_store_dwordx4 {vr(gP+4,4)}, v20, {srd(R_OUT)}, s{sOUT} offen offset:32")
        self.stamp(12)
        if self.ts:
            a("s_waitcnt vmcnt(0)")
            self.stamp(13)
        self.stamp_flush()
        a("s_endpgm")

    aK = (40, 52)
    aV = (44, 56)
    aIDX, aOK, aOV = 39, 37, 38
    aS = (64, 80)
    aQ = 96
    aO = 128

    def k_step(self):
        self.a(f"s_add_u32 s{sIDX}, s{sIDX}, 1\ns_and_b32 s{sIDX}, s{sIDX}, 15\ns_lshl_b32 s{sK}, s{sIDX}, 10\ns_add_u32 s{sK}, s{sK}, s{sKB}")
    def kv_load_k(self, buf):
        self.a(f"buffer_load_dwordx4 {vr(self.aK[buf],4)}, v{self.aOK}, {srd(R_WS)}, s{sK} offen sc1")
    def kv_load_v(self, buf):
        a = self.a
        a(f"s_mov_b64 exec, s[{sXM}:{sXM+1}]")
        a(f"buffer_load_dwordx4 {vr(self.aV[buf],4)}, v{self.aOV}, {srd(R_WS)}, s{sK} offen sc1")
        a(f"buffer_load_dwordx4 {vr(self.aV[buf]+4,4)}, v{self.aOV}, {srd(R_WS)}, s{sK} offen offset:512 sc1")
        a("s_mov_b64 exec, -1")

    def a_main(self):
        a = self.a
        vm = Vm(a)
        aK, aV, aS, aQ, aO = self.aK, self.aV, self.aS, self.aQ, self.aO
        a("L_a_main:")
        a("v_and_b32 v3, 31, v1\nv_cmp_eq_u32 vcc, 16, v3\nv_mov_b32 v4, 0x3f803f80")
        a(f"v_mov_b32 v{self.aIDX}, 0xdddddddd")
        a("v_cndmask_b32 v4, 0, v4, vcc")
        for r in list(range(aV[0], aV[0] + 8)) + list(range(aV[1], aV[1] + 8)):
            a(f"v_mov_b32 v{r}, v4")
        for r in range(aS[1] + 8, aS[1] + 16):
            a(f"v_mov_b32 v{r}, 0")
        a(f"v_mov_b32 v{self.aOK}, v2")
        a(f"v_and_b32 v3, 15, v1\nv_lshlrev_b32 v3, 4, v3\nv_lshrrev_b32 v4, 5, v1\nv_lshl_add_u32 v3, v4, 8, v3\nv_add_u32 v{self.aOV}, {VF-KF}, v3")
        for r in range(128, 256):
            a(f"v_mov_b32 v{r}, 0")
        a(f"s_mov_b32 s{sXM}, 0xffff\ns_mov_b32 s{sXM+1}, 0xffff")
        a(f"s_lshl_b32 s{sKB}, s{sWA}, 14\ns_add_u32 s{sKB}, s{sKB}, {KF}")
        if self.rot:
            a(f"s_and_b32 s{sIDX}, s{sI}, 15")
        else:
            a(f"s_mov_b32 s{sIDX}, 0")
        a(f"s_lshl_b32 s{sK}, s{sIDX}, 10\ns_add_u32 s{sK}, s{sK}, s{sKB}")
        a(f"v_lshlrev_b32 v3, 7, v1\ns_lshl_b32 s{sT2}, s{sWA}, 13\ns_add_u32 s{sT2}, s{sT2}, {F0}")
        if self.gate:
            a(f"v_and_b32 v7, 3, v1\nv_lshlrev_b32 v7, 2, v7\nv_add_u32 v7, {LFL+96}, v7")
            self.spin_lds(7, 8, "v_cmp_gt_u32 vcc, 1, v8", sleep=2)
        self.poll_global(3, f"s{sT2}", 4, 2, vm, sleep=self.asleep)
        self.stamp(4)
        self.kv_load_k(0)
        self.kv_load_v(0)
        self.k_step()
        self.kv_load_k(1)
        self.reduce64("v_max_u32", 5, 6)
        a(f"s_lshl_b32 s{sT0}, s{sWA}, 2\ns_add_u32 s{sT0}, s{sT0}, {LFL+32}\nv_mov_b32 v6, s{sT0}")
        a("ds_write_b32 v6, v5")
        a(f"v_and_b32 v7, 7, v1\nv_lshlrev_b32 v7, 2, v7\nv_add_u32 v7, {LFL+16}, v7")
        self.spin_lds(7, 8, "v_cmp_eq_u32 vcc, -1, v8")
        self.stamp(5)
        for t in range(8):
            a(f"s_lshl1_add_u32 s{sT0}, s{sWA}, {t}\ns_and_b32 s{sT0}, s{sT0}, 7\ns_lshl_b32 s{sT0}, s{sT0}, 10\ns_add_u32 s{sT0}, s{sT0}, {QX}")
            a(f"v_add_u32 v{10+t}, s{sT0}, v2")
            a(f"ds_read_b128 {vr(aQ+4*t,4)}, v{10+t}")
        Lne = self.lab("noep")
        a(f"s_or_b32 s{sT0}, s2, s{sWA}\ns_cmp_lg_u32 s{sT0}, 0\ns_cbranch_scc1 {Lne}")
        a(f"v_mov_b32 v9, s{sE}\nv_mov_b32 v3, 0\ns_mov_b32 s{sT0}, {FL}")
        a("s_mov_b64 exec, 1")
        a(f"buffer_store_dword v9, v3, {srd(R_WS)}, s{sT0} offen sc1")
        a("s_mov_b64 exec, -1")
        a(f"{Lne}:")
        for ctl in ("quad_perm:[1,0,3,2]", "quad_perm:[2,3,0,1]"):
            a(f"s_nop 1\nv_max_u32_dpp v8, v8, v8 {ctl} row_mask:0xf bank_mask:0xf")
        a("s_nop 1\nv_mov_b32_dpp v9, v8 row_half_mirror row_mask:0xf bank_mask:0xf")
        a("v_mul_f32 v8, v8, v9")
        a(f"v_cmp_nge_f32 vcc, {f2u(THRESH2):#x}, v8")
        if self.force_slow:
            a("s_branch L_a_slow")
        else:
            a("s_cbranch_vccnz L_a_slow")
        a(f"s_setprio {self.prioA}")
        a("s_waitcnt vmcnt(1) lgkmcnt(0)")
        if self.only == "G":
            a("s_branch L_a_merge")
        a(f"v_mfma_f32_32x32x16_bf16 {vr(aS[0],16)}, {vr(aK[0],4)}, {vr(aQ,4)}, 0")
        a(f"s_mov_b32 s{sCNT}, 8")
        a("s_nop 7\ns_nop 2")
        self.stamp(6)
        if self.ts:
            a(f"s_memtime s[82:83]\ns_waitcnt lgkmcnt(0)\ns_mov_b32 s{sTS+14}, s82")
        a(".p2align 3")
        a("L_a_loop:")
        if self.clk:
            a("s_memrealtime s[82:83]\ns_memtime s[0:1]\ns_waitcnt lgkmcnt(0)")
            a(f"v_mov_b32 v30, s82\nv_mov_b32 v31, s0\ns_lshl_b32 s{sT0}, s{sP}, 2\ns_add_u32 s{sT0}, s{sT0}, s{sWA}\ns_lshl_b32 s{sT0}, s{sT0}, 7\ns_lshl3_add_u32 s{sT0}, s{sCNT}, s{sT0}\ns_add_u32 s{sT0}, s{sT0}, {0xE00000}")
            a(f"v_mov_b32 v29, 0\ns_mov_b64 exec, 1\nbuffer_store_dwordx2 v[30:31], v29, {srd(R_WS)}, s{sT0} offen\ns_mov_b64 exec, -1")
        for kb in range(2):
            for t in range(8):
                cur, nxt = aS[t & 1], aS[(t + 1) & 1]
                e = [f"v_exp_f32 v{cur+i}, v{cur+i}" for i in range(16)]
                pt, pkb = (t - 1, kb) if t else (7, kb ^ 1)
                nt, nkb = (t + 1, kb) if t < 7 else (0, kb ^ 1)
                a(e[0]); a(e[1])
                a(f"v_smfmac_f32_32x32x32_bf16 {vr(aO+16*pt,16)}, {vr(aV[pkb]+4,4)}, {vr(nxt+8,8)}, v{self.aIDX}")
                a(e[2])
                if t == 0:
                    self.kv_load_v(kb ^ 1)
                a(e[3]); a(e[4])
                if t == 7:
                    a("s_waitcnt vmcnt(0)")
                a(f"v_mfma_f32_32x32x16_bf16 {vr(nxt,16)}, {vr(aK[nkb],4)}, {vr(aQ+4*nt,4)}, 0")
                a(e[5])
                if t == 7:
                    self.k_step()
                    self.kv_load_k(kb)
                for i in range(6, 10):
                    a(e[i])
                a(f"v_smfmac_f32_32x32x32_bf16 {vr(aO+16*t,16)}, {vr(aV[kb],4)}, {vr(cur,8)}, v{self.aIDX}")
                for i in range(10, 16):
                    a(e[i])
                    if kb == 1 and t == 7 and i == 12:
                        a(f"s_sub_u32 s{sCNT}, s{sCNT}, 1\ns_cmp_lg_u32 s{sCNT}, 0")
        a("s_cbranch_scc1 L_a_loop")
        a("s_nop 0")
        a(f"v_smfmac_f32_32x32x32_bf16 {vr(aO+16*7,16)}, {vr(aV[1]+4,4)}, {vr(aS[1]+8,8)}, v{self.aIDX}")
        a("L_a_merge:")
        if self.n0 >= 0:
            a(f"s_lshl_b32 s{sT0}, s{sWA}, 2\ns_add_u32 s{sT0}, s{sT0}, {LFL+112}\nv_mov_b32 v12, s{sT0}\nv_mov_b32 v13, 1\nds_write_b32 v12, v13")
        self.stamp(7)
        if self.ts:
            a(f"s_memtime s[82:83]\ns_waitcnt lgkmcnt(0)\ns_sub_u32 s{sTS+14}, s82, s{sTS+14}")
        a(f"v_and_b32 v7, 3, v1\nv_lshlrev_b32 v7, 2, v7\nv_add_u32 v7, {LFL}, v7")
        self.spin_lds(7, 8, "v_cmp_gt_u32 vcc, 17, v8")
        self.stamp(9)
        a("v_lshlrev_b32 v9, 2, v1")
        for dt in range(1, 4):
            a(f"s_add_u32 s{sT0}, s{sWA}, {dt}\ns_and_b32 s{sT0}, s{sT0}, 3\ns_mul_i32 s{sT0}, s{sT0}, 13824\ns_add_u32 s{sT0}, s{sT0}, {RING + (dt-1)*4608}")
            a(f"v_add_u32 v10, s{sT0}, v2\nv_add_u32 v11, s{sT0}, v9")
            for hd in range(2):
                O = aO + 16 * (2 * dt + hd)
                a(f"ds_write_b128 v10, {vr(O,4)} offset:{hd*2304}")
                a(f"ds_write_b128 v10, {vr(O+4,4)} offset:{hd*2304+1024}")
                a(f"ds_write_b32 v11, v{O+8} offset:{hd*2304+2048}")
        a(f"s_lshl_b32 s{sT0}, s{sWA}, 2\ns_add_u32 s{sT0}, s{sT0}, {LFL+48}\nv_mov_b32 v12, s{sT0}\nv_mov_b32 v13, 1")
        a(f"s_mul_i32 s{sT0}, s{sWA}, 13824")
        if RING:
            a(f"s_add_u32 s{sT0}, s{sT0}, {RING}")
        a(f"v_add_u32 v10, s{sT0}, v2\nv_add_u32 v11, s{sT0}, v9\nv_add_u32 v7, 48, v7")
        a("s_waitcnt lgkmcnt(0)")
        a("ds_write_b32 v12, v13")
        self.stamp(10)
        self.spin_lds(7, 8, "v_cmp_gt_u32 vcc, 1, v8")
        self.stamp(11)
        T = 64
        for dt in range(3):
            for hd in range(2):
                b = T + 10 * (2 * dt + hd)
                off = dt * 4608 + hd * 2304
                a(f"ds_read_b128 {vr(b,4)}, v10 offset:{off}")
                a(f"ds_read_b128 {vr(b+4,4)}, v10 offset:{off+1024}")
                a(f"ds_read_b32 v{b+8}, v11 offset:{off+2048}")
            if dt:
                a("s_waitcnt lgkmcnt(6)")
                self.acc_add(T, dt - 1)
        a("s_waitcnt lgkmcnt(0)")
        self.acc_add(T, 2)
        a(f"s_lshl2_add_u32 s{sT0}, s{sG}, s{sWA}\ns_lshl_b32 s{sT0}, s{sT0}, 5\ns_lshl1_add_u32 s{sT0}, s{sJ}, s{sT0}\ns_lshl_b32 s{sT0}, s{sT0}, 10\ns_add_u32 s{sT0}, s{sT0}, {OF}")
        a(f"s_mov_b32 s{sT5}, s{sT0}\nv_lshlrev_b32 v18, 7, v1")
        a(f"v_mov_b32 v14, v{aO+8}\nv_mov_b32 v15, v{aO+24}")
        a("s_nop 0")
        a(f"v_permlane32_swap_b32 v{aO+8}, v14")
        a(f"v_permlane32_swap_b32 v{aO+24}, v15")
        a(f"v_rcp_f32 v14, v{aO+8}\nv_rcp_f32 v16, v{aO+24}")
        a("s_nop 0")
        for hd in range(2):
            O = aO + 16 * hd
            for i in range(4):
                a(f"v_pk_mul_f32 {vr(O+2*i,2)}, {vr(O+2*i,2)}, {vr(14+2*hd,2)} op_sel_hi:[1,0]")
            for i in range(4):
                a(f"v_cvt_pk_bf16_f32 v{20+4*hd+i}, v{O+2*i}, v{O+2*i+1}")
            a(f"buffer_store_dwordx4 {vr(20+4*hd,4)}, v2, {srd(R_WS)}, s{sT0} offen offset:{1024*hd} sc1")
        a(f"s_lshl2_add_u32 s{sT0}, s{sP}, s{sWA}\ns_lshl_b32 s{sT0}, s{sT0}, 7\ns_add_u32 s{sT0}, s{sT0}, {FO}")
        a(f"v_mov_b32 v16, s{sE}\nv_mov_b32 v17, 0")
        self.stamp(12)
        a("s_waitcnt vmcnt(0)")
        a("s_mov_b64 exec, 1")
        a(f"buffer_store_dword v16, v17, {srd(R_WS)}, s{sT0} offen sc1")
        if self.ptouch & 4:
            a("s_mov_b64 exec, 0xffff")
            a(f"buffer_load_dword v19, v18, {srd(R_WS)}, s{sT5} offen sc1")
        self.stamp(8)
        self.stamp_flush()
        a("s_endpgm")
        self.a_slow()

    def acc_add(self, T, dt):
        a = self.a
        for hd in range(2):
            b = T + 10 * (2 * dt + hd)
            O = self.aO + 16 * hd
            for i in range(4):
                a(f"v_pk_add_f32 {vr(O+2*i,2)}, {vr(O+2*i,2)}, {vr(b+2*i,2)}")
            a(f"v_add_f32 v{O+8}, v{O+8}, v{b+8}")

    def a_slow(self):
        a = self.a
        aK, aV, aS, aQ, aO = self.aK, self.aV, self.aS, self.aQ, self.aO
        a("L_a_slow:")
        a("s_waitcnt vmcnt(0) lgkmcnt(0)")
        S, C = aS[0], aS[1]
        M = 10
        for t in range(8):
            a(f"v_mov_b32 v{M+t}, 0xff800000")
        a(f"s_mov_b32 s{sK}, {KF}\ns_mov_b32 s{sCNT}, 64")
        a("L_slow_max:")
        self.kv_load_k(0)
        a("s_waitcnt vmcnt(0)")
        for t in range(8):
            a(f"v_mfma_f32_32x32x16_bf16 {vr(S,16)}, {vr(aK[0],4)}, {vr(aQ+4*t,4)}, 0")
            a("s_nop 7\ns_nop 3")
            for i in range(8):
                a(f"v_max3_f32 v{M+t}, v{S+2*i}, v{S+2*i+1}, v{M+t}")
        a(f"s_add_u32 s{sK}, s{sK}, 1024\ns_sub_u32 s{sCNT}, s{sCNT}, 1\ns_cmp_lg_u32 s{sCNT}, 0")
        a("s_cbranch_scc1 L_slow_max")
        for t in range(8):
            a(f"v_mov_b32 v9, v{M+t}\ns_nop 1\nv_permlane32_swap_b32 v{M+t}, v9\nv_max_f32 v{M+t}, v{M+t}, v9")
        a(f"s_lshl_b32 s{sK}, s{sWA}, 14\ns_add_u32 s{sK}, s{sK}, {KF}\ns_mov_b32 s{sCNT}, 16")
        a("L_slow_pv:")
        self.kv_load_k(0)
        self.kv_load_v(0)
        a("s_waitcnt vmcnt(0)")
        for t in range(8):
            a(f"v_mfma_f32_32x32x16_bf16 {vr(S,16)}, {vr(aK[0],4)}, {vr(aQ+4*t,4)}, 0")
            a("s_nop 7\ns_nop 3")
            for i in range(16):
                a(f"v_sub_f32 v{S+i}, v{S+i}, v{M+t}")
            for i in range(16):
                a(f"v_exp_f32 v{S+i}, v{S+i}")
            a("s_nop 1")
            for u in range(2):
                a(f"v_smfmac_f32_32x32x32_bf16 {vr(aO+16*t,16)}, {vr(aV[0]+4*u,4)}, {vr(S+8*u,8)}, v{self.aIDX}")
        a(f"s_add_u32 s{sK}, s{sK}, 1024\ns_sub_u32 s{sCNT}, s{sCNT}, 1\ns_cmp_lg_u32 s{sCNT}, 0")
        a("s_cbranch_scc1 L_slow_pv")
        a("s_branch L_a_merge")

    def build(self):
        a = self.a
        if self.only == "A":
            self.prioA = 1
        self.prologue()
        self.g_early()
        self.g_main()
        self.a_main()
        a("L_end:")
        a("s_endpgm")
        a("L_code_end:")
        return a

HEADER = """; Fused LayerNorm + MQA attention + SwiGLU FFN, one persistent launch (256 workgroups x 8 waves).
; @launch grid=(256,1,1) block=(512,1,1) lds={lds}
.amdgcn_target "amdgcn-amd-amdhsa--gfx950"
.text
.globl {name}
.p2align 8
.type {name},@function
{name}:
"""
FOOTER = """.section .rodata,"a"
.p2align 6
.amdhsa_kernel {name}
  .amdhsa_next_free_vgpr 256
  .amdhsa_next_free_sgpr 102
  .amdhsa_accum_offset 256
  .amdhsa_group_segment_fixed_size 0
  .amdhsa_kernarg_size 96
  .amdhsa_user_sgpr_count 2
  .amdhsa_user_sgpr_kernarg_segment_ptr 1
  .amdhsa_system_sgpr_workgroup_id_x 1
.end_amdhsa_kernel
"""

def generate(check=True, **kw):
    g = Gen(**kw)
    a = g.build()
    if check:
        errs = check_hazards(a.lines) + check_waits(a.lines)
        for e in errs:
            print(e, file=sys.stderr)
        if errs:
            print(f"{len(errs)} problems", file=sys.stderr)
    return HEADER.format(name=NAME, lds=LDS_SIZE) + a.text() + FOOTER.format(name=NAME)

if __name__ == "__main__":
    ap = argparse.ArgumentParser()
    ap.add_argument("-o", default="parallel_sum__grouped_kv_mqa__glu_gated_swiglu__prompt.s")
    ap.add_argument("--ts", action="store_true")
    ap.add_argument("--slow", action="store_true")
    ap.add_argument("--prioA", type=int, default=1)
    ap.add_argument("--prioG", type=int, default=0)
    ap.add_argument("--nopf", action="store_true")
    ap.add_argument("--prioGhi", type=int, default=2)
    ap.add_argument("--early", type=int, default=0)
    ap.add_argument("--only", default="")
    ap.add_argument("--tlb", type=int, default=0)
    ap.add_argument("--clk", action="store_true")
    ap.add_argument("--rot", type=int, default=1)
    ap.add_argument("--psleep", type=int, default=0)
    ap.add_argument("--asleep", type=int, default=0)
    ap.add_argument("--gate", type=int, default=0)
    ap.add_argument("--xnt", default="nt")
    ap.add_argument("--wnt", default="")
    ap.add_argument("--l2pf", type=int, default=0)
    ap.add_argument("--n0", type=int, default=-1)
    ap.add_argument("--gtrace", action="store_true")
    ap.add_argument("--nodma", action="store_true")
    ap.add_argument("--rotup", type=int, default=0)
    ap.add_argument("--pf0", type=int, default=0)
    ap.add_argument("--amap", type=int, default=8)
    ap.add_argument("--ptouch", type=int, default=0)
    ap.add_argument("--dbg", action="store_true")
    ap.add_argument("--wq", default="early")
    ap.add_argument("--ring", default="afterx")
    args = ap.parse_args()
    txt = generate(ts=args.ts, force_slow=args.slow, prioA=args.prioA, prioG=args.prioG, code_pf=not args.nopf, prioGhi=args.prioGhi, early=args.early, only=args.only, tlb=args.tlb, clk=args.clk, rot=args.rot, psleep=args.psleep, gate=args.gate, asleep=args.asleep, wq_at=args.wq, ring_at=args.ring, xnt=args.xnt, wnt=args.wnt, l2pf=bool(args.l2pf), n0=args.n0, gtrace=args.gtrace, nodma=args.nodma, rotup=args.rotup, pf0=args.pf0, amap=args.amap, ptouch=args.ptouch, dbg=args.dbg)
    open(args.o, "w").write(txt)
    print("wrote", args.o, len(txt), "bytes")
```

```python
import re

class Asm:
    def __init__(self):
        self.lines = []
    def __call__(self, s):
        for ln in s.split("\n"):
            ln = ln.strip()
            if ln:
                self.lines.append(ln)
    def text(self):
        out = []
        for ln in self.lines:
            if ln.endswith(":") or ln.startswith("."):
                out.append(ln)
            else:
                out.append("    " + ln)
        return "\n".join(out) + "\n"

class Vm:
    def __init__(self, a):
        self.a = a
        self.q = []
    def issue(self, tag):
        self.q.append(tag)
    def need(self, tag):
        idx = None
        for i, t in enumerate(self.q):
            if t == tag:
                idx = i
        if idx is None:
            return None
        n = len(self.q) - 1 - idx
        return n
    def wait(self, tag, extra=""):
        n = self.need(tag)
        if n is None:
            if extra:
                self.a(f"s_waitcnt {extra}")
            return
        assert n <= 63, (tag, n)
        self.a(f"s_waitcnt vmcnt({n}) {extra}".strip())
        self.q = self.q[len(self.q) - n:] if n else []
    def drain(self):
        self.a("s_waitcnt vmcnt(0)")
        self.q = []

class Lg(Vm):
    def cnt(self, tag):
        n = self.need(tag)
        if n is None:
            return None
        assert n <= 15, (tag, n)
        self.q = self.q[len(self.q) - n:] if n else []
        return n

def waitcnt(a, vm=None, vtag=None, lg=None, ltag=None):
    parts = []
    if vm is not None:
        n = vm.need(vtag)
        if n is not None:
            assert n <= 63
            vm.q = vm.q[len(vm.q) - n:] if n else []
            parts.append(f"vmcnt({n})")
    if lg is not None:
        n = lg.cnt(ltag)
        if n is not None:
            parts.append(f"lgkmcnt({n})")
    if parts:
        a("s_waitcnt " + " ".join(parts))

REG_RE = re.compile(r"^(-?)(\|?)([vsa])(\d+)(\|?)$")
RNG_RE = re.compile(r"^(-?)([vsa])\[(\d+):(\d+)\]$")
def regs_of(op):
    op = op.strip()
    if op.startswith("abs(") and op.endswith(")"):
        op = op[4:-1]
    m = REG_RE.match(op)
    if m:
        return [(m.group(3), int(m.group(4)))]
    m = RNG_RE.match(op)
    if m:
        return [(m.group(2), i) for i in range(int(m.group(3)), int(m.group(4)) + 1)]
    if op == "vcc":
        return [("s", "vcc")]
    if op in ("exec", "exec_lo", "exec_hi"):
        return [("s", "exec")]
    if op == "m0":
        return [("s", "m0")]
    return []

TRANS = ("v_exp_f32", "v_log_f32", "v_rcp_f32", "v_rsq_f32", "v_sqrt_f32", "v_sin_f32", "v_cos_f32")
class Ins:
    def __init__(self, text, idx):
        self.text = text; self.idx = idx
        t = text.split(";")[0].strip()
        self.label = None
        if t.endswith(":"):
            self.label = t[:-1]; self.op = None; return
        if t.startswith("."):
            self.op = None; return
        parts = t.split(None, 1)
        self.op = parts[0]
        rest = parts[1] if len(parts) > 1 else ""
        ops = []; depth = 0; cur = ""
        for ch in rest:
            if ch == "[": depth += 1
            if ch == "]": depth -= 1
            if ch == "," and depth == 0:
                ops.append(cur.strip()); cur = ""
            else:
                cur += ch
        if cur.strip(): ops.append(cur.strip())
        mods = ""
        if ops:
            last = ops[-1].split()
            if len(last) > 1:
                ops[-1] = last[0]; mods = " ".join(last[1:])
        self.ops = ops; self.mods = mods
        op = self.op
        self.w = []; self.r = []
        self.cls = "other"
        self.states = 1
        self.mfma_pass = 0; self.srcC = []; self.srcAB = []
        self.vm = False; self.lgkm = False; self.ld_dst = []; self.st_data = []; self.dma = False
        R = regs_of
        if op == "s_nop":
            self.states = int(ops[0]) + 1; self.cls = "salu"
        elif op.startswith("v_mfma") or op.startswith("v_smfmac"):
            self.cls = "mfma"
            self.mfma_pass = 8 if "32x32" in op else 4
            self.w = R(ops[0])
            self.srcAB = R(ops[1]) + R(ops[2])
            if op.startswith("v_smfmac"):
                self.srcAB += R(ops[3]); self.srcC = R(ops[0])
            else:
                self.srcC = R(ops[3])
            self.r = self.srcAB + self.srcC
        elif op.startswith("v_cmp"):
            self.cls = "valu"; self.w = R(ops[0]); self.r = sum((R(o) for o in ops[1:]), [])
        elif op.startswith(("v_add_co", "v_addc_co")):
            self.cls = "valu"; self.w = R(ops[0]) + R(ops[1]); self.r = sum((R(o) for o in ops[2:]), [])
        elif op.startswith("v_permlane") and "swap" in op:
            self.cls = "valu"; self.w = R(ops[0]) + R(ops[1]); self.r = list(self.w)
        elif op.startswith("v_"):
            self.cls = "valu"; self.w = R(ops[0]); self.r = sum((R(o) for o in ops[1:]), [])
            if op.startswith(("v_fmac", "v_dot2c")) or "_dpp" in op:
                self.r += R(ops[0])
            if op.startswith("v_cndmask") and len(ops) == 3:
                self.r += [("s", "vcc")]
        elif op.startswith("ds_read"):
            self.cls = "ds"; self.lgkm = True; self.ld_dst = R(ops[0]); self.r = R(ops[1])
        elif op.startswith("ds_write") or op.startswith("ds_add"):
            self.cls = "ds"; self.lgkm = True; self.r = sum((R(o) for o in ops), [])
        elif op.startswith("buffer_load"):
            self.cls = "vmem"; self.vm = True
            if "lds" in mods.split():
                self.dma = True; self.r = sum((R(o) for o in ops), []) + [("s", "m0")]
            else:
                self.ld_dst = R(ops[0]); self.r = sum((R(o) for o in ops[1:]), [])
        elif op.startswith("buffer_store"):
            self.cls = "vmem"; self.vm = True; self.r = sum((R(o) for o in ops), [])
            if "x4" in op or "x3" in op: self.st_data = R(ops[0])
        elif op.startswith("global_load"):
            self.cls = "vmem"; self.vm = True; self.ld_dst = R(ops[0]); self.r = sum((R(o) for o in ops[1:]), [])
        elif op.startswith("global_store"):
            self.cls = "vmem"; self.vm = True; self.r = sum((R(o) for o in ops), [])
            if "x4" in op or "x3" in op: self.st_data = R(ops[1])
        elif op.startswith("s_load") or op.startswith("s_mem"):
            self.cls = "smem"; self.lgkm = True; self.ld_dst = R(ops[0]); self.r = sum((R(o) for o in ops[1:]), [])
        elif op in ("s_waitcnt", "s_barrier", "s_setprio", "s_endpgm", "s_branch", "s_sleep") or op.startswith("s_cbranch"):
            self.cls = "ctl"
            if op == "s_cbranch_vccnz" or op == "s_cbranch_vccz": self.r = [("s", "vcc")]
        elif op.startswith("s_cmp") or op.startswith("s_bitcmp"):
            self.cls = "salu"; self.r = sum((R(o) for o in ops), [])
        elif op.startswith("s_"):
            self.cls = "salu"; self.w = R(ops[0]); self.r = sum((R(o) for o in ops[1:]), [])
        else:
            raise ValueError("unknown op " + text)

def parse(lines):
    ins = [Ins(t, i) for i, t in enumerate(lines)]
    labels = {x.label: i for i, x in enumerate(ins) if x.label}
    return ins, labels

def succ(ins, labels, i):
    x = ins[i]
    if x.op is None:
        return [i + 1] if i + 1 < len(ins) else []
    if x.op == "s_endpgm": return []
    if x.op == "s_branch": return [labels[x.ops[0]]]
    if x.op.startswith("s_cbranch"): return [i + 1, labels[x.ops[0]]]
    return [i + 1] if i + 1 < len(ins) else []

def required(p, c):
    need = 0; why = ""
    def upd(n, w):
        nonlocal need, why
        if n > need: need, why = n, w
    pw = set(p.w)
    pwv = {x for x in pw if x[0] == "v"}
    pws = {x for x in pw if x[0] == "s"}
    if p.cls == "valu":
        if c.cls == "mfma" and pwv & set(c.r): upd(2, "valu->mfma")
        if c.cls == "valu":
            if p.op.replace("_e32", "").replace("_e64", "") in TRANS and c.op.replace("_e32", "") not in TRANS and pwv & set(c.r): upd(1, "trans->valu")
            if c.op.startswith(("v_readfirstlane", "v_readlane")) and pwv & set(c.r): upd(1, "valu->readlane")
            if c.op.startswith("v_permlane") and pwv & set(c.r): upd(2, "valu->permlane")
            if "_dpp" in c.op and pwv & set(c.r): upd(2, "valu->dpp")
            if pws & set(c.r): upd(2, "valu sgpr->valu")
        if c.cls == "vmem" and pws & set(c.r): upd(5, "valu sgpr->vmem")
        if p.op.startswith("v_dot") and c.cls in ("valu", "mfma"):
            same = c.op == p.op
            if same:
                if pwv & set(sum((regs_of(o_) for o_ in c.ops[1:3]), [])): upd(3, "dot->dot AB")
            elif pwv & (set(c.r) | set(c.w)): upd(3, "dot->other")
    if p.cls == "mfma":
        n_valu = 12 if p.mfma_pass == 8 else 8
        n_c = 10 if p.mfma_pass == 8 else 6
        if c.cls == "valu" and pw & (set(c.r) | set(c.w)): upd(n_valu, "mfma->valu")
        if c.cls in ("vmem", "ds") and pw & (set(c.r) | set(c.ld_dst)): upd(n_valu, "mfma->mem")
        if c.cls == "mfma":
            if pw & set(c.srcAB): upd(n_valu, "mfma->mfma AB")
            if pw & set(c.srcC):
                if not (set(c.srcC) == pw and c.mfma_pass == p.mfma_pass): upd(n_c, "mfma->mfma C overlap")
        if c.cls == "valu" and set(p.srcC) & set(c.w): upd(7 if p.mfma_pass == 8 else 3, "mfma C WAR")
    if p.cls == "salu" and ("s", "m0") in pw and c.op is not None and c.dma: upd(1, "m0->dma")
    if p.st_data:
        if c.cls == "valu" and set(p.st_data) & set(c.w): upd(2, "store data WAR valu")
        elif set(p.st_data) & (set(c.w) | set(c.ld_dst)): upd(1, "store data WAR")
    return need, why

def check_hazards(lines):
    ins, labels = parse(lines)
    errs = []
    for i, p in enumerate(ins):
        if p.op is None or p.cls in ("ctl", "smem", "other"): continue
        if p.cls == "salu" and ("s", "m0") not in p.w: continue
        if p.cls in ("vmem", "ds") and not p.st_data: continue
        seen = {}
        stack = [(j, 0) for j in succ(ins, labels, i)]
        while stack:
            j, d = stack.pop()
            if d >= 12: continue
            if j in seen and seen[j] <= d: continue
            seen[j] = d
            c = ins[j]
            if c.op is not None:
                need, why = required(p, c)
                if need > d:
                    errs.append(f"HAZARD {why}: need {need} have {d}: [{i}] {p.text}  ->  [{j}] {c.text}")
                nd = d + c.states
            else:
                nd = d
            for k in succ(ins, labels, j):
                stack.append((k, nd))
    return errs

WAIT_RE = re.compile(r"(vmcnt|lgkmcnt)\((\d+)\)")
def check_waits(lines, max_states=400000):
    ins, labels = parse(lines)
    errs = set()
    seen = set()
    stack = [(0, (), (), frozenset())]
    n = 0
    while stack:
        i, vq, lq, back = stack.pop()
        while True:
            n += 1
            if n > max_states * 50:
                errs.add("check_waits: too many states"); return sorted(errs)
            x = ins[i]
            if x.label:
                key = (i, vq, lq)
                if key in seen: break
                seen.add(key)
            if x.op is not None:
                touched = set(x.r) | set(x.w) | set(x.ld_dst)
                for q, nm in ((vq, "vm"), (lq, "lgkm")):
                    for (dst, src) in q:
                        if dst & touched:
                            if not (dst & (set(x.r) | set(x.w))) and nm == ("vm" if x.vm else "lgkm"):
                                continue
                            errs.add(f"WAIT {nm}: [{src}] {ins[src].text} still in flight at [{i}] {x.text}")
                if x.op == "s_waitcnt":
                    for m in WAIT_RE.finditer(x.text):
                        c = int(m.group(2))
                        if m.group(1) == "vmcnt": vq = vq[len(vq) - c:] if c and len(vq) > c else (vq if c else ())
                        else:
                            if any(ins[s].cls == "smem" for _, s in lq) and c != 0:
                                pass
                            else:
                                lq = lq[len(lq) - c:] if c and len(lq) > c else (lq if c else ())
                if x.vm: vq = (vq + ((frozenset(x.ld_dst), i),))[-64:]
                if x.lgkm: lq = (lq + ((frozenset(x.ld_dst), i),))[-40:]
            ss = succ(ins, labels, i)
            if not ss: break
            for k in ss[1:]:
                stack.append((k, vq, lq, back))
            i = ss[0]
    return sorted(errs)
```

```python
import sys, struct, argparse
from asmlib import Asm, Vm, Lg, waitcnt, check_hazards, check_waits

NAME = "parallel_sum__grouped_kv_mqa__glu_gated_swiglu__prompt_kernel"

def f2u(x):
    return struct.unpack("<I", struct.pack("<f", x))[0]

FL = 0x0
F0 = 0x1000
FH = 0x10000
FO = 0x30000
FX = 0x50000
TS = 0x60000
XN = 0x100000
KF = 0x300000
VF = 0x310000
OF = 0x400000
HF = 0x600000
WS_SIZE = 0x1000000
RING = 0
WQI = 65536
WKV = 98304
XROW = 131072
PITCH = 1040
QX = 140288
LFL = 148480
L_GCNT, L_QMAX, L_KMAX, L_MFL, L_WQF, L_VFL, L_PUB, L_GATE, L_ADONE, L_ASTART, L_ROW, L_STG, L_R0 = 0, 16, 32, 48, 64, 80, 88, 96, 112, 128, 144, 160, 176
LDS_SIZE = 163840
RB0 = 65536

R_X, R_WS, R_WQ, R_WK, R_WV, R_W1, R_W3, R_W2, R_WO, R_OUT = [4 * i + 4 for i in range(10)]
sW, sG, sJ, sP, sE = 44, 45, 46, 47, 48
sMASK = 49
sT0, sT1, sT2, sT3, sT4, sT5 = 50, 51, 52, 53, 54, 55
sCNT = 56
sX8, sI = 57, 58
sROT = 59
sXM = 60
sNL2 = 62
sONE = 64
sQS = 66
sBASE, sW4096 = 68, 69
sH0, sH1, sO0, sO1 = 70, 71, 72, 73
sW2, sWO, sRB, sOUT = 74, 75, 76, 77
sK, sWA = 78, 79
sPC = 80
sTS = 84
sPCX = 98
sIDX, sKB, sFH = 3, 100, 101
sRX, sRY, sNN, sKS = 0, 1, 2, 80
sHS, sXB, sFXA = 81, 82, 83

def srd(r):
    return f"s[{r}:{r+3}]"
def vr(a, n):
    return f"v[{a}:{a+n-1}]" if n > 1 else f"v{a}"

LOG2E = 1.4426950408889634
THRESH2 = 60.0 * 60.0
SPIN_G = 200000
SPIN_L = 2000000


class Gen:
    def __init__(self, **o):
        d = dict(ts=False, slow=False, prioA=1, prioG=0, prioGhi=2, code_pf=1, rotup=1, rot=1, n0=-1, asleep=0,
                 xnt="nt", wq_at="pub", ring01="none", gtrace=False, only="", dbg=False, amap=2, lnfast=1, peel=1, kvlate=0, astart=1, atouch=0, xoff=1, trace=0, LD=3, fill=1, p0=13, t0=0, t1=1, tx=1, tnt='', vpos=2, kpos=1, hiup=0, hidown=0, probe=-1, pw=0, pm=20, ost='', direct=0, ringat='stg', sdepth=4, aprio0=3, wqw=0, gate_at=0, dlate=1, gprio0=1, hack='', nxor=0, txor=0, tk=1, pfshare=32, vt=4, deep=-1, pk1=4, skiplast=0, dstep=2, w2pre='8x4+12x2+13x2', hpre=0, LDW=8, dtrace=0, batch=0, nP=28, fastred=1, mprio=0, lastprio=0, nE=0, twq=0, gs=0, dup=0, dupf='', r0at=-1, wqlate=1, nosleep=1)
        d.update(o)
        if d["direct"]:
            for k, v in dict(amap=2, kvlate=0, astart=0).items():
                if k not in o:
                    d[k] = v
        self.o = type("O", (), d)
        self.a = Asm()
        self.uid = 0

    def lab(self, s):
        self.uid += 1
        return f"L_{s}_{self.uid}"

    def stamp(self, i):
        if self.o.ts:
            self.a(f"s_memrealtime s[{sPCX}:{sPCX+1}]\ns_waitcnt lgkmcnt(0)\ns_mov_b32 s{sTS+i}, s{sPCX}")

    def trace_pt(self, vm, idx, dyn=None):
        if not self.o.trace or (vm is not None and self.o.trace == 2):
            return
        a = self.a
        a(f"s_memrealtime s[{sPCX}:{sPCX+1}]\ns_memtime s[{sTS+10}:{sTS+11}]\ns_waitcnt lgkmcnt(0)")
        a(f"s_lshl3_add_u32 s{sTS+12}, s{sP}, s{sW}\ns_lshl_b32 s{sTS+12}, s{sTS+12}, 6\ns_add_u32 s{sTS+12}, s{sTS+12}, {idx}")
        if dyn is not None:
            a(f"s_add_u32 s{sTS+12}, s{sTS+12}, s{dyn}")
        a(f"s_lshl_b32 s{sTS+12}, s{sTS+12}, 3\ns_add_u32 s{sTS+12}, s{sTS+12}, {0xE00000}")
        a(f"s_mov_b64 exec, 1\nv_mov_b32 v{self.trv}, s{sPCX}\nv_mov_b32 v{self.trv+1}, s{sTS+10}\nv_mov_b32 v{self.trv+2}, 0")
        a(f"buffer_store_dwordx2 v[{self.trv}:{self.trv+1}], v{self.trv+2}, {srd(R_WS)}, s{sTS+12} offen\ns_mov_b64 exec, -1")
        if vm is not None:
            vm.issue("trace")

    def stamp_flush(self):
        if not self.o.ts:
            return
        a = self.a
        if self.o.probe >= 0:
            L, Lx = self.lab("probe"), self.lab("probex")
            a(f"s_lshl3_add_u32 s{sT0}, s{sP}, s{sW}\ns_cmp_lg_u32 s{sT0}, {100*8 + self.o.pw}\ns_cbranch_scc1 {Lx}")
            a(f"s_sub_u32 s{sT1}, s{sTS+self.o.probe}, s{sTS}\ns_mul_i32 s{sT1}, s{sT1}, {self.o.pm}")
            a(f"s_memrealtime s[{sPCX}:{sPCX+1}]\ns_waitcnt lgkmcnt(0)\ns_mov_b32 s{sT2}, s{sPCX}")
            a(f"{L}:\ns_memrealtime s[{sPCX}:{sPCX+1}]\ns_waitcnt lgkmcnt(0)\ns_sub_u32 s{sT3}, s{sPCX}, s{sT2}\ns_cmp_lt_u32 s{sT3}, s{sT1}\ns_cbranch_scc1 {L}")
            a(f"{Lx}:")
            return
        a(f"s_lshl_b32 s{sT0}, s{sP}, 3\ns_add_u32 s{sT0}, s{sT0}, s{sW}\ns_lshl_b32 s{sT0}, s{sT0}, 6\ns_add_u32 s{sT0}, s{sT0}, {TS}")
        a("s_mov_b64 exec, 1")
        a("v_mov_b32 v2, 0")
        for i in range(16):
            a(f"v_mov_b32 v3, s{sTS+i}")
            a(f"buffer_store_dword v3, v2, {srd(R_WS)}, s{sT0} offen offset:{4*i}")
        a("s_waitcnt vmcnt(0)")

    def reduce64(self, op, v, t):
        a = self.a
        for ctl in ("quad_perm:[1,0,3,2]", "quad_perm:[2,3,0,1]", "row_half_mirror", "row_mirror"):
            a("s_nop 1")
            a(f"{op}_dpp v{v}, v{v}, v{v} {ctl} row_mask:0xf bank_mask:0xf")
        for sw in ("v_permlane16_swap_b32", "v_permlane32_swap_b32"):
            a(f"v_mov_b32 v{t}, v{v}")
            a("s_nop 1")
            a(f"{sw} v{v}, v{t}")
            a(f"{op} v{v}, v{v}, v{t}")

    def reduce64x2(self, v0, t0, v1, t1):
        a = self.a
        a("s_nop 1")
        for ctl in ("quad_perm:[1,0,3,2]", "quad_perm:[2,3,0,1]", "row_half_mirror", "row_mirror"):
            a(f"v_add_f32_dpp v{v0}, v{v0}, v{v0} {ctl} row_mask:0xf bank_mask:0xf")
            a(f"v_add_f32_dpp v{v1}, v{v1}, v{v1} {ctl} row_mask:0xf bank_mask:0xf")
            a("s_nop 0")
        for sw in ("v_permlane16_swap_b32", "v_permlane32_swap_b32"):
            a(f"v_mov_b32 v{t0}, v{v0}\nv_mov_b32 v{t1}, v{v1}\ns_nop 0")
            a(f"{sw} v{v0}, v{t0}\n{sw} v{v1}, v{t1}")
            a(f"v_add_f32 v{v0}, v{v0}, v{t0}\nv_add_f32 v{v1}, v{v1}, v{t1}")

    def poll_global(self, vaddr, soff, vdst, ndw, vm, lanes=64, sleep=0, word=0, first_issued=None):
        a = self.a
        L, Lo, Lc = self.lab("poll"), self.lab("pollx"), self.lab("pollc")
        ld = "buffer_load_dword" if ndw == 1 else "buffer_load_dwordx2"
        if first_issued is not None:
            vm.wait(first_issued)
        a(f"s_mov_b32 s{sCNT}, 0")
        if lanes < 64:
            a(f"s_mov_b64 exec, {(1 << lanes) - 1:#x}")
        if first_issued is not None:
            a(f"v_cmp_ne_u32 vcc, s{sE}, v{vdst+word}")
            a(f"s_cbranch_vccz {Lo}")
        elif sleep:
            a(f"s_branch {Lc}")
        a(f"{L}:")
        if sleep:
            a(f"s_sleep {sleep}")
            a(f"{Lc}:")
        a(f"{ld} {vr(vdst, ndw)}, v{vaddr}, {srd(R_WS)}, {soff} offen sc1")
        a(f"s_add_u32 s{sCNT}, s{sCNT}, 1")
        a("s_waitcnt vmcnt(0)")
        a(f"v_cmp_ne_u32 vcc, s{sE}, v{vdst+word}")
        a(f"s_cmp_gt_u32 s{sCNT}, {SPIN_G}")
        a(f"s_cbranch_scc1 {Lo}")
        a(f"s_cbranch_vccnz {L}")
        a(f"{Lo}:")
        if lanes < 64:
            a("s_mov_b64 exec, -1")
        if first_issued is None:
            vm.q = []

    def peek_global(self, vaddr, soff, vdst, ndw, vm, tag, lanes):
        a = self.a
        ld = "buffer_load_dword" if ndw == 1 else "buffer_load_dwordx2"
        a(f"s_mov_b64 exec, {(1 << lanes) - 1:#x}")
        a(f"{ld} {vr(vdst, ndw)}, v{vaddr}, {srd(R_WS)}, {soff} offen sc1")
        a("s_mov_b64 exec, -1")
        vm.issue(tag)

    def spin_lds(self, vaddr, vdst, cmp, sleep=0, off=0, peeked=False):
        a = self.a
        L, Lo = self.lab("spin"), self.lab("spinx")
        o = f" offset:{off}" if off else ""
        a(f"s_mov_b32 s{sCNT}, 0")
        if peeked:
            a(cmp)
            a(f"s_cbranch_vccz {Lo}")
        a(f"{L}:")
        if sleep and not self.o.nosleep:
            a(f"s_sleep {sleep}")
        a(f"ds_read_b32 v{vdst}, v{vaddr}{o}")
        a(f"s_add_u32 s{sCNT}, s{sCNT}, 1")
        a("s_waitcnt lgkmcnt(0)")
        a(cmp)
        a(f"s_cmp_gt_u32 s{sCNT}, {SPIN_L}")
        a(f"s_cbranch_scc1 {Lo}")
        a(f"s_cbranch_vccnz {L}")
        a(f"{Lo}:")

    def flag_store(self, vdata, ndw, vzero, soff, off=0):
        a = self.a
        st = "buffer_store_dword" if ndw == 1 else "buffer_store_dwordx2"
        o = f" offset:{off}" if off else ""
        a("s_mov_b64 exec, 1")
        a(f"{st} {vr(vdata, ndw)}, v{vzero}, {srd(R_WS)}, {soff} offen{o} sc1")
        a("s_mov_b64 exec, -1")

    def prologue(self):
        a, o = self.a, self.o
        a("s_cmp_ge_u32 s2, 256")
        a("s_cbranch_scc1 L_end")
        if o.ts:
            a(f"s_memrealtime s[{sPCX}:{sPCX+1}]")
        for r, off in ((R_X, 0), (R_WK, 16), (R_WV, 24), (R_WS, 88), (R_WQ, 8), (R_W1, 48), (R_W3, 56), (R_W2, 64), (R_WO, 32), (R_OUT, 72)):
            a(f"s_load_dwordx2 s[{r}:{r+1}], s[0:1], {off}")
        a(f"s_getpc_b64 s[{sPC}:{sPC+1}]")
        a("L_pc:")
        a("v_lshrrev_b32 v3, 6, v0")
        a("v_and_b32 v1, 63, v0")
        a(f"v_readfirstlane_b32 s{sW}, v3")
        a("v_lshlrev_b32 v2, 4, v1")
        a(f"s_and_b32 s{sX8}, s2, 7\ns_lshr_b32 s{sI}, s2, 3")
        if o.amap == 8:
            a(f"s_and_b32 s{sT0}, s{sX8}, 1\ns_and_b32 s{sT1}, s{sI}, 7\ns_lshl3_add_u32 s{sG}, s{sT0}, s{sT1}")
            a(f"s_lshr_b32 s{sT0}, s{sX8}, 1\ns_lshr_b32 s{sT1}, s{sI}, 3\ns_lshl2_add_u32 s{sJ}, s{sT0}, s{sT1}")
        elif o.amap == 4:
            a(f"s_and_b32 s{sT0}, s{sX8}, 3\ns_and_b32 s{sT1}, s{sI}, 3\ns_lshl2_add_u32 s{sG}, s{sT0}, s{sT1}")
            a(f"s_lshr_b32 s{sT0}, s{sX8}, 2\ns_lshr_b32 s{sT1}, s{sI}, 2\ns_lshl3_add_u32 s{sJ}, s{sT0}, s{sT1}")
        else:
            a(f"s_lshr_b32 s{sT1}, s{sI}, 4\ns_lshl1_add_u32 s{sG}, s{sX8}, s{sT1}\ns_and_b32 s{sJ}, s{sI}, 15")
        a(f"s_lshl4_add_u32 s{sP}, s{sG}, s{sJ}")
        for r, size in ((R_X, 2097152), (R_WK, 16384), (R_WV, 16384), (R_WS, WS_SIZE), (R_WQ, 524288), (R_W1, 1835008),
                        (R_W3, 1835008), (R_W2, 1835008), (R_WO, 524288), (R_OUT, 2097152)):
            a(f"s_mov_b32 s{r+2}, {size}\ns_mov_b32 s{r+3}, 0x20000")
        a(f"s_lshl3_add_u32 s{sT0}, s{sP}, s{sW}\ns_lshl_b32 s{sT0}, s{sT0}, 10")
        a(f"s_mov_b32 s{sMASK}, 0xffff0000")
        a("s_waitcnt lgkmcnt(0)")
        if o.ts:
            a(f"s_mov_b32 s{sTS}, s{sPCX}")
            for i in range(1, 14):
                a(f"s_mov_b32 s{sTS+i}, 0")
        if o.direct:
            return self.prologue_direct()
        a(f"buffer_load_dwordx4 v[64:67], v2, {srd(R_X)}, s{sT0} offen {o.xnt}")
        a(f"s_load_dword s{sE}, s[{R_WS}:{R_WS+1}], {FL}")
        for r in (3, 4, 5, 6, 7, 8, 9, 17):
            a(f"v_mov_b32 v{r}, 0")
        a(f"s_cmp_lt_u32 s{sW}, 4")
        a("s_cbranch_scc1 L_g_early")
        self.a_early()
        a("L_ln:")
        self.stamp(1)
        self.layernorm()
        a(f"s_cmp_lt_u32 s{sW}, 4")
        a("s_cbranch_scc1 L_g_bar1")
        a("s_waitcnt vmcnt(0)")
        a("s_barrier")
        self.stamp(2)
        a(f"s_cmp_ge_u32 s{sW}, 6")
        a("s_cbranch_scc1 L_xn_store")
        self.kv_proj()
        if o.ring01 == "apub":
            self.a_ring0()
        a("L_xn_store:")
        self.xn_store()

    def prologue_direct(self):
        a, o = self.a, self.o
        for r in (3, 4, 5, 6, 7, 8, 9, 17):
            a(f"v_mov_b32 v{r}, 0")
        a(f"s_cmp_lt_u32 s{sW}, 4")
        a("s_cbranch_scc1 L_g_early")
        a(f"s_setprio {o.aprio0}")
        a(f"s_sub_u32 s{sWA}, s{sW}, 4\ns_lshl2_add_u32 s{sT0}, s{sP}, s{sWA}\ns_lshl_b32 s{sT0}, s{sT0}, 11")
        a(f"buffer_load_dwordx4 v[64:67], v2, {srd(R_X)}, s{sT0} offen")
        a(f"buffer_load_dwordx4 v[96:99], v2, {srd(R_X)}, s{sT0} offen offset:1024")
        a(f"s_load_dword s{sE}, s[{R_WS}:{R_WS+1}], {FL}")
        self.a_early()
        self.stamp(1)
        self.layernorm2()
        a("v_mov_b32 v10, 1")
        a(f"s_lshl_b32 s{sT0}, s{sWA}, 2\ns_add_u32 s{sT0}, s{sT0}, {LFL}\nv_mov_b32 v11, s{sT0}")
        a(f"v_and_b32 v12, 3, v1\nv_lshlrev_b32 v12, 2, v12\nv_add_u32 v12, {LFL+L_ROW}, v12")
        a("s_waitcnt vmcnt(0) lgkmcnt(0)")
        a(f"ds_write_b32 v11, v10 offset:{L_ROW}")
        a(f"s_cmp_ge_u32 s{sW}, 6")
        a("s_cbranch_scc1 L_xn_store")
        self.spin_lds(12, 13, "v_cmp_gt_u32 vcc, 1, v13")
        self.stamp(2)
        self.kv_proj()
        a("L_xn_store:")
        self.wq_by_a()

    def wq_by_a(self):
        a, o = self.a, self.o
        a(f"v_mov_b32 v10, 1\ns_lshl_b32 s{sT0}, s{sWA}, 2\ns_add_u32 s{sT0}, s{sT0}, {LFL}\nv_mov_b32 v11, s{sT0}")
        if o.wqw:
            a(f"v_mov_b32 v12, {LFL+L_VFL}")
            self.spin_lds(12, 13, "v_cmp_gt_u32 vcc, 1, v13", sleep=1)
        a("v_lshrrev_b32 v18, 2, v1\nv_lshlrev_b32 v18, 10, v18\nv_and_b32 v19, 3, v1\nv_lshl_add_u32 v17, v19, 4, v18")
        a(f"s_lshl_b32 s{sT4}, s{sJ}, 6\ns_and_b32 s{sT2}, s{sWA}, 1\ns_lshl_b32 s{sT1}, s{sT2}, 14\ns_add_u32 m0, s{sT1}, {WQI}")
        self.rot_expr(sT5)
        for n in range(16):
            if n:
                a("s_add_u32 m0, m0, 1024")
            if n & 3 == 0:
                a(f"s_lshl2_add_u32 s{sT0}, s{sT2}, s{sT5}\ns_add_u32 s{sT0}, s{sT0}, {n>>2}\ns_and_b32 s{sT0}, s{sT0}, 7\ns_lshl_b32 s{sT0}, s{sT0}, 16\ns_add_u32 s{sT0}, s{sT0}, s{sT4}")
            else:
                a(f"s_add_u32 s{sT0}, s{sT0}, 16384")
            a(f"buffer_load_dwordx4 v17, {srd(R_WQ)}, s{sT0} offen lds")
        if o.wqlate and not o.direct:
            return
        a("s_waitcnt vmcnt(0)")
        if o.direct:
            self.stamp(3)
        a(f"ds_write_b32 v11, v10 offset:{L_WQF - 8}")

    def rot_expr(self, sd):
        a, o = self.a, self.o
        if not o.rotup:
            a(f"s_mov_b32 s{sd}, 0")
        elif o.direct:
            a(f"s_add_u32 s{sd}, s{sJ}, s{sG}\ns_and_b32 s{sd}, s{sd}, {o.rotup}")
        else:
            a(f"s_lshl1_add_u32 s{sd}, s{sJ}, s{sG}\ns_and_b32 s{sd}, s{sd}, {o.rotup}")

    def layernorm2(self):
        import re
        saved = self.a
        streams = []
        for k in range(2):
            t = Asm()
            self.a = t
            self.layernorm(row=k)
            streams.append(t.lines)
        self.a = saved
        l0, l1 = streams
        def shift(ln):
            return re.sub(r"\bv(\d+)\b|\[(\d+):(\d+)\]", lambda m: (f"v{int(m.group(1))+32}" if int(m.group(1)) >= 64 else m.group(0)) if m.group(1)
                          else (f"[{int(m.group(2))+32}:{int(m.group(3))+32}]" if int(m.group(2)) >= 64 else m.group(0)), ln)
        assert len(l0) == len(l1)
        for x, y in zip(l0, l1):
            if x.startswith("s_nop"):
                n = int(x.split()[1])
                if n >= 1 and False:
                    saved(x)
                saved("s_nop 0") if n >= 1 else None
                continue
            saved(x)
            saved(shift(y) if y.startswith(("v_", "ds_")) else y)
        saved("s_waitcnt lgkmcnt(0)")
        saved(f"s_mul_i32 s{sE}, s{sE}, 0x9E3779B1\ns_add_u32 s{sE}, s{sE}, 0x7F4A7C15")

    def layernorm(self, row=None):
        a = self.a
        X, F, D = 64, 68, 76
        sT0, sT1 = (50, 51) if not row else (52, 53)
        if row is None:
            rowaddr = f"s_mul_i32 s{sT0}, s{sW}, {PITCH}\ns_add_u32 s{sT0}, s{sT0}, {XROW}"
        else:
            rowaddr = f"s_mul_i32 s{sT0}, s{sWA}, {2*PITCH}\ns_add_u32 s{sT0}, s{sT0}, {XROW + row*PITCH}"
        for i in range(4):
            a(f"v_lshlrev_b32 v{F+2*i}, 16, v{X+i}")
            a(f"v_and_b32 v{F+2*i+1}, s{sMASK}, v{X+i}")
        if self.o.lnfast:
            a(f"v_readfirstlane_b32 s{sT1}, v{F}")
            a(rowaddr)
            for i in range(8):
                a(f"v_subrev_f32 v{D+i}, s{sT1}, v{F+i}")
            a(f"v_add_f32 v84, v{D}, v{D+1}\nv_mul_f32 v85, v{D}, v{D}\nv_add_f32 v86, v{D+2}, v{D+3}\nv_mul_f32 v87, v{D+1}, v{D+1}")
            a(f"v_add_f32 v88, v{D+4}, v{D+5}\nv_add_f32 v89, v{D+6}, v{D+7}")
            for i in range(2, 8):
                a(f"v_fmac_f32 v{85+2*(i&1)}, v{D+i}, v{D+i}")
            a("v_add_f32 v84, v84, v86\nv_add_f32 v88, v88, v89\nv_add_f32 v85, v85, v87\nv_add_f32 v84, v84, v88")
            self.reduce64x2(84, 86, 85, 87)
            a(f"v_mul_f32 v84, {f2u(1/512):#x}, v84\nv_mul_f32 v85, {f2u(1/512):#x}, v85")
            a("v_fma_f32 v85, -v84, v84, v85")
            a(f"v_add_f32 v84, s{sT1}, v84")
            a("v_max_f32 v85, 0, v85")
        else:
            a(rowaddr)
            a(f"v_add_f32 v84, v{F}, v{F+1}\nv_add_f32 v85, v{F+2}, v{F+3}\nv_add_f32 v86, v{F+4}, v{F+5}\nv_add_f32 v87, v{F+6}, v{F+7}")
            a("v_add_f32 v84, v84, v85\nv_add_f32 v86, v86, v87\nv_add_f32 v84, v84, v86")
            self.reduce64("v_add_f32", 84, 85)
            a(f"v_mul_f32 v84, {f2u(1/512):#x}, v84")
            for i in range(8):
                a(f"v_sub_f32 v{D+i}, v{F+i}, v84")
            a(f"v_mul_f32 v85, v{D}, v{D}\nv_mul_f32 v86, v{D+1}, v{D+1}")
            for i in range(2, 8):
                a(f"v_fmac_f32 v{85+(i&1)}, v{D+i}, v{D+i}")
            a("v_add_f32 v85, v85, v86")
            self.reduce64("v_add_f32", 85, 86)
            a(f"v_mul_f32 v85, {f2u(1/512):#x}, v85")
        a("v_cvt_pk_bf16_f32 v86, v84, v85")
        a(f"v_and_b32 v87, s{sMASK}, v86")
        a("v_lshlrev_b32 v86, 16, v86")
        a(f"v_add_f32 v87, {f2u(1e-5):#x}, v87")
        for i in range(2):
            a(f"v_sub_f32 v{F+i}, v{F+i}, v86")
        a("v_cvt_pk_bf16_f32 v87, v87, v87")
        a(f"v_sub_f32 v{F+2}, v{F+2}, v86")
        a("v_lshlrev_b32 v87, 16, v87")
        a(f"v_sub_f32 v{F+3}, v{F+3}, v86")
        a("v_sqrt_f32 v87, v87")
        for i in range(4, 8):
            a(f"v_sub_f32 v{F+i}, v{F+i}, v86")
        a("v_cvt_pk_bf16_f32 v87, v87, v87")
        for i in range(2):
            a(f"v_cvt_pk_bf16_f32 v{X+i}, v{F+2*i}, v{F+2*i+1}")
        a("v_lshlrev_b32 v87, 16, v87")
        a(f"v_cvt_pk_bf16_f32 v{X+2}, v{F+4}, v{F+5}")
        a("v_rcp_f32 v87, v87")
        a(f"v_cvt_pk_bf16_f32 v{X+3}, v{F+6}, v{F+7}")
        for i in range(4):
            a(f"v_lshlrev_b32 v{F+2*i}, 16, v{X+i}")
            a(f"v_and_b32 v{F+2*i+1}, s{sMASK}, v{X+i}")
        for i in range(8):
            a(f"v_mul_f32 v{F+i}, v{F+i}, v87")
        a(f"v_add_u32 v88, s{sT0}, v2")
        for i in range(4):
            a(f"v_cvt_pk_bf16_f32 v{X+i}, v{F+2*i}, v{F+2*i+1}")
        a("ds_write_b128 v88, v[64:67]")
        if row is not None:
            return
        a("s_waitcnt lgkmcnt(0)")
        a(f"s_mul_i32 s{sE}, s{sE}, 0x9E3779B1\ns_add_u32 s{sE}, s{sE}, 0x7F4A7C15")

    def kv_proj(self):
        a = self.a
        NB = 5
        def rd(s):
            b = 64 + 8 * (s % NB)
            a(f"ds_read_b128 {vr(b,4)}, v3 offset:{64*s}")
            a(f"ds_read_b64_tr_b16 {vr(b+4,2)}, v4 offset:{1024*s}")
            a(f"ds_read_b64_tr_b16 {vr(b+6,2)}, v4 offset:{1024*s+128}")
        for s in range(NB):
            rd(s)
        a(f"s_cmp_eq_u32 s{sW}, 5")
        a("s_cbranch_scc1 L_vproj")
        for var in ("K", "V"):
            if var == "V":
                a("L_vproj:")
            for s in range(16):
                left = min(NB - 1, 15 - s)
                a(f"s_waitcnt lgkmcnt({3*left})")
                b = 64 + 8 * (s % NB)
                X, Wf = vr(b, 4), vr(b + 4, 4)
                c = "0" if s == 0 else "v[112:115]"
                if var == "K":
                    a(f"v_mfma_f32_16x16x32_bf16 v[112:115], {Wf}, {X}, {c}")
                else:
                    a(f"v_mfma_f32_16x16x32_bf16 v[112:115], {X}, {Wf}, {c}")
                if s + NB < 16:
                    rd(s + NB)
            a(f"s_lshr_b32 s{sT0}, s{sP}, 2\ns_lshl_b32 s{sT0}, s{sT0}, 10\ns_and_b32 s{sT1}, s{sJ}, 3")
            if var == "K":
                a(f"s_lshl_b32 s{sT1}, s{sT1}, 7\ns_add_u32 s{sT0}, s{sT0}, s{sT1}\ns_add_u32 s{sT0}, s{sT0}, {KF}")
                a(f"s_mov_b32 s{sT2}, 0x00ff00ff\ns_mov_b32 s{sT3}, 0x00ff00ff")
                a("s_nop 0")
                a("v_cvt_pk_bf16_f32 v8, v112, v113\nv_cvt_pk_bf16_f32 v9, v114, v115")
                a(f"s_mov_b64 exec, s[{sT2}:{sT3}]")
                a(f"buffer_store_dwordx2 v[8:9], v5, {srd(R_WS)}, s{sT0} offen sc1")
                a("s_mov_b64 exec, -1")
                a("v_mul_f32 v11, v112, v112\nv_fmac_f32 v11, v113, v113\nv_fmac_f32 v11, v114, v114\nv_fmac_f32 v11, v115, v115")
                for sw in ("v_permlane16_swap_b32", "v_permlane32_swap_b32"):
                    a(f"v_mov_b32 v12, v11\ns_nop 1\n{sw} v11, v12\nv_add_f32 v11, v11, v12")
                a("v_and_b32 v11, 0x7fffffff, v11")
                for ctl in ("quad_perm:[1,0,3,2]", "quad_perm:[2,3,0,1]", "row_half_mirror"):
                    a(f"s_nop 1\nv_max_u32_dpp v11, v11, v11 {ctl} row_mask:0xf bank_mask:0xf")
                a(f"s_lshl_b32 s{sT0}, s{sP}, 7\ns_add_u32 s{sT0}, s{sT0}, {F0}")
                a(f"v_mov_b32 v10, s{sE}\nv_mov_b32 v13, 0")
                self.spin_lds(7, 12, "v_cmp_gt_u32 vcc, 1, v12")
                a("s_waitcnt vmcnt(0)")
                self.stamp(3)
                self.flag_store(10, 2, 13, f"s{sT0}")
                a("s_branch L_a_ring0" if self.o.ring01 == "apub" else "s_branch L_a_main")
            else:
                a(f"s_lshl_b32 s{sT1}, s{sT1}, 8\ns_add_u32 s{sT0}, s{sT0}, s{sT1}\ns_add_u32 s{sT0}, s{sT0}, {VF}")
                a("s_nop 2")
                a("v_cvt_pk_bf16_f32 v8, v112, v113\nv_cvt_pk_bf16_f32 v9, v114, v115")
                a("s_mov_b32 exec_hi, 0")
                a(f"buffer_store_dwordx2 v[8:9], v6, {srd(R_WS)}, s{sT0} offen sc1")
                a("s_mov_b64 exec, -1")
                a("v_mov_b32 v8, 1")
                a("s_waitcnt vmcnt(0)")
                self.stamp(3)
                a("ds_write_b32 v7, v8")
                a("s_branch L_a_ring0" if self.o.ring01 == "apub" else "s_branch L_a_main")

    def a_ring0(self):
        a, o = self.a, self.o
        a("L_a_ring0:")
        a("v_bfe_u32 v20, v1, 1, 2\nv_bfe_u32 v21, v1, 4, 1\nv_xor_b32 v20, v20, v21")
        a("v_lshrrev_b32 v22, 3, v1\nv_mul_u32_u24 v23, 3584, v22\nv_and_b32 v24, 1, v1\nv_lshl_add_u32 v23, v24, 4, v23")
        a("v_lshl_add_u32 v18, v20, 5, v23\nv_xor_b32 v24, 2, v20\nv_lshl_add_u32 v19, v24, 5, v23")
        self.rot_expr(sT5)
        a(f"s_mul_i32 s{sT2}, s{sJ}, 224\ns_mul_i32 s{sT3}, s{sWA}, {32*3584}\ns_add_u32 s{sT2}, s{sT2}, s{sT3}\ns_lshl_b32 s{sT4}, s{sWA}, 13")
        for b in range(o.fill):
            a(f"s_add_u32 s{sT0}, s{sT5}, {b}\ns_and_b32 s{sT0}, s{sT0}, 7\ns_mul_i32 s{sT0}, s{sT0}, {64*3584}\ns_add_u32 s{sT0}, s{sT0}, s{sT2}")
            for u in range(2):
                a(f"s_add_u32 m0, s{sT4}, {b*16384 + u*4096}")
                a(f"s_add_u32 s{sT1}, s{sT0}, {8*3584 - 1024}")
                a(f"buffer_load_dwordx4 v18, {srd(R_W1)}, s{sT0} offen lds")
                a(f"buffer_load_dwordx4 v18, {srd(R_W1)}, s{sT1} offen offset:1024 lds")
                a("s_add_u32 m0, m0, 2048\ns_nop 0")
                a(f"buffer_load_dwordx4 v19, {srd(R_W3)}, s{sT0} offen lds")
                a(f"buffer_load_dwordx4 v19, {srd(R_W3)}, s{sT1} offen offset:1024 lds")
                if u == 0:
                    a(f"s_add_u32 s{sT0}, s{sT0}, {16*3584}")
        a("s_branch L_a_main")

    def xn_store(self):
        a = self.a
        for n in range(4):
            a(f"ds_read_b128 {vr(64+4*n,4)}, v8 offset:{128*n}")
        a(f"s_sub_u32 s{sT1}, s{sW}, 6\ns_lshr_b32 s{sT0}, s{sP}, 2\ns_lshl_b32 s{sT0}, s{sT0}, 15\ns_lshl_b32 s{sT2}, s{sT1}, 14\ns_add_u32 s{sT0}, s{sT0}, s{sT2}")
        a(f"s_and_b32 s{sT2}, s{sJ}, 3\ns_lshl_b32 s{sT2}, s{sT2}, 7\ns_add_u32 s{sT0}, s{sT0}, s{sT2}\ns_add_u32 s{sT0}, s{sT0}, {XN}")
        for n in range(4):
            a(f"s_waitcnt lgkmcnt({3-n})")
            a(f"buffer_store_dwordx4 {vr(64+4*n,4)}, v9, {srd(R_WS)}, s{sT0} offen sc1")
            if self.o.dup & 1:
                a(f"buffer_store_dwordx4 {vr(64+4*n,4)}, v9, {srd(R_WS)}, s{sT0} offen {self.o.dupf}")
            if n < 3:
                a(f"s_add_u32 s{sT0}, s{sT0}, 4096")
        a(f"s_lshl1_add_u32 s{sT0}, s{sP}, s{sT1}\ns_lshl_b32 s{sT0}, s{sT0}, 7\ns_add_u32 s{sT0}, s{sT0}, {FX}")
        a(f"s_lshl_b32 s{sT1}, s{sT1}, 2\ns_add_u32 s{sT1}, s{sT1}, {LFL+L_PUB}")
        a(f"v_mov_b32 v4, s{sE}\nv_mov_b32 v3, 0\nv_mov_b32 v5, s{sT1}\nv_mov_b32 v6, 1")
        a("s_waitcnt vmcnt(0)")
        self.stamp(3)
        self.flag_store(4, 1, 3, f"s{sT0}")
        a("ds_write_b32 v5, v6")
        if self.o.wq_at == "pub":
            self.wq_by_a()

    aK = (28, 40, 52)
    aV = (32, 44, 56)
    aIDX, aOV = 27, 26
    aS = (64, 80)
    aQ = 96
    aO = 128
    aWR, aWL, aRR, aRL, aGF, aMF = 20, 23, 18, 19, 16, 17

    def a_early(self):
        a = self.a
        aV, aO = self.aV, self.aO
        if not self.o.direct:
            a(f"s_sub_u32 s{sWA}, s{sW}, 4")
        a(f"s_lshl_b32 s{sT0}, s{sWA}, 12")
        a(f"s_add_u32 m0, s{sT0}, {WKV}")
        a("s_nop 0")
        for n in range(4):
            a(f"buffer_load_dwordx4 v2, {srd(R_WK)}, s{sT0} offen offset:{1024*n} lds")
        a(f"s_add_u32 m0, s{sT0}, {WKV+16384}")
        a("s_nop 0")
        for n in range(4):
            a(f"buffer_load_dwordx4 v2, {srd(R_WV)}, s{sT0} offen offset:{1024*n} lds")
        a("v_add_u32 v11, -4, v1\nv_cmp_gt_u32 vcc, 8, v11")
        a(f"v_lshlrev_b32 v10, 2, v1\nv_add_u32 v10, {LFL}, v10")
        a("v_cndmask_b32 v11, 0, -1, vcc")
        a("ds_write_b32 v10, v11")
        a("v_and_b32 v3, 7, v1\nv_lshrrev_b32 v10, 4, v1")
        a(f"v_mul_u32_u24 v11, {PITCH}, v3\nv_lshl_add_u32 v12, v10, 4, v11")
        a("v_and_b32 v13, 15, v1\nv_lshlrev_b32 v4, 3, v13\nv_lshl_add_u32 v4, v10, 8, v4")
        a(f"s_lshl_b32 s{sT0}, s{sWA}, 14\ns_add_u32 s{sT0}, s{sT0}, {WKV}\nv_add_u32 v4, s{sT0}, v4")
        a("v_lshlrev_b32 v13, 4, v13\nv_lshl_add_u32 v6, v10, 3, v13")
        a("v_bfe_u32 v14, v1, 4, 1\nv_lshl_add_u32 v5, v14, 9, v13\nv_lshrrev_b32 v14, 5, v1\nv_lshl_add_u32 v5, v14, 3, v5")
        a(f"v_mov_b32 v7, {LFL+L_VFL}")
        a("v_lshrrev_b32 v10, 3, v1\nv_lshl_add_u32 v8, v10, 4, v11")
        a(f"s_and_b32 s{sT1}, s{sWA}, 1\ns_lshl_b32 s{sT1}, s{sT1}, 9\ns_add_u32 s{sT1}, s{sT1}, {XROW}\nv_add_u32 v8, s{sT1}, v8")
        a("v_lshlrev_b32 v9, 4, v3\nv_and_b32 v14, 1, v10\nv_lshl_add_u32 v9, v14, 9, v9\nv_lshrrev_b32 v10, 1, v10\nv_lshl_add_u32 v9, v10, 10, v9")
        a(f"v_add_u32 v3, {XROW}, v12")
        if self.o.direct:
            a("s_waitcnt lgkmcnt(0)")
            a("s_barrier")
        a("s_waitcnt vmcnt(8)")

    def a_late(self):
        a = self.a
        aV, aO = self.aV, self.aO
        a("v_and_b32 v10, 31, v1\nv_cmp_eq_u32 vcc, 16, v10\nv_mov_b32 v11, 0x3f803f80")
        a(f"v_mov_b32 v{self.aIDX}, 0xdddddddd")
        a("v_cndmask_b32 v11, 0, v11, vcc")
        for b in aV:
            for r in range(b, b + 8):
                a(f"v_mov_b32 v{r}, v11")
        a(f"v_and_b32 v10, 15, v1\nv_lshlrev_b32 v10, 4, v10\nv_lshrrev_b32 v11, 5, v1\nv_lshl_add_u32 v10, v11, 8, v10\nv_add_u32 v{self.aOV}, {VF-KF}, v10")
        a("v_lshlrev_b32 v10, 2, v1")
        for dt in range(1, 4):
            a(f"s_add_u32 s{sT0}, s{sWA}, {dt}\ns_and_b32 s{sT0}, s{sT0}, 3\ns_mul_i32 s{sT0}, s{sT0}, 13824\ns_add_u32 s{sT0}, s{sT0}, {RING + (dt-1)*4608}")
            a(f"v_add_u32 v{self.aWR+dt-1}, s{sT0}, v2\nv_add_u32 v{self.aWL+dt-1}, s{sT0}, v10")
        a(f"s_mul_i32 s{sT0}, s{sWA}, 13824")
        a(f"v_add_u32 v{self.aRR}, s{sT0}, v2\nv_add_u32 v{self.aRL}, s{sT0}, v10")
        a(f"v_and_b32 v10, 3, v1\nv_lshlrev_b32 v10, 2, v10\nv_add_u32 v{self.aGF}, {LFL}, v10")
        a(f"s_lshl_b32 s{sT0}, s{sWA}, 2\ns_add_u32 s{sT0}, s{sT0}, {LFL}\nv_mov_b32 v{self.aMF}, s{sT0}")
        for r in range(aO, aO + 128):
            a(f"v_mov_b32 v{r}, 0")
        a(f"s_mov_b32 s{sXM}, 0xffff\ns_mov_b32 s{sXM+1}, 0xffff")
        a(f"s_lshl_b32 s{sKB}, s{sWA}, 14\ns_add_u32 s{sKB}, s{sKB}, {KF}")
        if self.o.rot and self.o.xoff:
            a(f"s_lshl1_add_u32 s{sIDX}, s{sX8}, s{sI}\ns_and_b32 s{sIDX}, s{sIDX}, 15")
        elif self.o.rot:
            a(f"s_and_b32 s{sIDX}, s{sI}, 15")
        else:
            a(f"s_mov_b32 s{sIDX}, 0")
        a(f"s_lshl_b32 s{sK}, s{sIDX}, 10\ns_add_u32 s{sK}, s{sK}, s{sKB}")

    def k_step(self):
        return [f"s_add_u32 s{sIDX}, s{sIDX}, 1", f"s_and_b32 s{sIDX}, s{sIDX}, 15", f"s_lshl_b32 s{sK}, s{sIDX}, 10", f"s_add_u32 s{sK}, s{sK}, s{sKB}"]
    def ld_k(self, buf):
        return f"buffer_load_dwordx4 {vr(self.aK[buf],4)}, v2, {srd(R_WS)}, s{sK} offen sc1"
    def ld_v(self, buf):
        return "\n".join([f"s_mov_b64 exec, s[{sXM}:{sXM+1}]",
                          f"buffer_load_dwordx4 {vr(self.aV[buf],4)}, v{self.aOV}, {srd(R_WS)}, s{sK} offen sc1",
                          f"buffer_load_dwordx4 {vr(self.aV[buf]+4,4)}, v{self.aOV}, {srd(R_WS)}, s{sK} offen offset:512 sc1",
                          "s_mov_b64 exec, -1"])

    def ld_v1(self, buf, u):
        return "\n".join([f"s_mov_b64 exec, s[{sXM}:{sXM+1}]",
                          f"buffer_load_dwordx4 {vr(self.aV[buf]+4*u,4)}, v{self.aOV}, {srd(R_WS)}, s{sK} offen offset:{512*u} sc1",
                          "s_mov_b64 exec, -1"])

    def tile(self, seq, t, kb, prev, nxt_tile, ex):
        a = self.a
        aK, aV, aS, aQ, aO = self.aK, self.aV, self.aS, self.aQ, self.aO
        cur, nxt = aS[seq & 1], aS[(seq + 1) & 1]
        for i in range(16):
            a(f"v_exp_f32 v{cur+i}, v{cur+i}" if "noexp" not in self.o.hack else f"v_mov_b32 v{cur+i}, v{cur+i}\ns_nop 0")
            if i == 1 and "nopv" not in self.o.hack:
                a(f"v_smfmac_f32_32x32x32_bf16 {vr(aO+16*prev[0],16)}, {vr(aV[prev[1]]+4,4)}, {vr(nxt+8,8)}, v{self.aIDX}")
                if "postpv1" in ex:
                    a(ex["postpv1"])
            if i == 4 and nxt_tile is not None:
                if "preqk" in ex:
                    a(ex["preqk"])
                a(f"v_mfma_f32_32x32x16_bf16 {vr(nxt,16)}, {vr(aK[nxt_tile[1]],4)}, {vr(aQ+4*nxt_tile[0],4)}, 0")
                if "postqk" in ex:
                    a(ex["postqk"])
            if i == self.o.p0 and "nopv" not in self.o.hack:
                a(f"v_smfmac_f32_32x32x32_bf16 {vr(aO+16*t,16)}, {vr(aV[kb],4)}, {vr(cur,8)}, v{self.aIDX}")
            if i in ex:
                a(ex[i])

    def merge_writes(self, slot):
        dt, hd = slot >> 1, slot & 1
        O = self.aO + 16 * slot
        return [f"ds_write_b128 v{self.aWR+dt-1}, {vr(O,4)} offset:{hd*2304}",
                f"ds_write_b128 v{self.aWR+dt-1}, {vr(O+4,4)} offset:{hd*2304+1024}",
                f"ds_write_b32 v{self.aWL+dt-1}, v{O+8} offset:{hd*2304+2048}"]

    def a_main(self):
        a, o = self.a, self.o
        vm = Vm(a)
        aK, aV, aS, aQ, aO = self.aK, self.aV, self.aS, self.aQ, self.aO
        a("L_a_main:")
        if o.direct:
            a("s_setprio 0")
        self.a_late()
        for r in range(aS[1] + 8, aS[1] + 16):
            a(f"v_mov_b32 v{r}, 0")
        for t in range(8):
            a(f"s_lshl1_add_u32 s{sT0}, s{sWA}, {t}\ns_and_b32 s{sT0}, s{sT0}, 7\ns_lshl_b32 s{sT0}, s{sT0}, 10\ns_add_u32 s{sT0}, s{sT0}, {QX}")
            a(f"v_add_u32 v{64+t}, s{sT0}, v2")
        if o.atouch:
            self.slot_touch_addr(13, 1)
            if not o.t1:
                a("v_mov_b32 v13, 0x40000000")
            a(f"s_bitcmp1_b32 s{sW}, 1\ns_cselect_b32 s68, s{R_W3}, s{R_W1}\ns_cselect_b32 s69, s{R_W3+1}, s{R_W1+1}\ns_mov_b32 s70, 1835008\ns_mov_b32 s71, 0x20000")
            a(f"s_and_b32 s{sT0}, s{sI}, 3\ns_lshl2_add_u32 s{sT0}, s{sX8}, s{sT0}\ns_lshl_b32 s{sT0}, s{sT0}, 16\ns_lshr_b32 s{sT1}, s{sI}, 2\ns_lshl_b32 s{sT1}, s{sT1}, 7\ns_add_u32 s72, s{sT0}, s{sT1}")
            a(f"s_cmp_eq_u32 s{sWA}, {0 if o.tx else 99}\ns_cselect_b32 s72, s72, 0x40000000\nv_lshlrev_b32 v12, 10, v1")
        a(f"v_lshlrev_b32 v3, 7, v1\ns_lshl_b32 s{sT2}, s{sWA}, 13\ns_add_u32 s{sT2}, s{sT2}, {F0}")
        a(f"v_and_b32 v7, 7, v1\nv_lshlrev_b32 v7, 2, v7\nv_add_u32 v7, {LFL+L_QMAX}, v7")
        if o.wqlate and o.wq_at == "pub":
            L = self.lab("nowq")
            a(f"s_cmp_lt_u32 s{sW}, 6\ns_cbranch_scc1 {L}")
            a("v_mov_b32 v9, 1\ns_waitcnt vmcnt(0)")
            a(f"ds_write_b32 v{self.aMF}, v9 offset:{L_WQF - 8}")
            a(f"{L}:")
        if o.ring01 == "apub":
            a("v_mov_b32 v9, 1\ns_waitcnt vmcnt(0)")
            a(f"ds_write_b32 v{self.aMF}, v9 offset:{L_R0}")
        if o.kvlate:
            self.spin_lds(self.aMF, 8, "v_cmp_eq_u32 vcc, -1, v8", sleep=1, off=L_QMAX)
        else:
            self.spin_lds(self.aMF, 8, "v_cmp_gt_u32 vcc, 1, v8", sleep=1, off=L_GATE)
        if o.direct:
            a(f"s_setprio {o.aprio0}")
        self.poll_global(3, f"s{sT2}", 4, 2, vm, sleep=o.asleep)
        self.stamp(4)
        for b in range(3):
            a(self.ld_k(b))
            if b < 2:
                a(self.ld_v(b))
                a("\n".join(self.k_step()))
        self.reduce64("v_max_u32", 5, 6)
        a(f"ds_write_b32 v{self.aMF}, v5 offset:{L_KMAX}")
        self.spin_lds(7, 8, "v_cmp_eq_u32 vcc, -1, v8")
        self.stamp(5)
        for t in range(8):
            a(f"ds_read_b128 {vr(aQ+4*t,4)}, v{64+t}")
        Lne = self.lab("noep")
        a(f"s_or_b32 s{sT0}, s{sP}, s{sWA}\ns_cmp_lg_u32 s{sT0}, 0\ns_cbranch_scc1 {Lne}")
        a(f"v_mov_b32 v9, s{sE}\nv_mov_b32 v3, 0\ns_mov_b32 s{sT0}, {FL}")
        self.flag_store(9, 1, 3, f"s{sT0}")
        a(f"{Lne}:")
        for ctl in ("quad_perm:[1,0,3,2]", "quad_perm:[2,3,0,1]"):
            a(f"s_nop 1\nv_max_u32_dpp v8, v8, v8 {ctl} row_mask:0xf bank_mask:0xf")
        a("s_nop 1\nv_mov_b32_dpp v9, v8 row_half_mirror row_mask:0xf bank_mask:0xf")
        a("v_mul_f32 v8, v8, v9")
        a(f"v_cmp_nge_f32 vcc, {f2u(THRESH2):#x}, v8")
        a("s_branch L_a_slow" if o.slow else "s_cbranch_vccnz L_a_slow")
        a(f"s_setprio {o.prioA}")
        a("v_mov_b32 v9, 1")
        a(f"ds_write_b32 v{self.aMF}, v9 offset:{L_ASTART}")
        a("s_waitcnt vmcnt(4) lgkmcnt(0)")
        if o.only == "G":
            a("s_branch L_a_merge_full")
        a(f"v_mfma_f32_32x32x16_bf16 {vr(aS[0],16)}, {vr(aK[0],4)}, {vr(aQ,4)}, 0")
        a(f"s_mov_b32 s{sCNT}, {4 if o.skiplast else 5}")
        if o.atouch:
            a(f"s_lshl2_add_u32 s{sT4}, s{sI}, s{sWA}\ns_lshl_b32 s{sT5}, s{sT4}, 12\ns_mul_i32 s{sT4}, s{sT4}, 14336\ns_mov_b32 s{sT3}, 0x40000000")
            a("v_lshlrev_b32 v15, 7, v1")
        a("s_nop 7\ns_nop 2")
        self.stamp(6)
        if o.ts:
            a(f"s_memtime s[{sPCX}:{sPCX+1}]\ns_waitcnt lgkmcnt(0)\ns_mov_b32 s{sTS+13}, s{sPCX}")
        def rounds(peeled, last=False):
            for kb in range(3):
                if o.trace:
                    a(f"s_mul_i32 s{sTS+9}, s{sCNT}, -3\ns_add_u32 s{sTS+9}, s{sTS+9}, 15")
                    self.trace_pt(None, kb, sTS + 9)
                for t in range(8):
                    ex = {}
                    prev = (t - 1, kb) if t else (7, (kb + 2) % 3)
                    nx = (t + 1, kb) if t < 7 else (0, (kb + 1) % 3)
                    def guarded(txt):
                        L = self.lab("skip")
                        return f"s_cmp_eq_u32 s{sCNT}, 1\ns_cbranch_scc1 {L}\n{txt}\n{L}:"
                    if t == o.vt:
                        ex[o.p0] = self.ld_v((kb + 2) % 3)
                        if last and kb == 2:
                            del ex[o.p0]
                    extra = 0
                    if peeled and kb == o.tk:
                        if t == 1:
                            ex[6] = f"buffer_load_dword v14, v15, {srd(R_W2)}, s{sT4} offen"
                        if t == 2:
                            ex[3] = f"s_add_u32 s{sT4}, s{sT4}, 8192"
                            ex[6] = f"buffer_load_dword v14, v15, {srd(R_W2)}, s{sT4} offen"
                        if t == 3:
                            ex[6] = f"buffer_load_dword v14, v15, {srd(R_WO)}, s{sT5} offen"
                        if t == 4 and o.tx:
                            ex[6] = f"buffer_load_dword v14, v12, {srd(R_X)}, s72 offen"
                        if t == 5 and o.t1:
                            ex[6] = f"buffer_load_dword v14, v13, s[68:71], 0 offen"
                    ntouch = 3 + bool(o.tx) + bool(o.t1)
                    if (peeled and kb in (o.tk, o.tk + 1)) or (not peeled and o.atouch == 2 and o.tk == 2 and kb == 0):
                        extra = ntouch
                    if t == 7:
                        ex["preqk"] = f"s_waitcnt vmcnt({3 + extra + (1 if o.trace else 0)})"
                        ex[5], ex[6], ex[7], ex[8] = self.k_step()
                        ex[o.p0] = self.ld_k(kb)
                        if last and kb >= 1:
                            del ex[o.p0]
                            for i in (5, 6, 7, 8):
                                del ex[i]
                        if last and kb == 2:
                            ex["preqk"] = "s_waitcnt vmcnt(0)"
                        if kb == 2 and not last:
                            ex[11] = f"s_sub_u32 s{sCNT}, s{sCNT}, 1"
                            ex[14] = f"s_cmp_lg_u32 s{sCNT}, 0"
                    self.tile(t, t, kb, prev, nx, ex)
        self.trv = 10
        if o.atouch == 2:
            rounds(True)
        a(".p2align 3")
        a("L_a_loop:")
        rounds(False)
        a("s_cbranch_scc1 L_a_loop")
        if o.skiplast:
            rounds(False, last=True)
        if o.lastprio:
            a(f"s_setprio {o.lastprio}")
        self.trace_pt(None, 15)
        a(f"ds_read_b32 v8, v{self.aGF}")
        order = [0, 2, 3, 4, 5, 6, 7, 1] if o.peel else list(range(8))
        for n, t in enumerate(order):
            ex = {}
            prev = (order[n - 1], 0) if n else (7, 2)
            nx = (order[n + 1], 0) if n < 7 else None
            if n == 0:
                ex[12] = "s_waitcnt lgkmcnt(0)"
                ex[13] = "SPIN"
            if o.peel and n >= 3:
                w = self.merge_writes(order[n - 2])
                ex[3], ex[7], ex[12] = w
            if n == 0:
                self.tile_with_guard(n, t, prev, nx)
            else:
                self.tile(n, t, 0, prev, nx, ex)
        if o.n0 >= 0:
            a("v_mov_b32 v9, 1")
            a(f"ds_write_b32 v{self.aMF}, v9 offset:{L_ADONE}")
        a("s_nop 1")
        a(f"v_smfmac_f32_32x32x32_bf16 {vr(aO+16*order[7],16)}, {vr(aV[0]+4,4)}, {vr(aS[1]+8,8)}, v{self.aIDX}")
        if o.peel:
            for x in self.merge_writes(7):
                a(x)
            a("s_branch L_a_merge")
        a("L_a_merge_full:")
        self.spin_lds(self.aGF, 8, "v_cmp_gt_u32 vcc, 17, v8")
        if o.n0 >= 0:
            a("v_mov_b32 v9, 1")
            a(f"ds_write_b32 v{self.aMF}, v9 offset:{L_ADONE}")
        a("s_nop 7")
        for slot in range(2, 8):
            for x in self.merge_writes(slot):
                a(x)
        a("L_a_merge:")
        if o.mprio:
            a(f"s_setprio {o.mprio}")
        self.trace_pt(None, 16)
        self.stamp(7)
        if o.ts:
            a(f"s_memtime s[{sPCX}:{sPCX+1}]\ns_waitcnt lgkmcnt(0)\ns_sub_u32 s{sTS+13}, s{sPCX}, s{sTS+13}")
        a("v_mov_b32 v9, 1")
        a(f"s_lshl2_add_u32 s{sT0}, s{sG}, s{sWA}\ns_lshl_b32 s{sT0}, s{sT0}, 5\ns_lshl1_add_u32 s{sT0}, s{sJ}, s{sT0}\ns_lshl_b32 s{sT0}, s{sT0}, 10\ns_add_u32 s{sT0}, s{sT0}, {OF}")
        a(f"s_lshl2_add_u32 s{sT1}, s{sP}, s{sWA}\ns_lshl_b32 s{sT1}, s{sT1}, 7\ns_add_u32 s{sT1}, s{sT1}, {FO}")
        a("s_waitcnt lgkmcnt(0)")
        a(f"ds_write_b32 v{self.aMF}, v9 offset:{L_MFL}")
        self.stamp(10)
        self.spin_lds(self.aGF, 8, "v_cmp_gt_u32 vcc, 1, v8", off=L_MFL)
        self.stamp(11)
        T = 64
        for dt in range(3):
            for hd in range(2):
                b = T + 10 * (2 * dt + hd)
                off = dt * 4608 + hd * 2304
                a(f"ds_read_b128 {vr(b,4)}, v{self.aRR} offset:{off}")
                a(f"ds_read_b128 {vr(b+4,4)}, v{self.aRR} offset:{off+1024}")
                a(f"ds_read_b32 v{b+8}, v{self.aRL} offset:{off+2048}")
            if dt:
                a("s_waitcnt lgkmcnt(6)")
                self.acc_add(T, dt - 1)
        a(f"v_mov_b32 v16, s{sE}\nv_mov_b32 v17, 0")
        a("s_waitcnt lgkmcnt(0)")
        self.acc_add(T, 2)
        a(f"v_mov_b32 v14, v{aO+8}\nv_mov_b32 v15, v{aO+24}")
        a("s_nop 0")
        a(f"v_permlane32_swap_b32 v{aO+8}, v14")
        a(f"v_permlane32_swap_b32 v{aO+24}, v15")
        a(f"v_rcp_f32 v14, v{aO+8}\nv_rcp_f32 v18, v{aO+24}")
        a("s_nop 0")
        for hd in range(2):
            O = aO + 16 * hd
            for i in range(4):
                a(f"v_pk_mul_f32 {vr(O+2*i,2)}, {vr(O+2*i,2)}, {vr(14+4*hd,2)} op_sel_hi:[1,0]")
            for i in range(4):
                a(f"v_cvt_pk_bf16_f32 v{20+4*hd+i}, v{O+2*i}, v{O+2*i+1}")
            a(f"buffer_store_dwordx4 {vr(20+4*hd,4)}, v2, {srd(R_WS)}, s{sT0} offen offset:{1024*hd} sc1")
            if o.dup & 4:
                a(f"buffer_store_dwordx4 {vr(20+4*hd,4)}, v2, {srd(R_WS)}, s{sT0} offen offset:{1024*hd} {o.dupf}")
        self.stamp(12)
        a("s_waitcnt vmcnt(0)")
        a("s_mov_b64 exec, 1")
        a(f"buffer_store_dword v16, v17, {srd(R_WS)}, s{sT1} offen sc1")
        self.stamp(8)
        self.stamp_flush()
        a("s_endpgm")

    def tile_with_guard(self, n, t, prev, nx):
        a = self.a
        self.tile(n, t, 0, prev, nx, {})
        a("s_waitcnt lgkmcnt(0)")
        self.spin_lds(self.aGF, 8, "v_cmp_gt_u32 vcc, 17, v8", peeked=True)

    def acc_add(self, T, dt):
        a = self.a
        for hd in range(2):
            b = T + 10 * (2 * dt + hd)
            O = self.aO + 16 * hd
            for i in range(4):
                a(f"v_pk_add_f32 {vr(O+2*i,2)}, {vr(O+2*i,2)}, {vr(b+2*i,2)}")
            a(f"v_add_f32 v{O+8}, v{O+8}, v{b+8}")

    def a_slow(self):
        a = self.a
        aK, aV, aS, aQ, aO = self.aK, self.aV, self.aS, self.aQ, self.aO
        a("L_a_slow:")
        a("v_mov_b32 v3, 1")
        a(f"ds_write_b32 v{self.aMF}, v3 offset:{L_ASTART}")
        a("s_waitcnt vmcnt(0) lgkmcnt(0)")
        S, M = aS[0], 4
        for t in range(8):
            a(f"v_mov_b32 v{M+t}, 0xff800000")
        a(f"s_mov_b32 s{sK}, {KF}\ns_mov_b32 s{sCNT}, 64")
        a("L_slow_max:")
        a(self.ld_k(0))
        a("s_waitcnt vmcnt(0)")
        for t in range(8):
            a(f"v_mfma_f32_32x32x16_bf16 {vr(S,16)}, {vr(aK[0],4)}, {vr(aQ+4*t,4)}, 0")
            a("s_nop 7\ns_nop 3")
            for i in range(8):
                a(f"v_max3_f32 v{M+t}, v{S+2*i}, v{S+2*i+1}, v{M+t}")
        a(f"s_add_u32 s{sK}, s{sK}, 1024\ns_sub_u32 s{sCNT}, s{sCNT}, 1\ns_cmp_lg_u32 s{sCNT}, 0")
        a("s_cbranch_scc1 L_slow_max")
        for t in range(8):
            a(f"v_mov_b32 v3, v{M+t}\ns_nop 1\nv_permlane32_swap_b32 v{M+t}, v3\nv_max_f32 v{M+t}, v{M+t}, v3")
        a(f"s_mov_b32 s{sK}, s{sKB}\ns_mov_b32 s{sCNT}, 16")
        a("L_slow_pv:")
        a(self.ld_k(0))
        a(self.ld_v(0))
        a("s_waitcnt vmcnt(0)")
        for t in range(8):
            a(f"v_mfma_f32_32x32x16_bf16 {vr(S,16)}, {vr(aK[0],4)}, {vr(aQ+4*t,4)}, 0")
            a("s_nop 7\ns_nop 3")
            for i in range(16):
                a(f"v_sub_f32 v{S+i}, v{S+i}, v{M+t}")
            for i in range(16):
                a(f"v_exp_f32 v{S+i}, v{S+i}")
            a("s_nop 1")
            for u in range(2):
                a(f"v_smfmac_f32_32x32x32_bf16 {vr(aO+16*t,16)}, {vr(aV[0]+4*u,4)}, {vr(S+8*u,8)}, v{self.aIDX}")
        a(f"s_add_u32 s{sK}, s{sK}, 1024\ns_sub_u32 s{sCNT}, s{sCNT}, 1\ns_cmp_lg_u32 s{sCNT}, 0")
        a("s_cbranch_scc1 L_slow_pv")
        a("s_branch L_a_merge_full")

    gRG0, gRU0, gRG1, gRU1 = 3, 4, 5, 6
    dV = 7
    gT = 8
    gTQ, gFL, gMY, gTMP = 12, 13, 14, 15
    gONE = 0
    gE = 16
    gP = 24
    dXR = 32
    dT, dF, dXA, vEP, vZ, vPK = 40, 42, 43, 44, 45, 46
    gA = 48
    gC = 64
    gX = 128
    dH = 128

    def g_early(self):
        a, o = self.a, self.o
        vm = self.vmG = Vm(a)
        if not o.direct:
            vm.issue("xrow")
        gT, dT = self.gT, self.dT
        a("L_g_early:")
        if o.code_pf == 1:
            self.code_prefetch(vm)
        if o.twq:
            L = self.lab("twq")
            a(f"s_cmp_lg_u32 s{sW}, 0\ns_cbranch_scc1 {L}")
            a(f"s_and_b32 s{sT0}, s{sG}, 3\ns_and_b32 s{sT1}, s{sJ}, 1\ns_lshl1_add_u32 s{sT0}, s{sT0}, s{sT1}\ns_lshl_b32 s{sT0}, s{sT0}, 16\ns_lshl_b32 s{sT1}, s{sJ}, 6\ns_add_u32 s{sT0}, s{sT0}, s{sT1}")
            a(f"v_lshlrev_b32 v18, 10, v1\nbuffer_load_dword v46, v18, {srd(R_WQ)}, s{sT0} offen {o.tnt}")
            a(f"s_waitcnt vmcnt({1 + (1 if o.code_pf == 1 else 0)})")
            a(f"{L}:")
        if o.direct:
            return self.g_direct(vm)
        if o.t0 == 1:
            self.first_slot_touch(vm)
        a("v_lshrrev_b32 v18, 2, v1\nv_lshlrev_b32 v18, 10, v18\nv_and_b32 v19, 3, v1\nv_lshl_add_u32 v17, v19, 4, v18")
        if o.wq_at == "early":
            self.wq_dma(vm)
        vm.wait("xrow")
        if o.wq_at == "xarr":
            self.wq_dma(vm)
        a("s_branch L_ln")

    def code_prefetch(self, vm):
        a, o = self.a, self.o
        a(f"s_sub_u32 s{sPC}, s{sPC}, L_pc-{NAME}\ns_subb_u32 s{sPC+1}, s{sPC+1}, 0")
        if o.pfshare > 1:
            n = 64 // o.pfshare + (1 if (o.skiplast or o.nE) else 0)
            a(f"s_and_b32 s{sT0}, s{sI}, {o.pfshare-1}\ns_lshl2_add_u32 s{sT0}, s{sT0}, s{sW}\ns_mul_i32 s{sT0}, s{sT0}, {n*128}")
            a(f"s_mov_b64 exec, {(1 << n) - 1:#x}")
        else:
            a(f"s_lshl_b32 s{sT0}, s{sW}, 13")
        a(f"v_lshlrev_b32 v18, 7, v1\nv_add_u32 v18, s{sT0}, v18")
        a(f"v_min_u32 v18, L_code_end-{NAME}-4, v18")
        a(f"global_load_dword v47, v18, s[{sPC}:{sPC+1}]")
        if o.pfshare > 1:
            a("s_mov_b64 exec, -1")
        vm.issue("pf")
        if o.atouch == 2:
            a(f"v_add_u32 v18, 32768, v18\nv_min_u32 v18, L_code_end-{NAME}-4, v18\ns_mov_b64 exec, 0xffff")
            a(f"global_load_dword v47, v18, s[{sPC}:{sPC+1}]\ns_mov_b64 exec, -1")
            vm.issue("pf")

    def stage_dma(self, n, vm):
        a = self.a
        a(f"s_add_u32 s{sT0}, s{sROT}, {n}\ns_and_b32 s{sT0}, s{sT0}, 7\ns_lshl_b32 s{sT0}, s{sT0}, 7\ns_add_u32 s{sT0}, s{sT0}, s{sXB}")
        a(f"s_add_u32 m0, s{sT3}, {(n&3)*4096}")
        for i in range(4):
            a(f"s_add_u32 s{sT1}, s{sT0}, {i*8192 - (i&3)*1024 + (0 if i else 0)}" if i else "s_nop 0")
            a(f"buffer_load_dwordx4 v{18 + (i&1)}, {srd(R_X)}, s{sT1 if i else sT0} offen offset:{i*1024} lds")
            vm.issue(("st", n))

    def g_direct(self, vm):
        a, o = self.a, self.o
        gX = self.gX
        a(f"s_setprio {o.gprio0}")
        self.rot_expr(sROT)
        a(f"s_lshl2_add_u32 s{sT0}, s{sG}, s{sW}\ns_lshl_b32 s{sXB}, s{sT0}, 15\ns_lshl_b32 s{sT3}, s{sW}, 14")
        a("v_lshrrev_b32 v20, 3, v1\nv_and_b32 v21, 7, v1\nv_lshrrev_b32 v22, 4, v1\nv_xor_b32 v21, v21, v22\nv_lshlrev_b32 v21, 4, v21")
        a("v_lshl_add_u32 v18, v20, 10, v21\nv_xor_b32 v19, 64, v18")
        a(f"s_load_dword s{sE}, s[{R_WS}:{R_WS+1}], {FL}")
        a("s_barrier")
        for n in range(o.sdepth):
            self.stage_dma(n, vm)
        a(f"s_mov_b32 s{sFXA}, s{sT3}")
        a("v_mov_b32 v28, v18\nv_mov_b32 v29, v19")
        self.g_late(direct=True)
        a(f"s_mov_b32 s{sT3}, s{sFXA}\nv_mov_b32 v18, v28\nv_mov_b32 v19, v29")
        a("v_and_b32 v20, 31, v1\nv_lshrrev_b32 v21, 5, v1\nv_bfe_u32 v22, v1, 1, 3\nv_xor_b32 v21, v21, v22\nv_lshlrev_b32 v21, 4, v21\nv_lshl_add_u32 v20, v20, 7, v21")
        a(f"v_add_u32 v20, s{sT3}, v20\nv_xor_b32 v21, 32, v20\nv_xor_b32 v22, 64, v20\nv_xor_b32 v23, 0x60, v20")
        a(f"v_mov_b32 v24, 0\nv_mov_b32 v25, 0\nv_mov_b32 v26, 0\nv_mov_b32 v27, 0\nv_mov_b32 v30, 0x3f803f80")
        a("s_waitcnt lgkmcnt(0)")
        a(f"s_mul_i32 s{sE}, s{sE}, 0x9E3779B1\ns_add_u32 s{sE}, s{sE}, 0x7F4A7C15")
        a(f"v_mov_b32 v{self.vEP}, s{sE}")
        self.stamp(1)
        def stats(n):
            for r in range(gX + 16 * n, gX + 16 * n + 16):
                a(f"v_dot2c_f32_bf16 v{24 + (r & 1)}, v{r}, v30")
                a(f"v_dot2c_f32_bf16 v{26 + (r & 1)}, v{r}, v{r}")
        for n in range(8):
            vm.wait(("st", n))
            for ks in range(4):
                a(f"ds_read_b128 {vr(gX + 16*n + 4*ks, 4)}, v{20+ks} offset:{(n&3)*4096}")
            if n:
                stats(n - 1)
            a("s_waitcnt lgkmcnt(0)")
            if n + o.sdepth < 8:
                self.stage_dma(n + o.sdepth, vm)
        self.stamp(2)
        a(f"ds_write_b32 v{self.gMY}, v{self.gONE} offset:{L_STG}")
        if o.gate_at == "stg":
            a(f"ds_write_b32 v{self.gMY}, v{self.gONE} offset:{L_GATE}")
        stats(7)
        a("s_nop 2")
        a("v_add_f32 v24, v24, v25\nv_add_f32 v26, v26, v27")
        a("v_mov_b32 v25, v24\nv_mov_b32 v27, v26\ns_nop 0")
        a("v_permlane32_swap_b32 v24, v25\nv_permlane32_swap_b32 v26, v27")
        a("v_add_f32 v24, v24, v25\nv_add_f32 v26, v26, v27")
        a(f"v_mul_f32 v24, {f2u(1/512):#x}, v24\nv_mul_f32 v26, {f2u(1/512):#x}, v26")
        a("v_fma_f32 v26, -v24, v24, v26\nv_max_f32 v26, 0, v26")
        a("v_cvt_pk_bf16_f32 v24, v24, v26")
        a(f"v_and_b32 v26, s{sMASK}, v24\nv_lshlrev_b32 v24, 16, v24\nv_add_f32 v26, {f2u(1e-5):#x}, v26")
        a("v_cvt_pk_bf16_f32 v26, v26, v26\nv_lshlrev_b32 v26, 16, v26\nv_sqrt_f32 v26, v26\ns_nop 0")
        a("v_cvt_pk_bf16_f32 v26, v26, v26\nv_lshlrev_b32 v26, 16, v26\nv_rcp_f32 v32, v26\ns_nop 0")
        a("v_mul_f32 v34, -v24, v32")
        a("s_branch L_g_bar1")

    def first_slot_touch(self, vm):
        a = self.a
        self.slot_touch_addr(18, 0)
        L, L2 = self.lab("tw3"), self.lab("tw3x")
        nt = self.o.tnt
        a(f"s_bitcmp1_b32 s{sW}, 1\ns_cbranch_scc1 {L}")
        a(f"buffer_load_dword v46, v18, {srd(R_W1)}, 0 offen {nt}\ns_branch {L2}")
        a(f"{L}:\nbuffer_load_dword v46, v18, {srd(R_W3)}, 0 offen {nt}\n{L2}:")
        vm.issue("t0")

    def slot_touch_addr(self, v, p):
        a, o = self.a, self.o
        if o.rotup:
            a(f"s_lshl1_add_u32 s{sT0}, s{sJ}, s{sG}\ns_and_b32 s{sT0}, s{sT0}, {o.rotup}\ns_lshl_b32 s{sT0}, s{sT0}, 6")
        else:
            a(f"s_and_b32 s{sT0}, s{sG}, 7\ns_lshl_b32 s{sT0}, s{sT0}, 6")
        a(f"v_add_u32 v{v}, s{sT0}, v1\nv_mul_u32_u24 v{v}, 3584, v{v}")
        a(f"s_and_b32 s{sT1}, s{sW}, 1\ns_mul_i32 s{sT1}, s{sT1}, {124 if p == 0 else 92}\ns_mul_i32 s{sT0}, s{sJ}, 224\ns_add_u32 s{sT0}, s{sT0}, s{sT1}")
        if p:
            a(f"s_add_u32 s{sT0}, s{sT0}, 128")
        a(f"v_add_u32 v{v}, s{sT0}, v{v}")

    def g_late(self, direct=False):
        a, o = self.a, self.o
        gT, dT = self.gT, self.dT
        a("v_and_b32 v19, 3, v1")
        RG0, RU0, RG1, RU1 = self.gRG0, self.gRU0, self.gRG1, self.gRU1
        a("v_bfe_u32 v20, v1, 1, 2\nv_bfe_u32 v21, v1, 4, 1\nv_xor_b32 v20, v20, v21")
        a("v_lshrrev_b32 v22, 3, v1\nv_mul_u32_u24 v23, 3584, v22\nv_and_b32 v24, 1, v1\nv_lshl_add_u32 v23, v24, 4, v23")
        a(f"v_lshl_add_u32 v{RG0}, v20, 5, v23")
        a(f"v_xor_b32 v24, 2, v20\nv_lshl_add_u32 v{RU0}, v24, 5, v23")
        a("v_mov_b32 v25, 0x40000000")
        a("v_cmp_eq_u32 vcc, 3, v20")
        a(f"v_cmp_eq_u32 s[{sT2}:{sT3}], 3, v24")
        a("v_bfe_u32 v26, v1, 2, 1\nv_xor_b32 v26, v26, v21\nv_lshlrev_b32 v26, 6, v26\nv_lshl_add_u32 v26, v19, 4, v26")
        a(f"v_cndmask_b32 v{RG1}, v{RG0}, v25, vcc")
        a(f"v_cndmask_b32 v{RU1}, v{RU0}, v25, s[{sT2}:{sT3}]")
        a(f"v_lshl_add_u32 v{self.dV}, v22, 10, v26")
        a(f"s_mul_i32 s{sBASE}, s{sW}, {16*3584}\ns_mul_i32 s{sT0}, s{sJ}, 224\ns_add_u32 s{sBASE}, s{sBASE}, s{sT0}")
        a(f"s_lshl_b32 s{sW4096}, s{sW}, 12")
        self.rot_expr(sROT)
        a("v_lshlrev_b32 v19, 3, v19\nv_bfe_u32 v20, v1, 2, 2\nv_lshrrev_b32 v22, 5, v1\nv_bfe_u32 v23, v1, 3, 1")
        a(f"v_lshl_add_u32 v24, v22, 9, v19\nv_lshl_add_u32 v24, v20, 6, v24\nv_lshl_add_u32 v24, v21, 5, v24\nv_add_u32 v{self.gTQ}, {WQI}, v24")
        a("v_lshl_add_u32 v24, v21, 11, v19\nv_lshl_add_u32 v24, v22, 10, v24\nv_lshl_add_u32 v24, v20, 7, v24")
        a(f"v_lshl_add_u32 v25, v21, 1, v23\nv_lshl_add_u32 v{gT}, v25, 5, v24")
        for mt in range(1, 4):
            a(f"v_xor_b32 v{gT+mt}, {32*mt}, v{gT}")
        if not (direct and o.dlate):
            self.g_late_d()
        a(f"v_and_b32 v24, 3, v1\nv_lshlrev_b32 v24, 2, v24\nv_add_u32 v{self.gFL}, {LFL}, v24")
        a(f"s_lshl_b32 s{sT0}, s{sW}, 2\ns_add_u32 s{sT0}, s{sT0}, {LFL}\nv_mov_b32 v{self.gMY}, s{sT0}")
        a(f"v_mov_b32 v{self.gONE}, 1\nv_mov_b32 v{self.vZ}, 0")
        nl, qs = f2u(-LOG2E), f2u(0.25 * LOG2E)
        a(f"s_mov_b32 s{sNL2}, {nl:#x}\ns_mov_b32 s{sNL2+1}, {nl:#x}\ns_mov_b32 s{sONE}, 1.0\ns_mov_b32 s{sONE+1}, 1.0")
        a(f"s_mov_b32 s{sQS}, {qs:#x}\ns_mov_b32 s{sQS+1}, {qs:#x}")
        a(f"s_lshl2_add_u32 s{sT0}, s{sG}, s{sW}")
        if not direct:
            a("v_and_b32 v16, 7, v1\nv_lshlrev_b32 v16, 7, v16")
            a(f"s_lshl_b32 s{sFXA}, s{sT0}, 10\ns_add_u32 s{sFXA}, s{sFXA}, {FX}")
            a(f"s_lshl_b32 s{sXB}, s{sT0}, 15\ns_add_u32 s{sXB}, s{sXB}, {XN}")
        a(f"s_mul_i32 s{sHS}, s{sT0}, 112\ns_mul_i32 s{sT1}, s{sJ}, 7\ns_add_u32 s{sHS}, s{sHS}, s{sT1}\ns_lshl_b32 s{sHS}, s{sHS}, 10\ns_add_u32 s{sHS}, s{sHS}, {HF}")
        a(f"s_lshl2_add_u32 s{sFH}, s{sP}, s{sW}\ns_lshl_b32 s{sFH}, s{sFH}, 7\ns_add_u32 s{sFH}, s{sFH}, {FH}")

    def g_late_d(self, redo=False):
        a, o = self.a, self.o
        gT, dT = self.gT, self.dT
        if redo:
            a("v_and_b32 v19, 3, v1\nv_lshlrev_b32 v19, 3, v19\nv_bfe_u32 v20, v1, 2, 2\nv_bfe_u32 v21, v1, 4, 1\nv_lshrrev_b32 v22, 5, v1\nv_bfe_u32 v23, v1, 3, 1")
        a(f"s_and_b32 s{sT5}, s{sI}, 3\ns_lshl2_add_u32 s{sT2}, s{sX8}, s{sT5}")
        a(f"s_lshr_b32 s{sNN}, s{sI}, 2")
        if o.nxor:
            a(f"s_xor_b32 s{sNN}, s{sNN}, {o.nxor}")
        a(f"s_lshl_b32 s{sT4}, s{sNN}, 7")
        a(f"s_mul_i32 s{sW2}, s{sW}, {28*16384}")
        if "w2n0" not in o.hack:
            a(f"s_add_u32 s{sW2}, s{sW2}, s{sT4}")
        a(f"s_lshl_b32 s{sWO}, s{sW}, 17\ns_add_u32 s{sWO}, s{sWO}, s{sT4}")
        a(f"s_lshl_b32 s{sRB}, s{sW}, 14\ns_add_u32 s{sRB}, s{sRB}, {RB0}")
        if o.rot:
            a(f"s_lshl1_add_u32 s{sRX}, s{sT5}, s{sNN}\ns_lshl_b32 s{sRX}, s{sRX}, 1")
            if o.xoff:
                a(f"s_lshl1_add_u32 s{sRX}, s{sX8}, s{sRX}")
            a(f"s_and_b32 s{sRX}, s{sRX}, 15")
            a(f"s_lshl1_add_u32 s{sRY}, s{sT5}, s{sNN}\ns_mul_i32 s{sRY}, s{sRY}, 3\ns_lshr_b32 s{sRY}, s{sRY}, 1")
            if o.xoff:
                a(f"s_add_u32 s{sRY}, s{sRY}, s{sX8}")
            for _ in range(2):
                a(f"s_sub_u32 s{sT0}, s{sRY}, 12\ns_cmp_ge_u32 s{sRY}, 12\ns_cselect_b32 s{sRY}, s{sT0}, s{sRY}")
        else:
            a(f"s_mov_b32 s{sRX}, 0\ns_mov_b32 s{sRY}, 0\ns_mov_b32 s{sNN}, 0")
        a(f"s_lshr_b32 s{sT0}, s{sW}, 1\ns_lshl1_add_u32 s{sT0}, s{sT2}, s{sT0}\ns_xor_b32 s{sT1}, s{sT0}, 1\ns_mul_i32 s{sT5}, s{sW}, 28")
        for sH, sO, st in ((sH0, sO0, sT0), (sH1, sO1, sT1)):
            a(f"s_mul_i32 s{sH}, s{st}, 112\ns_add_u32 s{sH}, s{sH}, s{sT5}\ns_lshl_b32 s{sH}, s{sH}, 10\ns_add_u32 s{sH}, s{sH}, {HF}")
            a(f"s_lshl_b32 s{sO}, s{st}, 2\ns_add_u32 s{sO}, s{sO}, s{sW}\ns_lshl_b32 s{sO}, s{sO}, 13\ns_add_u32 s{sO}, s{sO}, {OF}")
        a(f"s_lshl_b32 s{sOUT}, s{sT0}, 15\ns_add_u32 s{sOUT}, s{sOUT}, s{sT4}\ns_and_b32 s{sT1}, s{sW}, 1\ns_lshl_b32 s{sT1}, s{sT1}, 6\ns_add_u32 s{sOUT}, s{sOUT}, s{sT1}")
        a("v_lshl_add_u32 v24, v21, 5, v19\nv_lshl_add_u32 v24, v20, 7, v24\nv_lshl_add_u32 v24, v22, 9, v24\nv_lshl_add_u32 v24, v23, 6, v24")
        a(f"v_xor_b32 v24, s{sT1}, v24\nv_add_u32 v{dT}, s{sRB}, v24\nv_xor_b32 v{dT+1}, 64, v{dT}")
        a(f"s_lshr_b32 s{sT0}, s{sT2}, 1\ns_lshl2_add_u32 s{sT0}, s{sT0}, s{sW}\ns_lshl_b32 s{sT0}, s{sT0}, 4")
        a(f"s_and_b32 s{sT1}, s{sT2}, 1\ns_lshl1_add_u32 s{sT0}, s{sT1}, s{sT0}\ns_lshl_b32 s{sT0}, s{sT0}, 7")
        a(f"v_and_b32 v24, 3, v1\nv_lshlrev_b32 v25, 9, v24\nv_bfe_u32 v26, v1, 2, 1\nv_lshl_add_u32 v25, v26, 7, v25\nv_add_u32 v{self.dF}, s{sT0}, v25")
        a(f"v_and_b32 v25, 31, v1\nv_lshlrev_b32 v25, 10, v25\nv_lshl_add_u32 v{self.dXA}, v22, 3, v25")

    def wq_dma(self, vm):
        a = self.a
        a(f"s_lshl_b32 s{sT4}, s{sJ}, 6")
        a(f"s_lshl_b32 s{sT1}, s{sW}, 13\ns_add_u32 m0, s{sT1}, {WQI}")
        if self.o.rotup:
            a(f"s_lshl1_add_u32 s{sT5}, s{sJ}, s{sG}\ns_and_b32 s{sT5}, s{sT5}, {self.o.rotup}")
        else:
            a(f"s_mov_b32 s{sT5}, 0")
        for n in range(8):
            if n:
                a("s_add_u32 m0, m0, 1024")
            if n & 3 == 0:
                a(f"s_lshl1_add_u32 s{sT0}, s{sW}, s{sT5}\ns_add_u32 s{sT0}, s{sT0}, {n>>2}\ns_and_b32 s{sT0}, s{sT0}, 7\ns_lshl_b32 s{sT0}, s{sT0}, 16\ns_add_u32 s{sT0}, s{sT0}, s{sT4}")
            else:
                a(f"s_add_u32 s{sT0}, s{sT0}, 16384")
            a(f"buffer_load_dwordx4 v17, {srd(R_WQ)}, s{sT0} offen lds")
            vm.issue("wq")

    def ring_dma_parts(self, b, vm):
        a = self.a
        p, sl = b >> 3, b & 7
        vg, vu = (self.gRG0, self.gRU0) if p == 0 else (self.gRG1, self.gRU1)
        def p0():
            a(f"s_add_u32 s{sT0}, s{sROT}, {sl}\ns_and_b32 s{sT0}, s{sT0}, 7\ns_mul_i32 s{sT0}, s{sT0}, {64*3584}\ns_add_u32 s{sT0}, s{sT0}, s{sBASE}")
            a(f"s_add_u32 m0, s{sW4096}, {(b & 3) * 16384}")
            a(f"s_add_u32 s{sT1}, s{sT0}, {p*128 + 8*3584 - 1024}")
            if p:
                a(f"s_add_u32 s{sT0}, s{sT0}, {p*128}")
            a(f"buffer_load_dwordx4 v{vg}, {srd(R_W1)}, s{sT0} offen lds"); vm.issue(("ring", b))
        def p1():
            a(f"buffer_load_dwordx4 v{vg}, {srd(R_W1)}, s{sT1} offen offset:1024 lds"); vm.issue(("ring", b))
            a("s_add_u32 m0, m0, 2048")
        def p2():
            if self.o.batch:
                a("s_nop 0")
            a(f"buffer_load_dwordx4 v{vu}, {srd(R_W3)}, s{sT0} offen lds"); vm.issue(("ring", b))
        def p3():
            a(f"buffer_load_dwordx4 v{vu}, {srd(R_W3)}, s{sT1} offen offset:1024 lds"); vm.issue(("ring", b))
        return [p0, p1, p2, p3]

    def ring_fill(self, vm, lo, hi):
        for b in range(lo, hi):
            ps = self.ring_dma_parts(b, vm)
            ps[0](); ps[1](); self.a("s_nop 0"); ps[2](); ps[3]()

    def tr_pair(self, dst, vaddr, off, qstep):
        self.a(f"ds_read_b64_tr_b16 {vr(dst,2)}, v{vaddr} offset:{off}")
        self.a(f"ds_read_b64_tr_b16 {vr(dst+2,2)}, v{vaddr} offset:{off+qstep}")

    def kstep_index(self, n):
        a = self.a
        if n < 16:
            a(f"s_add_u32 s{sKS}, s{sRX}, {n}\ns_and_b32 s{sKS}, s{sKS}, 15\ns_lshr_b32 s{sT2}, s{sKS}, 2\ns_mul_i32 s{sT2}, s{sT2}, 3\ns_add_u32 s{sKS}, s{sKS}, s{sT2}")
        elif n < 28:
            a(f"s_add_u32 s{sKS}, s{sRY}, {n-16}\ns_sub_u32 s{sT2}, s{sKS}, 12\ns_cmp_ge_u32 s{sKS}, 12\ns_cselect_b32 s{sKS}, s{sT2}, s{sKS}")
            a(f"s_mul_i32 s{sT2}, s{sKS}, 11\ns_lshr_b32 s{sT2}, s{sT2}, 5\ns_lshl2_add_u32 s{sKS}, s{sT2}, s{sKS}\ns_add_u32 s{sKS}, s{sKS}, 4")
        else:
            a(f"s_add_u32 s{sKS}, s{sNN}, {n-28}\ns_and_b32 s{sKS}, s{sKS}, 7")

    def w2_dma(self, n, vm):
        a = self.a
        R, s = (R_W2, sW2) if n < 28 else (R_WO, sWO)
        a(f"s_add_u32 m0, s{sRB}, {(n & 7) * 2048}")
        a(f"s_lshl_b32 s{sT0}, s{sKS}, 14\ns_add_u32 s{sT0}, s{sT0}, s{s}\ns_add_u32 s{sT1}, s{sT0}, {8192 - 1024}")
        a(f"buffer_load_dwordx4 v{self.dV}, {srd(R)}, s{sT0} offen lds")
        a(f"buffer_load_dwordx4 v{self.dV}, {srd(R)}, s{sT1} offen offset:1024 lds")
        vm.issue(("w2", n)); vm.issue(("w2", n))

    def ldB(self, n, vm):
        a = self.a
        a(f"s_lshl_b32 s{sT0}, s{sKS}, 10")
        for bp in range(2):
            s = (sH0, sH1)[bp] if n < 28 else (sO0, sO1)[bp]
            a(f"s_add_u32 s{sT1}, s{sT0}, s{s}")
            a(f"buffer_load_dwordx4 {vr(self.dH+8*(n&15)+4*bp,4)}, v2, {srd(R_WS)}, s{sT1} offen sc1")
            vm.issue(("b", n))

    def resid_load(self, vm):
        a = self.a
        for i in range(4 if "nores" not in self.o.hack else 0):
            a(f"buffer_load_dwordx2 {vr(self.dXR+2*i,2)}, v{self.dXA}, {srd(R_X)}, s{sOUT} offen offset:{16*i}")
            vm.issue("xres")

    def g_main(self):
        a, o = self.a, self.o
        vm = self.vmG
        gT, gA, gC, gX, gE, gP = self.gT, self.gA, self.gC, self.gX, self.gE, self.gP
        ONE, TMP, FLG, MY = self.gONE, self.gTMP, self.gFL, self.gMY
        a("L_g_bar1:")
        if o.direct:
            self.q_direct(vm)
        else:
            a(f"v_mov_b32 v{self.vEP}, s{sE}")
            a("s_barrier")
            self.stamp(2)
            a(f"s_setprio {o.prioGhi}")
            if o.wq_at == "bar1":
                self.wq_dma(vm)
            if o.code_pf == 2:
                self.code_prefetch(vm)
            if o.t0 == 2:
                self.first_slot_touch(vm)
            self.g_late()
            if o.t0 == 3:
                a(f"v_and_b32 v18, 1, v1\nv_lshlrev_b32 v18, 2, v18\nv_add_u32 v18, {LFL+L_PUB}, v18")
                self.spin_lds(18, 19, "v_cmp_gt_u32 vcc, 1, v19", sleep=1)
                self.first_slot_touch(vm)
            if o.ring01 == "pub":
                a(f"v_and_b32 v18, 1, v1\nv_lshlrev_b32 v18, 2, v18\nv_add_u32 v18, {LFL+L_PUB}, v18")
                self.spin_lds(18, 19, "v_cmp_gt_u32 vcc, 1, v19", sleep=1)
                self.ring_fill(vm, 0, 2)
            if o.wq_at != "pub":
                vm.wait("wq")
                a(f"ds_write_b32 v{MY}, v{ONE} offset:{L_WQF}")
            self.stamp(3)
            self.poll_global(16, f"s{sFXA}", 19, 1, vm, lanes=8)
            a(f"ds_write_b32 v{MY}, v{ONE} offset:{L_GATE}")
            self.stamp(4)
            for s in range(32):
                if s & 3 == 0:
                    a(f"s_add_u32 s{sT0}, s{sROT}, {s>>2}\ns_and_b32 s{sT0}, s{sT0}, 7\ns_lshl_b32 s{sT0}, s{sT0}, 12\ns_add_u32 s{sT0}, s{sT0}, s{sXB}")
                a(f"buffer_load_dwordx4 {vr(gX+4*s,4)}, v2, {srd(R_WS)}, s{sT0} offen offset:{1024*(s&3)} sc1")
                vm.issue(("x", s))
            if o.ring01 == "afterx":
                self.ring_fill(vm, 0, 1)
            if o.wq_at == "pub":
                a(f"v_and_b32 v18, 1, v1\nv_lshlrev_b32 v18, 2, v18\nv_add_u32 v18, {LFL+L_WQF}, v18")
                self.spin_lds(18, TMP, f"v_cmp_gt_u32 vcc, 1, v{TMP}")
            else:
                self.spin_lds(FLG, TMP, f"v_cmp_gt_u32 vcc, 1, v{TMP}", off=L_WQF)
            for s in range(4):
                self.tr_pair(gA + 4 * s, self.gTQ, 1024 * s, 256)
            for s in range(32):
                left = min(3, 31 - s)
                vm.wait(("x", s), f"lgkmcnt({2*left})")
                c = "0" if s == 0 else vr(gC, 16)
                a(f"v_mfma_f32_32x32x16_bf16 {vr(gC,16)}, {vr(gA+4*(s%4),4)}, {vr(gX+4*s,4)}, {c}")
                if s + 4 < 32:
                    self.tr_pair(gA + 4 * (s % 4), self.gTQ, 1024 * (s + 4), 256)
                if s == o.r0at:
                    self.ring_fill(vm, 0, 1)
        if not o.gtrace and not o.gs:
            self.stamp(5)
        a(f"s_lshl_b32 s{sT0}, s{sW}, 11\ns_add_u32 s{sT0}, s{sT0}, {QX}")
        a(f"v_add_u32 v18, s{sT0}, v2")
        a("s_nop 8")
        for i in range(8):
            a(f"v_pk_mul_f32 {vr(gC+2*i,2)}, {vr(gC+2*i,2)}, s[{sQS}:{sQS+1}]")
        for i in range(8):
            a(f"v_cvt_pk_bf16_f32 v{gP+i}, v{gC+2*i}, v{gC+2*i+1}")
        a(f"ds_write_b128 v18, {vr(gP,4)}")
        a(f"ds_write_b128 v18, {vr(gP+4,4)} offset:1024")
        a(f"v_mul_f32 v{gE}, v{gC}, v{gC}\nv_mul_f32 v{gE+1}, v{gC+8}, v{gC+8}")
        for i in range(1, 8):
            a(f"v_fmac_f32 v{gE}, v{gC+i}, v{gC+i}\nv_fmac_f32 v{gE+1}, v{gC+8+i}, v{gC+8+i}")
        a("s_nop 1")
        a(f"v_permlane32_swap_b32 v{gE}, v{gE+1}")
        a(f"v_add_f32 v{gE}, v{gE}, v{gE+1}")
        a(f"v_and_b32 v{gE}, 0x7fffffff, v{gE}")
        self.reduce64("v_max_u32", gE, gE + 1)
        a("s_waitcnt lgkmcnt(0)")
        a(f"ds_write_b32 v{MY}, v{gE} offset:{L_QMAX}")
        self.stamp(6)
        if o.only == "A":
            a(f"v_mov_b32 v{TMP}, 18\nds_write_b32 v{MY}, v{TMP}\ns_waitcnt vmcnt(0) lgkmcnt(0)")
            self.stamp_flush()
            a("s_endpgm")
            return
        if o.ring01 == "apub":
            self.spin_lds(FLG, TMP, f"v_cmp_gt_u32 vcc, 1, v{TMP}", off=L_R0)
        elif o.astart:
            self.spin_lds(MY, TMP, f"v_cmp_gt_u32 vcc, 1, v{TMP}", sleep=1, off=L_ASTART)
        if o.direct and o.ringat != "stg":
            self.spin_lds(FLG, TMP, f"v_cmp_gt_u32 vcc, 1, v{TMP}", off=L_STG)
        if not (o.direct and o.ringat == "stg"):
            self.ring_fill(vm, {"pub": 2, "afterx": 1, "none": 1 if o.r0at >= 0 else 0, "apub": o.fill}[o.ring01], o.fill)
        LA = 4
        lg = Lg(a)
        items = []
        for b in range(16):
            for ks in range(4):
                for mt in range(4 if b < 8 else 3):
                    items.append((len(items), b, ks, mt))
        def mf(it):
            (n, b, ks, mt) = it
            kk = 4 * (b & 7) + ks
            c = "0" if kk == 0 else vr(gC + 16 * mt, 16)
            if "nomfma" in o.hack and kk > 0:
                return
            a(f"v_mfma_f32_32x32x16_bf16 {vr(gC+16*mt,16)}, {vr(gA+4*(n%LA),4)}, {vr(gX+4*kk,4)}, {c}")
        def rd(it):
            (n, b, ks, mt) = it
            if "nolds" in o.hack and n >= LA:
                return
            self.tr_pair(gA + 4 * (n % LA), gT + mt, (b & 3) * 16384 + ks * 4096, 512)
            lg.issue(("r", n)); lg.issue(("r", n))
        def signal():
            a(f"s_mov_b64 exec, 1\nds_add_u32 v{MY}, v{ONE}\ns_mov_b64 exec, -1"); lg.issue("sig")
        def peek():
            a(f"ds_read_b32 v{TMP}, v{FLG}"); lg.issue("peek")
        def check(target):
            waitcnt(a, lg=lg, ltag="peek")
            a(f"s_setprio {o.prioGhi}")
            self.spin_lds(FLG, TMP, f"v_cmp_gt_u32 vcc, {target}, v{TMP}", peeked=True)
            a(f"s_setprio {self.curp}")
        self.curp = o.prioGhi if o.hiup > 0 else o.prioG
        if o.direct and o.dlate:
            self.g_late_d(redo=True)
        vm.wait(("ring", 0))
        if o.ring01 == "apub" and o.astart:
            self.spin_lds(MY, TMP, f"v_cmp_gt_u32 vcc, 1, v{TMP}", sleep=1, off=L_ASTART)
        if o.fill < 3:
            self.ring_fill(vm, o.fill, 3)
        signal(); peek(); check(1)
        if not o.batch:
            for it in items[:LA]:
                rd(it)
        extras = {}
        def at(n, f):
            extras.setdefault(n, []).append(f)
        first = {b: min(n for (n, bb, _, _) in items if bb == b) for b in range(16)}
        def flag_h0():
            assert vm.need(("h", 3)) is None
            self.flag_store(self.vEP, 1, self.vZ, f"s{sFH}"); vm.issue("fl")
        def peek_h(tag):
            a(f"s_mov_b32 s{sT3}, {FH}")
            self.peek_global(self.dF, f"s{sT3}", self.vPK, 2, vm, tag, 8)
        def check_h(tag, word):
            a(f"s_setprio {o.prioGhi}")
            self.poll_global(self.dF, f"s{sT3}", self.vPK, 2, vm, lanes=8, word=word, first_issued=tag)
            a(f"s_setprio {self.curp}")
        self.peek_h, self.check_h = peek_h, check_h
        for b in range(16):
            f0 = first[b]
            if b < 15:
                at(f0 + 1, lambda b=b: (vm.wait(("ring", b + 1)), signal()))
                at(f0 + 2, peek)
                at(f0 + 5, lambda b=b: check(b + 2))
            if (0 if o.fill < 4 else 1) <= b <= 12 and "nodma" not in o.hack:
                for k, part in enumerate(self.ring_dma_parts(b + 3, vm)):
                    at(f0 + 6 + k, part)
            if b == 10:
                at(f0 + 3, flag_h0)
            if b == 12:
                at(f0 + 10, lambda: peek_h("pk0"))
            LD = o.LD
            if b == 13:
                at(f0 + 11, lambda: check_h("pk0", 0))
            if b == 14:
                if not o.w2pre:
                    for k in range(min(LD, 4)):
                        at(f0 + 3 + 2 * k + (k > 0), lambda n=k: (self.kstep_index(n), self.w2_dma(n, vm)))
                at(f0 + 11, lambda: self.resid_load(vm))
            if b == 15 and not o.w2pre:
                for k in range(4, LD):
                    at(f0 + k - 3, lambda n=k: (self.kstep_index(n), self.w2_dma(n, vm)))
            nh = o.hpre or LD
            if b == 14 and nh > 4:
                for k in range(nh - 4):
                    at(f0 + 1 + 2 * k, lambda n=k: (self.kstep_index(n), self.ldB(n, vm)))
            if b == 15:
                for k in range(max(0, nh - 4), nh):
                    at(f0 + 2 * (k - max(0, nh - 4)) + 2, lambda n=k: (self.kstep_index(n), self.ldB(n, vm)))
        self.w2_done = 0
        pre8 = 0
        if o.w2pre:
            for spec in str(o.w2pre).split("+"):
                sb, cnt = map(int, spec.split("x"))
                for k in range(cnt):
                    n = self.w2_done; self.w2_done += 1
                    if sb == 8:
                        pre8 += 1
                    else:
                        at(first[sb] + (10, 11, 0, 3)[k // 1 % 4] if cnt <= 4 else first[sb] + k, lambda n=n: (self.kstep_index(n), self.w2_dma(n, vm)))
        n_pre8_first = self.w2_done - sum(int(x.split("x")[1]) for x in str(o.w2pre).split("+") if x and int(x.split("x")[0]) >= 8) if o.w2pre else 0
        a(f"s_setprio {self.curp}")
        if o.batch:
            BUF = (gA, 16)
            steps = [(b, ks) for b in range(16) for ks in range(4)]
            def nm_of(b): return 4 if b < 8 else 3
            def rdk(q):
                b, ks = steps[q]
                for mt in range(nm_of(b)):
                    if mt == nm_of(b) - 1 and len(lg.q) + 2 > 15:
                        n_keep = 13
                        a(f"s_waitcnt lgkmcnt({n_keep})"); lg.q = lg.q[len(lg.q) - n_keep:]
                    self.tr_pair(BUF[q & 1] + 4 * mt, gT + mt, (b & 3) * 16384 + ks * 4096, 512)
                    lg.issue(("k", q)); lg.issue(("k", q))
            rdk(0); rdk(1)
            for q, (b, ks) in enumerate(steps):
                if ks == 0:
                    if b == o.hiup and b > 0:
                        self.curp = o.prioG
                        a(f"s_setprio {self.curp}")
                    self.trv = 28
                    self.trace_pt(vm, b)
                    if o.gtrace and b in (1, 4, 8, 12):
                        self.stamp({1: 1, 4: 2, 8: 3, 12: 5}[b])
                if q == 32:
                    a(f"s_setprio {o.prioGhi}")
                    for k in range(pre8):
                        self.kstep_index(n_pre8_first + k)
                        self.w2_dma(n_pre8_first + k, vm)
                    a("s_nop 7")
                    self.silu_store(0, 4, vm)
                    a(f"s_setprio {self.curp}")
                    rdk(33)
                    if o.gtrace:
                        self.stamp(4)
                waitcnt(a, lg=lg, ltag=("k", q))
                kk = 4 * (b & 7) + ks
                for mt in range(nm_of(b)):
                    c = "0" if kk == 0 else vr(gC + 16 * mt, 16)
                    a(f"v_mfma_f32_32x32x16_bf16 {vr(gC+16*mt,16)}, {vr(BUF[q&1]+4*mt,4)}, {vr(gX+4*kk,4)}, {c}")
                nb = nm_of(b)
                lo, hi = first[b] + ks * nb, first[b] + (ks + 1) * nb
                late = []
                for n in range(lo, hi):
                    for f in extras.get(n, []):
                        late.append(f)
                if ks == 2 and b < 15:
                    pass
                if q + 2 < len(steps) and q + 2 != 33:
                    rdk(q + 2)
                for f in late:
                    f()
        else:
            for it in items:
                n, b = it[0], it[1]
                if n == first[b] and b == o.hiup and b > 0:
                    self.curp = o.prioG
                    a(f"s_setprio {self.curp}")
                if n == first[b]:
                    self.trv = 28
                    self.trace_pt(vm, b)
                if o.gs and n == first[b] and o.gs <= b < o.gs + 5:
                    self.stamp(b - o.gs + 1)
                if o.gtrace and n == first[b] and b in (1, 4, 8, 12):
                    self.stamp({1: 1, 4: 2, 8: 3, 12: 5}[b])
                if n == first[8]:
                    a(f"s_setprio {o.prioGhi}")
                    for k in range(pre8):
                        self.kstep_index(n_pre8_first + k)
                        self.w2_dma(n_pre8_first + k, vm)
                    a("s_nop 7")
                    self.silu_store(0, 4, vm)
                    a(f"s_setprio {self.curp}")
                    if o.gtrace:
                        self.stamp(4)
                waitcnt(a, lg=lg, ltag=("r", n))
                mf(it)
                if n + LA < len(items):
                    rd(items[n + LA])
                for f in extras.get(n, []):
                    f()
        signal()
        a(f"s_setprio {o.prioGhi}")
        a("s_nop 7\ns_nop 1")
        self.silu_store(4, 3, vm)
        self.stamp(7)
        self.down(vm)

    def q_direct(self, vm):
        a, o = self.a, self.o
        gA, gC, gX = self.gA, self.gC, self.gX
        TMP, FLG = self.gTMP, self.gFL
        if o.ringat == "stg":
            self.spin_lds(FLG, TMP, f"v_cmp_gt_u32 vcc, 1, v{TMP}", off=L_STG)
            self.ring_fill(vm, 0, o.fill)
        self.stamp(3)
        def norm(s):
            for i in range(4):
                r, t = gX + 4 * s + i, 16 + 2 * i + 8 * (s & 1)
                a(f"v_lshlrev_b32 v{t}, 16, v{r}\nv_and_b32 v{t+1}, s{sMASK}, v{r}")
            for i in range(4):
                t = 16 + 2 * i + 8 * (s & 1)
                a(f"v_pk_fma_f32 {vr(t,2)}, {vr(t,2)}, v[32:33], v[34:35] op_sel_hi:[1,0,0]")
            for i in range(4):
                r, t = gX + 4 * s + i, 16 + 2 * i + 8 * (s & 1)
                a(f"v_cvt_pk_bf16_f32 v{r}, v{t}, v{t+1}")
        for s in range(4):
            norm(s)
        a(f"v_and_b32 v36, 1, v1\nv_lshlrev_b32 v36, 2, v36\nv_add_u32 v36, {LFL+L_WQF}, v36")
        self.spin_lds(36, TMP, f"v_cmp_gt_u32 vcc, 1, v{TMP}")
        self.stamp(4)
        for s in range(4):
            self.tr_pair(gA + 4 * s, self.gTQ, 1024 * s, 256)
        for s in range(32):
            if o.gate_at == s:
                a(f"ds_write_b32 v{self.gMY}, v{self.gONE} offset:{L_GATE}")
            if s + 4 < 32:
                norm(s + 4)
            left = min(3, 31 - s)
            a(f"s_waitcnt lgkmcnt({0 if o.gate_at == s else 2*left})")
            c = "0" if s == 0 else vr(gC, 16)
            a(f"v_mfma_f32_32x32x16_bf16 {vr(gC,16)}, {vr(gA+4*(s%4),4)}, {vr(gX+4*s,4)}, {c}")
            if s + 4 < 32:
                self.tr_pair(gA + 4 * (s % 4), self.gTQ, 1024 * (s + 4), 256)

    def silu_store(self, mt0, nm, vm):
        a = self.a
        gC, gE, gP = self.gC, self.gE, self.gP
        for m in range(nm):
            G, U, E, P = gC + 16 * m, gC + 16 * m + 8, gE, gP + 4 * (m & 1)
            for i in range(4):
                a(f"v_pk_mul_f32 {vr(E+2*i,2)}, {vr(G+2*i,2)}, s[{sNL2}:{sNL2+1}]")
            for i in range(8):
                a(f"v_exp_f32 v{E+i}, v{E+i}")
            for i in range(4):
                a(f"v_pk_mul_f32 {vr(G+2*i,2)}, {vr(G+2*i,2)}, {vr(U+2*i,2)}")
            for i in range(4):
                a(f"v_pk_add_f32 {vr(E+2*i,2)}, {vr(E+2*i,2)}, s[{sONE}:{sONE+1}]")
            for i in range(8):
                a(f"v_rcp_f32 v{E+i}, v{E+i}")
            if m == 0 and mt0:
                a(f"s_add_u32 s{sHS}, s{sHS}, {1024*mt0}")
            else:
                a("s_nop 0")
            for i in range(4):
                a(f"v_pk_mul_f32 {vr(G+2*i,2)}, {vr(G+2*i,2)}, {vr(E+2*i,2)}")
            for i in range(4):
                a(f"v_cvt_pk_bf16_f32 v{P+i}, v{G+2*i}, v{G+2*i+1}")
            a(f"buffer_store_dwordx4 {vr(P,4)}, v2, {srd(R_WS)}, s{sHS} offen offset:{1024*m} sc1")
            vm.issue(("h", mt0 + m))
            if self.o.dup & 2:
                a(f"buffer_store_dwordx4 {vr(P,4)}, v2, {srd(R_WS)}, s{sHS} offen offset:{1024*m} {self.o.dupf}")
                vm.issue(("h", mt0 + m))

    def red_addr(self):
        a = self.a
        a(f"v_add_u32 v16, s{sRB}, v2")
        for u in range(1, 4):
            a(f"s_xor_b32 s{sT0}, s{sW}, {u}\ns_lshl_b32 s{sT0}, s{sT0}, 14\ns_add_u32 s{sT0}, s{sT0}, {RB0 + (u-1)*4096}")
            a(f"v_add_u32 v{16+u}, s{sT0}, v2")
        a(f"v_mov_b32 v{self.gTMP}, 18")

    def down(self, vm):
        a, o = self.a, self.o
        gA, gC, gP, dT, dH = self.gA, self.gC, self.gP, self.dT, self.dH
        def rdA(n):
            buf = gA + 8 * (n & 1)
            self.tr_pair(buf, dT, (n & 7) * 2048, 1024)
            self.tr_pair(buf + 4, dT + 1, (n & 7) * 2048, 1024)
        LD = o.LD
        early_gate = 2 <= o.n0 <= 16 - LD
        assert o.n0 < 0 or o.n0 >= 2
        nxt = {"w": self.w2_done if o.w2pre else LD, "b": o.hpre or LD}
        def fill(wmax, bmax):
            while nxt["w"] <= wmax or nxt["b"] <= bmax:
                dw, db = nxt["w"] <= wmax, nxt["b"] <= bmax
                m = min(nxt["w"] if dw else 99, nxt["b"] if db else 99)
                self.kstep_index(m)
                if dw and nxt["w"] == m:
                    self.w2_dma(m, vm); nxt["w"] += 1
                if db and nxt["b"] == m:
                    self.ldB(m, vm); nxt["b"] += 1
        if o.fastred:
            self.red_addr()
            a(f"v_lshrrev_b32 v20, 5, v1\nv_lshl_add_u32 v20, v20, 3, v{self.dXA}\nv_mov_b32 v21, 18")
        vm.wait("xres")
        rdA(0)
        for i in range(8):
            a(f"v_lshlrev_b32 v{gC+2*i}, 16, v{self.dXR+i}")
            a(f"v_and_b32 v{gC+2*i+1}, s{sMASK}, v{self.dXR+i}")
        self.stamp(8)
        self.curp = o.prioGhi if o.hidown > 0 else o.prioG
        a(f"s_setprio {self.curp}")
        def step(n, nP):
            if n == o.hidown and n > 0:
                self.curp = o.prioG
                a(f"s_setprio {self.curp}")
            self.trv = 28
            self.trace_pt(vm, 17 + n)
            if o.dtrace and n in (4, 8, 13, 16, 22):
                self.a(f"s_memrealtime s[{sTS+(1,2,3,4,5)[(4,8,13,16,22).index(n)]-((sTS+(1,2,3,4,5)[(4,8,13,16,22).index(n)])&1)}:{sTS+(1,2,3,4,5)[(4,8,13,16,22).index(n)]-((sTS+(1,2,3,4,5)[(4,8,13,16,22).index(n)])&1)+1}]" if False else "s_nop 0")
                self.stamp({4: 1, 8: 2, 13: 3, 16: 4, 22: 5}[n])
            if n == nP - 3 and nP < 28:
                a(f"s_mov_b32 s{sT3}, {FO}")
                self.peek_global(self.dF, f"s{sT3}", self.vPK, 1, vm, "pko", 8)
            if n == 28 and nP < 28:
                self.stamp(9)
            if n == nP:
                a(f"s_setprio {o.prioGhi}")
                if nP == 28:
                    self.stamp(9)
                    a(f"s_mov_b32 s{sT3}, {FO}")
                    self.poll_global(self.dF, f"s{sT3}", self.vPK, 1, vm, lanes=8)
                else:
                    assert nxt["b"] > 27 and nP >= 20
                    self.poll_global(self.dF, f"s{sT3}", self.vPK, 1, vm, lanes=8, first_issued="pko")
                self.stamp(10)
                for m in range(28, 36):
                    self.kstep_index(m)
                    self.ldB(m, vm)
            if n == o.n0:
                if early_gate:
                    fill(min(n + 7, 35), min(n + 15, 15))
                    a(f"s_mov_b32 s{sT3}, {FH}\ns_setprio {o.prioGhi}")
                    self.poll_global(self.dF, f"s{sT3}", self.vPK, 2, vm, lanes=8, word=1, sleep=2)
                fill(min(n + 7, 35), min(n + 15, 27))
                a(f"s_setprio {o.prioGhi}")
                self.spin_lds(self.gMY, self.gTMP, f"v_cmp_gt_u32 vcc, 1, v{self.gTMP}", sleep=2, off=L_ADONE)
            if n + 1 < 36:
                vm.wait(("w2", n + 1))
                rdA(n + 1)
                vm.wait(("b", n), "lgkmcnt(4)")
            else:
                vm.wait(("b", n), "lgkmcnt(0)")
            buf = gA + 8 * (n & 1)
            for u in ((1, 3, 2, 0) if (o.fastred and n == 35) else (0, 1, 3, 2)):
                ap, bp = u & 1, u >> 1
                c = "0" if (n == 0 and u) else vr(gC + 16 * u, 16)
                a(f"v_mfma_f32_32x32x16_bf16 {vr(gC+16*u,16)}, {vr(buf+4*ap,4)}, {vr(dH+8*(n&15)+4*bp,4)}, {c}")
            if n == 1:
                vm.wait(("h", 6))
                self.flag_store(self.vEP, 1, self.vZ, f"s{sFH}", off=4); vm.issue("fl")
            pk1 = o.pk1 if o.deep >= 0 else 16 - LD - 3
            if n == pk1 and not early_gate:
                self.peek_h("pk1")
            if n == pk1 + 3 and not early_gate:
                self.check_h("pk1", 1)
            if o.n0 >= 0 and n >= o.n0:
                fill(min(n + 8, 35), min(n + 16, 27))
            elif o.deep >= 0 and n >= o.deep:
                bcap = 27 if n >= pk1 + 3 else 15
                fill(min(n + 8, 35, nxt["w"] - 1 + o.dstep), min(n + 16, bcap, nxt["b"] - 1 + o.dstep))
            elif o.LDW == 8:
                fill(min(n + 8, 35), min(n + LD, 27))
            else:
                fill(min(n + (o.LDW or LD), 27), min(n + LD, 27))
                if 20 <= n < 28:
                    fill(n + 8 if nxt["w"] >= 28 else -1, -1)
        if not o.nE:
            for n in range(36):
                step(n, o.nP)
        else:
            import copy
            for n in range(o.nE):
                if n == o.nE - 3:
                    a(f"s_mov_b32 s{sT3}, {FO}")
                    self.peek_global(self.dF, f"s{sT3}", self.vPK, 1, vm, "pko", 8)
                step(n, 99)
            assert nxt["b"] > 27
            Ll, Lj = self.lab("olate"), self.lab("ojoin")
            vm.wait("pko")
            a(f"s_setprio {o.prioGhi}\ns_mov_b64 exec, 0xff\nv_cmp_ne_u32 vcc, s{sE}, v{self.vPK}\ns_mov_b64 exec, -1\ns_setprio {self.curp}")
            a(f"s_cbranch_vccnz {Ll}")
            q0, nx0, cp0 = list(vm.q), dict(nxt), self.curp
            self.stamp(10)
            for m in range(28, 36):
                self.kstep_index(m)
                self.ldB(m, vm)
            for n in range(o.nE, 36):
                if n == 28:
                    self.stamp(9)
                step(n, 99)
            a(f"s_branch {Lj}")
            a(f"{Ll}:")
            vm.q = q0; nxt.update(nx0); self.curp = cp0
            for n in range(o.nE, 36):
                step(n, 28)
            a(f"{Lj}:")
        self.stamp(11)
        if not o.fastred:
            self.red_addr()
            a("s_nop 1")
        else:
            a("s_nop 7\ns_nop 0")
        for u in ((1, 3, 2) if o.fastred else (1, 2, 3)):
            for q in range(4):
                a(f"ds_write_b128 v16, {vr(gC+16*u+4*q,4)} offset:{(u-1)*4096+q*1024}")
        if not o.fastred:
            a(f"v_lshrrev_b32 v20, 5, v1\nv_lshl_add_u32 v20, v20, 3, v{self.dXA}")
        a("s_waitcnt lgkmcnt(0)")
        a(f"ds_write_b32 v{self.gMY}, v{21 if o.fastred else self.gTMP}")
        self.spin_lds(self.gFL, self.gTMP, f"v_cmp_gt_u32 vcc, 18, v{self.gTMP}")
        for u in range(1, 4):
            for q in range(4):
                a(f"ds_read_b128 {vr(gC+16*u+4*q,4)}, v{16+u} offset:{q*1024}")
        for u in range(1, 4):
            a(f"s_waitcnt lgkmcnt({4*(3-u)})")
            for i in range(8):
                a(f"v_pk_add_f32 {vr(gC+2*i,2)}, {vr(gC+2*i,2)}, {vr(gC+16*u+2*i,2)}")
        for i in range(8):
            a(f"v_cvt_pk_bf16_f32 v{gP+i}, v{gC+2*i}, v{gC+2*i+1}")
        a("s_nop 0")
        for k in (0, 4):
            a(f"v_permlane32_swap_b32 v{gP+k}, v{gP+k+2}\nv_permlane32_swap_b32 v{gP+k+1}, v{gP+k+3}")
        a(f"buffer_store_dwordx4 {vr(gP,4)}, v20, {srd(R_OUT)}, s{sOUT} offen {o.ost}")
        a(f"buffer_store_dwordx4 {vr(gP+4,4)}, v20, {srd(R_OUT)}, s{sOUT} offen offset:32 {o.ost}")
        self.stamp(12)
        if o.ts:
            a("s_waitcnt vmcnt(0)")
            self.stamp(13)
        self.stamp_flush()
        a("s_endpgm")

    def build(self):
        a = self.a
        self.prologue()
        self.a_main()
        self.g_early()
        self.g_main()
        self.a_slow()
        a("L_end:")
        a("s_endpgm")
        a("L_code_end:")
        return a


HEADER = """; Fused LayerNorm + MQA attention + SwiGLU FFN, one persistent launch (256 workgroups x 8 waves).
; @launch grid=(256,1,1) block=(512,1,1) lds={lds}
.amdgcn_target "amdgcn-amd-amdhsa--gfx950"
.text
.globl {name}
.p2align 8
.type {name},@function
{name}:
"""
FOOTER = """.section .rodata,"a"
.p2align 6
.amdhsa_kernel {name}
  .amdhsa_next_free_vgpr 256
  .amdhsa_next_free_sgpr 102
  .amdhsa_accum_offset 256
  .amdhsa_group_segment_fixed_size 0
  .amdhsa_kernarg_size 96
  .amdhsa_user_sgpr_count 2
  .amdhsa_user_sgpr_kernarg_segment_ptr 1
  .amdhsa_system_sgpr_workgroup_id_x 1
.end_amdhsa_kernel
"""

def generate(check=True, **kw):
    g = Gen(**kw)
    a = g.build()
    if check:
        errs = check_hazards(a.lines) + check_waits(a.lines)
        for e in errs[:6]:
            print(e, file=sys.stderr)
        if errs:
            print(f"{len(errs)} problems", file=sys.stderr)
    return HEADER.format(name=NAME, lds=LDS_SIZE) + a.text() + FOOTER.format(name=NAME)

if __name__ == "__main__":
    out = "parallel_sum__grouped_kv_mqa__glu_gated_swiglu__prompt.s"
    kw = {}
    args = sys.argv[1:]
    i = 0
    while i < len(args):
        x = args[i]
        if x == "-o":
            out = args[i + 1]; i += 2
        elif "=" in x:
            k, v = x.split("=", 1)
            try:
                v = int(v)
            except ValueError:
                pass
            kw[k] = v; i += 1
        else:
            kw[x.lstrip("-")] = True; i += 1
    txt = generate(**kw)
    open(out, "w").write(txt)
    print("wrote", out, len(txt), "bytes", kw)
```

```python
import sys, struct, argparse
from asmlib import Asm, Vm, Lg, waitcnt, check_hazards, check_waits

NAME = "parallel_sum__grouped_kv_mqa__glu_gated_swiglu__prompt_kernel"

def f2u(x):
    return struct.unpack("<I", struct.pack("<f", x))[0]

FL = 0x0
F0 = 0x1000
XT = 0xA000
FH = 0x10000
FO = 0x30000
FX = 0x50000
TS = 0x60000
XN = 0x100000
KF = 0x300000
VF = 0x310000
OF = 0x400000
HF = 0x600000
WS_SIZE = 0x1000000
RING = 0
WQI = 65536
WKV = 98304
XROW = 131072
PITCH = 1040
QX = 140288
LFL = 148480
L_GCNT, L_QMAX, L_KMAX, L_MFL, L_WQF, L_VFL, L_PUB, L_GATE, L_ADONE, L_ASTART, L_ROW, L_STG, L_R0, L_XI = 0, 16, 32, 48, 64, 80, 88, 96, 112, 128, 144, 160, 176, 192
LDS_SIZE = 163840
RB0 = 65536

R_X, R_WS, R_WQ, R_WK, R_WV, R_W1, R_W3, R_W2, R_WO, R_OUT = [4 * i + 4 for i in range(10)]
sW, sG, sJ, sP, sE = 44, 45, 46, 47, 48
sMASK = 49
sT0, sT1, sT2, sT3, sT4, sT5 = 50, 51, 52, 53, 54, 55
sCNT = 56
sX8, sI = 57, 58
sROT = 59
sXM = 60
sNL2 = 62
sONE = 64
sQS = 66
sBASE, sW4096 = 68, 69
sH0, sH1, sO0, sO1 = 70, 71, 72, 73
sW2, sWO, sRB, sOUT = 74, 75, 76, 77
sK, sWA = 78, 79
sPC = 80
sTS = 84
sPCX = 98
sIDX, sKB, sFH = 3, 100, 101
sRX, sRY, sNN, sKS = 0, 1, 2, 80
sHS, sXB, sFXA = 81, 82, 83

def srd(r):
    return f"s[{r}:{r+3}]"
def vr(a, n):
    return f"v[{a}:{a+n-1}]" if n > 1 else f"v{a}"

LOG2E = 1.4426950408889634
THRESH2 = 60.0 * 60.0
SPIN_G = 200000
SPIN_L = 2000000


class Gen:
    def __init__(self, **o):
        d = dict(ts=False, slow=False, prioA=1, prioG=0, prioGhi=2, code_pf=1, rotup=1, rot=1, n0=-1, asleep=0,
                 xnt="nt", wq_at="pub", ring01="none", gtrace=False, only="", dbg=False, amap=2, lnfast=1, peel=1, kvlate=0, astart=1, atouch=0, xoff=1, trace=0, LD=3, fill=1, p0=13, t0=0, t1=1, tx=1, tnt='', vpos=2, kpos=1, hiup=0, hidown=0, probe=-1, pw=0, pm=20, ost='', direct=0, ringat='stg', sdepth=4, aprio0=3, wqw=0, gate_at=0, dlate=1, gprio0=1, hack='', nxor=0, txor=0, tk=1, pfshare=32, vt=4, deep=-1, pk1=4, skiplast=0, dstep=2, w2pre='8x4+12x2+13x2', hpre=0, LDW=8, dtrace=0, batch=0, nP=28, fastred=1, mprio=0, lastprio=0, nE=0, twq=0, gs=0, dup=0, dupf='', r0at=-1, wqlate=1, nosleep=1, dyn=1)
        d.update(o)
        if d["direct"]:
            for k, v in dict(amap=2, kvlate=0, astart=0).items():
                if k not in o:
                    d[k] = v
        self.o = type("O", (), d)
        self.a = Asm()
        self.uid = 0

    def lab(self, s):
        self.uid += 1
        return f"L_{s}_{self.uid}"

    def stamp(self, i):
        if self.o.ts:
            self.a(f"s_memrealtime s[{sPCX}:{sPCX+1}]\ns_waitcnt lgkmcnt(0)\ns_mov_b32 s{sTS+i}, s{sPCX}")

    def trace_pt(self, vm, idx, dyn=None):
        if not self.o.trace or (vm is not None and self.o.trace == 2):
            return
        a = self.a
        a(f"s_memrealtime s[{sPCX}:{sPCX+1}]\ns_memtime s[{sTS+10}:{sTS+11}]\ns_waitcnt lgkmcnt(0)")
        a(f"s_lshl3_add_u32 s{sTS+12}, s{sP}, s{sW}\ns_lshl_b32 s{sTS+12}, s{sTS+12}, 6\ns_add_u32 s{sTS+12}, s{sTS+12}, {idx}")
        if dyn is not None:
            a(f"s_add_u32 s{sTS+12}, s{sTS+12}, s{dyn}")
        a(f"s_lshl_b32 s{sTS+12}, s{sTS+12}, 3\ns_add_u32 s{sTS+12}, s{sTS+12}, {0xE00000}")
        a(f"s_mov_b64 exec, 1\nv_mov_b32 v{self.trv}, s{sPCX}\nv_mov_b32 v{self.trv+1}, s{sTS+10}\nv_mov_b32 v{self.trv+2}, 0")
        a(f"buffer_store_dwordx2 v[{self.trv}:{self.trv+1}], v{self.trv+2}, {srd(R_WS)}, s{sTS+12} offen\ns_mov_b64 exec, -1")
        if vm is not None:
            vm.issue("trace")

    def stamp_flush(self):
        if not self.o.ts:
            return
        a = self.a
        if self.o.probe >= 0:
            L, Lx = self.lab("probe"), self.lab("probex")
            a(f"s_lshl3_add_u32 s{sT0}, s{sP}, s{sW}\ns_cmp_lg_u32 s{sT0}, {100*8 + self.o.pw}\ns_cbranch_scc1 {Lx}")
            a(f"s_sub_u32 s{sT1}, s{sTS+self.o.probe}, s{sTS}\ns_mul_i32 s{sT1}, s{sT1}, {self.o.pm}")
            a(f"s_memrealtime s[{sPCX}:{sPCX+1}]\ns_waitcnt lgkmcnt(0)\ns_mov_b32 s{sT2}, s{sPCX}")
            a(f"{L}:\ns_memrealtime s[{sPCX}:{sPCX+1}]\ns_waitcnt lgkmcnt(0)\ns_sub_u32 s{sT3}, s{sPCX}, s{sT2}\ns_cmp_lt_u32 s{sT3}, s{sT1}\ns_cbranch_scc1 {L}")
            a(f"{Lx}:")
            return
        a(f"s_lshl_b32 s{sT0}, s{sP}, 3\ns_add_u32 s{sT0}, s{sT0}, s{sW}\ns_lshl_b32 s{sT0}, s{sT0}, 6\ns_add_u32 s{sT0}, s{sT0}, {TS}")
        a("s_mov_b64 exec, 1")
        a("v_mov_b32 v2, 0")
        for i in range(16):
            a(f"v_mov_b32 v3, s{sTS+i}")
            a(f"buffer_store_dword v3, v2, {srd(R_WS)}, s{sT0} offen offset:{4*i}")
        a("s_waitcnt vmcnt(0)")

    def reduce64(self, op, v, t):
        a = self.a
        for ctl in ("quad_perm:[1,0,3,2]", "quad_perm:[2,3,0,1]", "row_half_mirror", "row_mirror"):
            a("s_nop 1")
            a(f"{op}_dpp v{v}, v{v}, v{v} {ctl} row_mask:0xf bank_mask:0xf")
        for sw in ("v_permlane16_swap_b32", "v_permlane32_swap_b32"):
            a(f"v_mov_b32 v{t}, v{v}")
            a("s_nop 1")
            a(f"{sw} v{v}, v{t}")
            a(f"{op} v{v}, v{v}, v{t}")

    def reduce64x2(self, v0, t0, v1, t1):
        a = self.a
        a("s_nop 1")
        for ctl in ("quad_perm:[1,0,3,2]", "quad_perm:[2,3,0,1]", "row_half_mirror", "row_mirror"):
            a(f"v_add_f32_dpp v{v0}, v{v0}, v{v0} {ctl} row_mask:0xf bank_mask:0xf")
            a(f"v_add_f32_dpp v{v1}, v{v1}, v{v1} {ctl} row_mask:0xf bank_mask:0xf")
            a("s_nop 0")
        for sw in ("v_permlane16_swap_b32", "v_permlane32_swap_b32"):
            a(f"v_mov_b32 v{t0}, v{v0}\nv_mov_b32 v{t1}, v{v1}\ns_nop 0")
            a(f"{sw} v{v0}, v{t0}\n{sw} v{v1}, v{t1}")
            a(f"v_add_f32 v{v0}, v{v0}, v{t0}\nv_add_f32 v{v1}, v{v1}, v{t1}")

    def poll_global(self, vaddr, soff, vdst, ndw, vm, lanes=64, sleep=0, word=0, first_issued=None):
        a = self.a
        L, Lo, Lc = self.lab("poll"), self.lab("pollx"), self.lab("pollc")
        ld = "buffer_load_dword" if ndw == 1 else "buffer_load_dwordx2"
        if first_issued is not None:
            vm.wait(first_issued)
        a(f"s_mov_b32 s{sCNT}, 0")
        if lanes < 64:
            a(f"s_mov_b64 exec, {(1 << lanes) - 1:#x}")
        if first_issued is not None:
            a(f"v_cmp_ne_u32 vcc, s{sE}, v{vdst+word}")
            a(f"s_cbranch_vccz {Lo}")
        elif sleep:
            a(f"s_branch {Lc}")
        a(f"{L}:")
        if sleep:
            a(f"s_sleep {sleep}")
            a(f"{Lc}:")
        a(f"{ld} {vr(vdst, ndw)}, v{vaddr}, {srd(R_WS)}, {soff} offen sc1")
        a(f"s_add_u32 s{sCNT}, s{sCNT}, 1")
        a("s_waitcnt vmcnt(0)")
        a(f"v_cmp_ne_u32 vcc, s{sE}, v{vdst+word}")
        a(f"s_cmp_gt_u32 s{sCNT}, {SPIN_G}")
        a(f"s_cbranch_scc1 {Lo}")
        a(f"s_cbranch_vccnz {L}")
        a(f"{Lo}:")
        if lanes < 64:
            a("s_mov_b64 exec, -1")
        if first_issued is None:
            vm.q = []

    def peek_global(self, vaddr, soff, vdst, ndw, vm, tag, lanes):
        a = self.a
        ld = "buffer_load_dword" if ndw == 1 else "buffer_load_dwordx2"
        a(f"s_mov_b64 exec, {(1 << lanes) - 1:#x}")
        a(f"{ld} {vr(vdst, ndw)}, v{vaddr}, {srd(R_WS)}, {soff} offen sc1")
        a("s_mov_b64 exec, -1")
        vm.issue(tag)

    def spin_lds(self, vaddr, vdst, cmp, sleep=0, off=0, peeked=False):
        a = self.a
        L, Lo = self.lab("spin"), self.lab("spinx")
        o = f" offset:{off}" if off else ""
        a(f"s_mov_b32 s{sCNT}, 0")
        if peeked:
            a(cmp)
            a(f"s_cbranch_vccz {Lo}")
        a(f"{L}:")
        if sleep and not self.o.nosleep:
            a(f"s_sleep {sleep}")
        a(f"ds_read_b32 v{vdst}, v{vaddr}{o}")
        a(f"s_add_u32 s{sCNT}, s{sCNT}, 1")
        a("s_waitcnt lgkmcnt(0)")
        a(cmp)
        a(f"s_cmp_gt_u32 s{sCNT}, {SPIN_L}")
        a(f"s_cbranch_scc1 {Lo}")
        a(f"s_cbranch_vccnz {L}")
        a(f"{Lo}:")

    def flag_store(self, vdata, ndw, vzero, soff, off=0):
        a = self.a
        st = "buffer_store_dword" if ndw == 1 else "buffer_store_dwordx2"
        o = f" offset:{off}" if off else ""
        a("s_mov_b64 exec, 1")
        a(f"{st} {vr(vdata, ndw)}, v{vzero}, {srd(R_WS)}, {soff} offen{o} sc1")
        a("s_mov_b64 exec, -1")

    def prologue(self):
        a, o = self.a, self.o
        a("s_cmp_ge_u32 s2, 256")
        a("s_cbranch_scc1 L_end")
        if o.ts:
            a(f"s_memrealtime s[{sPCX}:{sPCX+1}]")
        for r, off in ((R_X, 0), (R_WK, 16), (R_WV, 24), (R_WS, 88), (R_WQ, 8), (R_W1, 48), (R_W3, 56), (R_W2, 64), (R_WO, 32), (R_OUT, 72)):
            a(f"s_load_dwordx2 s[{r}:{r+1}], s[0:1], {off}")
        a(f"s_getpc_b64 s[{sPC}:{sPC+1}]")
        a("L_pc:")
        a("v_lshrrev_b32 v3, 6, v0")
        a("v_and_b32 v1, 63, v0")
        a(f"v_readfirstlane_b32 s{sW}, v3")
        a("v_lshlrev_b32 v2, 4, v1")
        a(f"s_and_b32 s{sX8}, s2, 7\ns_lshr_b32 s{sI}, s2, 3")
        if o.dyn:
            assert not o.direct and o.wq_at == "pub"
            a(f"s_mov_b32 s{sP}, s2\ns_and_b32 s{sJ}, s2, 15")
        else:
            self.slot_ids()
        for r, size in ((R_X, 2097152), (R_WK, 16384), (R_WV, 16384), (R_WS, WS_SIZE), (R_WQ, 524288), (R_W1, 1835008),
                        (R_W3, 1835008), (R_W2, 1835008), (R_WO, 524288), (R_OUT, 2097152)):
            a(f"s_mov_b32 s{r+2}, {size}\ns_mov_b32 s{r+3}, 0x20000")
        a(f"s_lshl3_add_u32 s{sT0}, s{sP}, s{sW}\ns_lshl_b32 s{sT0}, s{sT0}, 10")
        a(f"s_mov_b32 s{sMASK}, 0xffff0000")
        a("s_waitcnt lgkmcnt(0)")
        if o.ts:
            a(f"s_mov_b32 s{sTS}, s{sPCX}")
            for i in range(1, 14):
                a(f"s_mov_b32 s{sTS+i}, 0")
        if o.direct:
            return self.prologue_direct()
        a(f"buffer_load_dwordx4 v[64:67], v2, {srd(R_X)}, s{sT0} offen {o.xnt}")
        a(f"s_load_dword s{sE}, s[{R_WS}:{R_WS+1}], {FL}")
        for r in (3, 4, 5, 6, 7, 8, 9, 17):
            a(f"v_mov_b32 v{r}, 0")
        a(f"s_cmp_lt_u32 s{sW}, 4")
        a("s_cbranch_scc1 L_g_early")
        self.a_early()
        a("L_ln:")
        self.stamp(1)
        self.layernorm()
        a(f"s_cmp_lt_u32 s{sW}, 4")
        a("s_cbranch_scc1 L_g_bar1")
        a("s_waitcnt vmcnt(0)")
        a("s_barrier")
        self.stamp(2)
        a(f"s_cmp_ge_u32 s{sW}, 6")
        a("s_cbranch_scc1 L_xn_store")
        self.kv_proj()
        if o.ring01 == "apub":
            self.a_ring0()
        if o.dyn:
            a("L_a_slot:")
            self.get_slot(12, 13)
            a("s_branch L_a_main")
        a("L_xn_store:")
        self.xn_store()

    def slot_ids(self):
        a, o = self.a, self.o
        if o.amap == 8:
            a(f"s_and_b32 s{sT0}, s{sX8}, 1\ns_and_b32 s{sT1}, s{sI}, 7\ns_lshl3_add_u32 s{sG}, s{sT0}, s{sT1}")
            a(f"s_lshr_b32 s{sT0}, s{sX8}, 1\ns_lshr_b32 s{sT1}, s{sI}, 3\ns_lshl2_add_u32 s{sJ}, s{sT0}, s{sT1}")
        elif o.amap == 4:
            a(f"s_and_b32 s{sT0}, s{sX8}, 3\ns_and_b32 s{sT1}, s{sI}, 3\ns_lshl2_add_u32 s{sG}, s{sT0}, s{sT1}")
            a(f"s_lshr_b32 s{sT0}, s{sX8}, 2\ns_lshr_b32 s{sT1}, s{sI}, 2\ns_lshl3_add_u32 s{sJ}, s{sT0}, s{sT1}")
        else:
            a(f"s_lshr_b32 s{sT1}, s{sI}, 4\ns_lshl1_add_u32 s{sG}, s{sX8}, s{sT1}\ns_and_b32 s{sJ}, s{sI}, 15")
        a(f"s_lshl4_add_u32 s{sP}, s{sG}, s{sJ}")

    def get_slot(self, vaddr, vtmp):
        a = self.a
        a(f"v_mov_b32 v{vaddr}, {LFL+L_XI}")
        self.spin_lds(vaddr, vtmp, f"v_cmp_eq_u32 vcc, 0, v{vtmp}")
        a(f"v_readfirstlane_b32 s{sI}, v{vtmp}")
        a(f"s_and_b32 s{sX8}, s{sI}, 7\ns_bfe_u32 s{sI}, s{sI}, 0x50003")
        self.slot_ids()

    def make_slot(self, vm):
        a = self.a
        B4, B2, B1, X, I, N, V, T, U, C0 = 62, 63, 64, 65, 66, 67, 68, 69, 70, 71
        a(f"s_mov_b32 s{sT3}, {XT}")
        self.poll_global(16, f"s{sT3}", self.vPK, 2, vm, lanes=9, first_issued="xt")
        a(f"v_readlane_b32 s{C0}, v{self.vPK+1}, 0")
        a(f"s_mov_b32 s{B4}, 0\ns_mov_b32 s{B2}, 0\ns_mov_b32 s{B1}, 0\ns_mov_b32 s{X}, 0\ns_mov_b32 s{I}, 0\ns_mov_b32 s{N}, 0")
        for k in range(8):
            a(f"v_readlane_b32 s{V}, v{self.vPK+1}, {k+1}")
            a(f"s_sub_u32 s{V}, s{V}, s{C0}\ns_and_b32 s{V}, s{V}, 7")
            a(f"s_bitcmp1_b32 s2, {k}\ns_cselect_b32 s{T}, s{V}, 0\ns_xor_b32 s{X}, s{X}, s{T}")
            if k >= 6:
                continue
            for e in (B4, B2, B1):
                a(f"s_xor_b32 s{T}, s{V}, s{e}\ns_min_u32 s{V}, s{V}, s{T}")
            a(f"s_cmp_ge_u32 s{V}, 4\ns_cselect_b32 s{B4}, s{V}, s{B4}")
            a(f"s_lshr_b32 s{T}, s{V}, 1\ns_cmp_eq_u32 s{T}, 1\ns_cselect_b32 s{B2}, s{V}, s{B2}")
            a(f"s_cmp_eq_u32 s{V}, 1\ns_cselect_b32 s{B1}, 1, s{B1}")
            a(f"s_cmp_eq_u32 s{V}, 0\ns_cselect_b32 s{T}, 1, 0")
            a(f"s_lshr_b32 s{U}, s2, {k}\ns_and_b32 s{U}, s{U}, s{T}\ns_lshl_b32 s{U}, s{U}, s{N}\ns_or_b32 s{I}, s{I}, s{U}\ns_add_u32 s{N}, s{N}, s{T}")
        a(f"s_lshr_b32 s{T}, s2, 6\ns_lshl3_add_u32 s{I}, s{T}, s{I}\ns_lshl3_add_u32 s{X}, s{I}, s{X}")
        a(f"s_cmp_eq_u32 s{N}, 3\ns_cselect_b32 s{X}, s{X}, s2\ns_or_b32 s{X}, s{X}, 0x100")
        a(f"v_mov_b32 v19, s{X}\nv_mov_b32 v18, {LFL+L_XI}")
        a("ds_write_b32 v18, v19")

    def prologue_direct(self):
        a, o = self.a, self.o
        for r in (3, 4, 5, 6, 7, 8, 9, 17):
            a(f"v_mov_b32 v{r}, 0")
        a(f"s_cmp_lt_u32 s{sW}, 4")
        a("s_cbranch_scc1 L_g_early")
        a(f"s_setprio {o.aprio0}")
        a(f"s_sub_u32 s{sWA}, s{sW}, 4\ns_lshl2_add_u32 s{sT0}, s{sP}, s{sWA}\ns_lshl_b32 s{sT0}, s{sT0}, 11")
        a(f"buffer_load_dwordx4 v[64:67], v2, {srd(R_X)}, s{sT0} offen")
        a(f"buffer_load_dwordx4 v[96:99], v2, {srd(R_X)}, s{sT0} offen offset:1024")
        a(f"s_load_dword s{sE}, s[{R_WS}:{R_WS+1}], {FL}")
        self.a_early()
        self.stamp(1)
        self.layernorm2()
        a("v_mov_b32 v10, 1")
        a(f"s_lshl_b32 s{sT0}, s{sWA}, 2\ns_add_u32 s{sT0}, s{sT0}, {LFL}\nv_mov_b32 v11, s{sT0}")
        a(f"v_and_b32 v12, 3, v1\nv_lshlrev_b32 v12, 2, v12\nv_add_u32 v12, {LFL+L_ROW}, v12")
        a("s_waitcnt vmcnt(0) lgkmcnt(0)")
        a(f"ds_write_b32 v11, v10 offset:{L_ROW}")
        a(f"s_cmp_ge_u32 s{sW}, 6")
        a("s_cbranch_scc1 L_xn_store")
        self.spin_lds(12, 13, "v_cmp_gt_u32 vcc, 1, v13")
        self.stamp(2)
        self.kv_proj()
        a("L_xn_store:")
        self.wq_by_a()

    def wq_by_a(self):
        a, o = self.a, self.o
        a(f"v_mov_b32 v10, 1\ns_lshl_b32 s{sT0}, s{sWA}, 2\ns_add_u32 s{sT0}, s{sT0}, {LFL}\nv_mov_b32 v11, s{sT0}")
        if o.wqw:
            a(f"v_mov_b32 v12, {LFL+L_VFL}")
            self.spin_lds(12, 13, "v_cmp_gt_u32 vcc, 1, v13", sleep=1)
        a("v_lshrrev_b32 v18, 2, v1\nv_lshlrev_b32 v18, 10, v18\nv_and_b32 v19, 3, v1\nv_lshl_add_u32 v17, v19, 4, v18")
        a(f"s_lshl_b32 s{sT4}, s{sJ}, 6\ns_and_b32 s{sT2}, s{sWA}, 1\ns_lshl_b32 s{sT1}, s{sT2}, 14\ns_add_u32 m0, s{sT1}, {WQI}")
        self.rot_expr(sT5)
        for n in range(16):
            if n:
                a("s_add_u32 m0, m0, 1024")
            if n & 3 == 0:
                a(f"s_lshl2_add_u32 s{sT0}, s{sT2}, s{sT5}\ns_add_u32 s{sT0}, s{sT0}, {n>>2}\ns_and_b32 s{sT0}, s{sT0}, 7\ns_lshl_b32 s{sT0}, s{sT0}, 16\ns_add_u32 s{sT0}, s{sT0}, s{sT4}")
            else:
                a(f"s_add_u32 s{sT0}, s{sT0}, 16384")
            a(f"buffer_load_dwordx4 v17, {srd(R_WQ)}, s{sT0} offen lds")
        if o.wqlate and not o.direct:
            return
        a("s_waitcnt vmcnt(0)")
        if o.direct:
            self.stamp(3)
        a(f"ds_write_b32 v11, v10 offset:{L_WQF - 8}")

    def rot_expr(self, sd):
        a, o = self.a, self.o
        if not o.rotup:
            a(f"s_mov_b32 s{sd}, 0")
        elif o.direct:
            a(f"s_add_u32 s{sd}, s{sJ}, s{sG}\ns_and_b32 s{sd}, s{sd}, {o.rotup}")
        else:
            a(f"s_lshl1_add_u32 s{sd}, s{sJ}, s{sG}\ns_and_b32 s{sd}, s{sd}, {o.rotup}")

    def layernorm2(self):
        import re
        saved = self.a
        streams = []
        for k in range(2):
            t = Asm()
            self.a = t
            self.layernorm(row=k)
            streams.append(t.lines)
        self.a = saved
        l0, l1 = streams
        def shift(ln):
            return re.sub(r"\bv(\d+)\b|\[(\d+):(\d+)\]", lambda m: (f"v{int(m.group(1))+32}" if int(m.group(1)) >= 64 else m.group(0)) if m.group(1)
                          else (f"[{int(m.group(2))+32}:{int(m.group(3))+32}]" if int(m.group(2)) >= 64 else m.group(0)), ln)
        assert len(l0) == len(l1)
        for x, y in zip(l0, l1):
            if x.startswith("s_nop"):
                n = int(x.split()[1])
                if n >= 1 and False:
                    saved(x)
                saved("s_nop 0") if n >= 1 else None
                continue
            saved(x)
            saved(shift(y) if y.startswith(("v_", "ds_")) else y)
        saved("s_waitcnt lgkmcnt(0)")
        saved(f"s_mul_i32 s{sE}, s{sE}, 0x9E3779B1\ns_add_u32 s{sE}, s{sE}, 0x7F4A7C15")

    def layernorm(self, row=None):
        a = self.a
        X, F, D = 64, 68, 76
        sT0, sT1 = (50, 51) if not row else (52, 53)
        if row is None:
            rowaddr = f"s_mul_i32 s{sT0}, s{sW}, {PITCH}\ns_add_u32 s{sT0}, s{sT0}, {XROW}"
        else:
            rowaddr = f"s_mul_i32 s{sT0}, s{sWA}, {2*PITCH}\ns_add_u32 s{sT0}, s{sT0}, {XROW + row*PITCH}"
        for i in range(4):
            a(f"v_lshlrev_b32 v{F+2*i}, 16, v{X+i}")
            a(f"v_and_b32 v{F+2*i+1}, s{sMASK}, v{X+i}")
        if self.o.lnfast:
            a(f"v_readfirstlane_b32 s{sT1}, v{F}")
            a(rowaddr)
            for i in range(8):
                a(f"v_subrev_f32 v{D+i}, s{sT1}, v{F+i}")
            a(f"v_add_f32 v84, v{D}, v{D+1}\nv_mul_f32 v85, v{D}, v{D}\nv_add_f32 v86, v{D+2}, v{D+3}\nv_mul_f32 v87, v{D+1}, v{D+1}")
            a(f"v_add_f32 v88, v{D+4}, v{D+5}\nv_add_f32 v89, v{D+6}, v{D+7}")
            for i in range(2, 8):
                a(f"v_fmac_f32 v{85+2*(i&1)}, v{D+i}, v{D+i}")
            a("v_add_f32 v84, v84, v86\nv_add_f32 v88, v88, v89\nv_add_f32 v85, v85, v87\nv_add_f32 v84, v84, v88")
            self.reduce64x2(84, 86, 85, 87)
            a(f"v_mul_f32 v84, {f2u(1/512):#x}, v84\nv_mul_f32 v85, {f2u(1/512):#x}, v85")
            a("v_fma_f32 v85, -v84, v84, v85")
            a(f"v_add_f32 v84, s{sT1}, v84")
            a("v_max_f32 v85, 0, v85")
        else:
            a(rowaddr)
            a(f"v_add_f32 v84, v{F}, v{F+1}\nv_add_f32 v85, v{F+2}, v{F+3}\nv_add_f32 v86, v{F+4}, v{F+5}\nv_add_f32 v87, v{F+6}, v{F+7}")
            a("v_add_f32 v84, v84, v85\nv_add_f32 v86, v86, v87\nv_add_f32 v84, v84, v86")
            self.reduce64("v_add_f32", 84, 85)
            a(f"v_mul_f32 v84, {f2u(1/512):#x}, v84")
            for i in range(8):
                a(f"v_sub_f32 v{D+i}, v{F+i}, v84")
            a(f"v_mul_f32 v85, v{D}, v{D}\nv_mul_f32 v86, v{D+1}, v{D+1}")
            for i in range(2, 8):
                a(f"v_fmac_f32 v{85+(i&1)}, v{D+i}, v{D+i}")
            a("v_add_f32 v85, v85, v86")
            self.reduce64("v_add_f32", 85, 86)
            a(f"v_mul_f32 v85, {f2u(1/512):#x}, v85")
        a("v_cvt_pk_bf16_f32 v86, v84, v85")
        a(f"v_and_b32 v87, s{sMASK}, v86")
        a("v_lshlrev_b32 v86, 16, v86")
        a(f"v_add_f32 v87, {f2u(1e-5):#x}, v87")
        for i in range(2):
            a(f"v_sub_f32 v{F+i}, v{F+i}, v86")
        a("v_cvt_pk_bf16_f32 v87, v87, v87")
        a(f"v_sub_f32 v{F+2}, v{F+2}, v86")
        a("v_lshlrev_b32 v87, 16, v87")
        a(f"v_sub_f32 v{F+3}, v{F+3}, v86")
        a("v_sqrt_f32 v87, v87")
        for i in range(4, 8):
            a(f"v_sub_f32 v{F+i}, v{F+i}, v86")
        a("v_cvt_pk_bf16_f32 v87, v87, v87")
        for i in range(2):
            a(f"v_cvt_pk_bf16_f32 v{X+i}, v{F+2*i}, v{F+2*i+1}")
        a("v_lshlrev_b32 v87, 16, v87")
        a(f"v_cvt_pk_bf16_f32 v{X+2}, v{F+4}, v{F+5}")
        a("v_rcp_f32 v87, v87")
        a(f"v_cvt_pk_bf16_f32 v{X+3}, v{F+6}, v{F+7}")
        for i in range(4):
            a(f"v_lshlrev_b32 v{F+2*i}, 16, v{X+i}")
            a(f"v_and_b32 v{F+2*i+1}, s{sMASK}, v{X+i}")
        for i in range(8):
            a(f"v_mul_f32 v{F+i}, v{F+i}, v87")
        a(f"v_add_u32 v88, s{sT0}, v2")
        for i in range(4):
            a(f"v_cvt_pk_bf16_f32 v{X+i}, v{F+2*i}, v{F+2*i+1}")
        a("ds_write_b128 v88, v[64:67]")
        if row is not None:
            return
        a("s_waitcnt lgkmcnt(0)")
        a(f"s_mul_i32 s{sE}, s{sE}, 0x9E3779B1\ns_add_u32 s{sE}, s{sE}, 0x7F4A7C15")

    def kv_proj(self):
        a = self.a
        NB = 5
        def rd(s):
            b = 64 + 8 * (s % NB)
            a(f"ds_read_b128 {vr(b,4)}, v3 offset:{64*s}")
            a(f"ds_read_b64_tr_b16 {vr(b+4,2)}, v4 offset:{1024*s}")
            a(f"ds_read_b64_tr_b16 {vr(b+6,2)}, v4 offset:{1024*s+128}")
        for s in range(NB):
            rd(s)
        a(f"s_cmp_eq_u32 s{sW}, 5")
        a("s_cbranch_scc1 L_vproj")
        for var in ("K", "V"):
            if var == "V":
                a("L_vproj:")
            for s in range(16):
                left = min(NB - 1, 15 - s)
                a(f"s_waitcnt lgkmcnt({3*left})")
                b = 64 + 8 * (s % NB)
                X, Wf = vr(b, 4), vr(b + 4, 4)
                c = "0" if s == 0 else "v[112:115]"
                if var == "K":
                    a(f"v_mfma_f32_16x16x32_bf16 v[112:115], {Wf}, {X}, {c}")
                else:
                    a(f"v_mfma_f32_16x16x32_bf16 v[112:115], {X}, {Wf}, {c}")
                if s + NB < 16:
                    rd(s + NB)
            a(f"s_lshr_b32 s{sT0}, s{sP}, 2\ns_lshl_b32 s{sT0}, s{sT0}, 10\ns_and_b32 s{sT1}, s{sJ}, 3")
            if var == "K":
                a(f"s_lshl_b32 s{sT1}, s{sT1}, 7\ns_add_u32 s{sT0}, s{sT0}, s{sT1}\ns_add_u32 s{sT0}, s{sT0}, {KF}")
                a(f"s_mov_b32 s{sT2}, 0x00ff00ff\ns_mov_b32 s{sT3}, 0x00ff00ff")
                a("s_nop 0")
                a("v_cvt_pk_bf16_f32 v8, v112, v113\nv_cvt_pk_bf16_f32 v9, v114, v115")
                a(f"s_mov_b64 exec, s[{sT2}:{sT3}]")
                a(f"buffer_store_dwordx2 v[8:9], v5, {srd(R_WS)}, s{sT0} offen sc1")
                a("s_mov_b64 exec, -1")
                a("v_mul_f32 v11, v112, v112\nv_fmac_f32 v11, v113, v113\nv_fmac_f32 v11, v114, v114\nv_fmac_f32 v11, v115, v115")
                for sw in ("v_permlane16_swap_b32", "v_permlane32_swap_b32"):
                    a(f"v_mov_b32 v12, v11\ns_nop 1\n{sw} v11, v12\nv_add_f32 v11, v11, v12")
                a("v_and_b32 v11, 0x7fffffff, v11")
                for ctl in ("quad_perm:[1,0,3,2]", "quad_perm:[2,3,0,1]", "row_half_mirror"):
                    a(f"s_nop 1\nv_max_u32_dpp v11, v11, v11 {ctl} row_mask:0xf bank_mask:0xf")
                a(f"s_lshl_b32 s{sT0}, s{sP}, 7\ns_add_u32 s{sT0}, s{sT0}, {F0}")
                a(f"v_mov_b32 v10, s{sE}\nv_mov_b32 v13, 0")
                self.spin_lds(7, 12, "v_cmp_gt_u32 vcc, 1, v12")
                a("s_waitcnt vmcnt(0)")
                self.stamp(3)
                self.flag_store(10, 2, 13, f"s{sT0}")
                a("s_branch L_a_ring0" if self.o.ring01 == "apub" else ("s_branch L_a_slot" if self.o.dyn else "s_branch L_a_main"))
            else:
                a(f"s_lshl_b32 s{sT1}, s{sT1}, 8\ns_add_u32 s{sT0}, s{sT0}, s{sT1}\ns_add_u32 s{sT0}, s{sT0}, {VF}")
                a("s_nop 2")
                a("v_cvt_pk_bf16_f32 v8, v112, v113\nv_cvt_pk_bf16_f32 v9, v114, v115")
                a("s_mov_b32 exec_hi, 0")
                a(f"buffer_store_dwordx2 v[8:9], v6, {srd(R_WS)}, s{sT0} offen sc1")
                a("s_mov_b64 exec, -1")
                a("v_mov_b32 v8, 1")
                a("s_waitcnt vmcnt(0)")
                self.stamp(3)
                a("ds_write_b32 v7, v8")
                a("s_branch L_a_ring0" if self.o.ring01 == "apub" else ("s_branch L_a_slot" if self.o.dyn else "s_branch L_a_main"))

    def a_ring0(self):
        a, o = self.a, self.o
        a("L_a_ring0:")
        a("v_bfe_u32 v20, v1, 1, 2\nv_bfe_u32 v21, v1, 4, 1\nv_xor_b32 v20, v20, v21")
        a("v_lshrrev_b32 v22, 3, v1\nv_mul_u32_u24 v23, 3584, v22\nv_and_b32 v24, 1, v1\nv_lshl_add_u32 v23, v24, 4, v23")
        a("v_lshl_add_u32 v18, v20, 5, v23\nv_xor_b32 v24, 2, v20\nv_lshl_add_u32 v19, v24, 5, v23")
        self.rot_expr(sT5)
        a(f"s_mul_i32 s{sT2}, s{sJ}, 224\ns_mul_i32 s{sT3}, s{sWA}, {32*3584}\ns_add_u32 s{sT2}, s{sT2}, s{sT3}\ns_lshl_b32 s{sT4}, s{sWA}, 13")
        for b in range(o.fill):
            a(f"s_add_u32 s{sT0}, s{sT5}, {b}\ns_and_b32 s{sT0}, s{sT0}, 7\ns_mul_i32 s{sT0}, s{sT0}, {64*3584}\ns_add_u32 s{sT0}, s{sT0}, s{sT2}")
            for u in range(2):
                a(f"s_add_u32 m0, s{sT4}, {b*16384 + u*4096}")
                a(f"s_add_u32 s{sT1}, s{sT0}, {8*3584 - 1024}")
                a(f"buffer_load_dwordx4 v18, {srd(R_W1)}, s{sT0} offen lds")
                a(f"buffer_load_dwordx4 v18, {srd(R_W1)}, s{sT1} offen offset:1024 lds")
                a("s_add_u32 m0, m0, 2048\ns_nop 0")
                a(f"buffer_load_dwordx4 v19, {srd(R_W3)}, s{sT0} offen lds")
                a(f"buffer_load_dwordx4 v19, {srd(R_W3)}, s{sT1} offen offset:1024 lds")
                if u == 0:
                    a(f"s_add_u32 s{sT0}, s{sT0}, {16*3584}")
        a("s_branch L_a_main")

    def xn_store(self):
        a = self.a
        for n in range(4):
            a(f"ds_read_b128 {vr(64+4*n,4)}, v8 offset:{128*n}")
        a(f"s_sub_u32 s{sT1}, s{sW}, 6\ns_lshr_b32 s{sT0}, s{sP}, 2\ns_lshl_b32 s{sT0}, s{sT0}, 15\ns_lshl_b32 s{sT2}, s{sT1}, 14\ns_add_u32 s{sT0}, s{sT0}, s{sT2}")
        a(f"s_and_b32 s{sT2}, s{sJ}, 3\ns_lshl_b32 s{sT2}, s{sT2}, 7\ns_add_u32 s{sT0}, s{sT0}, s{sT2}\ns_add_u32 s{sT0}, s{sT0}, {XN}")
        for n in range(4):
            a(f"s_waitcnt lgkmcnt({3-n})")
            a(f"buffer_store_dwordx4 {vr(64+4*n,4)}, v9, {srd(R_WS)}, s{sT0} offen sc1")
            if self.o.dup & 1:
                a(f"buffer_store_dwordx4 {vr(64+4*n,4)}, v9, {srd(R_WS)}, s{sT0} offen {self.o.dupf}")
            if n < 3:
                a(f"s_add_u32 s{sT0}, s{sT0}, 4096")
        a(f"s_lshl1_add_u32 s{sT0}, s{sP}, s{sT1}\ns_lshl_b32 s{sT0}, s{sT0}, 7\ns_add_u32 s{sT0}, s{sT0}, {FX}")
        a(f"s_lshl_b32 s{sT1}, s{sT1}, 2\ns_add_u32 s{sT1}, s{sT1}, {LFL+L_PUB}")
        a(f"v_mov_b32 v4, s{sE}\nv_mov_b32 v3, 0\nv_mov_b32 v5, s{sT1}\nv_mov_b32 v6, 1")
        a("s_waitcnt vmcnt(0)")
        self.stamp(3)
        self.flag_store(4, 1, 3, f"s{sT0}")
        a("ds_write_b32 v5, v6")
        if self.o.dyn:
            self.get_slot(12, 13)
        if self.o.wq_at == "pub":
            self.wq_by_a()

    aK = (28, 40, 52)
    aV = (32, 44, 56)
    aIDX, aOV = 27, 26
    aS = (64, 80)
    aQ = 96
    aO = 128
    aWR, aWL, aRR, aRL, aGF, aMF = 20, 23, 18, 19, 16, 17

    def a_early(self):
        a = self.a
        aV, aO = self.aV, self.aO
        if not self.o.direct:
            a(f"s_sub_u32 s{sWA}, s{sW}, 4")
        a(f"s_lshl_b32 s{sT0}, s{sWA}, 12")
        a(f"s_add_u32 m0, s{sT0}, {WKV}")
        a("s_nop 0")
        for n in range(4):
            a(f"buffer_load_dwordx4 v2, {srd(R_WK)}, s{sT0} offen offset:{1024*n} lds")
        a(f"s_add_u32 m0, s{sT0}, {WKV+16384}")
        a("s_nop 0")
        for n in range(4):
            a(f"buffer_load_dwordx4 v2, {srd(R_WV)}, s{sT0} offen offset:{1024*n} lds")
        a("v_add_u32 v11, -4, v1\nv_cmp_gt_u32 vcc, 8, v11")
        a(f"v_lshlrev_b32 v10, 2, v1\nv_add_u32 v10, {LFL}, v10")
        a("v_cndmask_b32 v11, 0, -1, vcc")
        a("ds_write_b32 v10, v11")
        a("v_and_b32 v3, 7, v1\nv_lshrrev_b32 v10, 4, v1")
        a(f"v_mul_u32_u24 v11, {PITCH}, v3\nv_lshl_add_u32 v12, v10, 4, v11")
        a("v_and_b32 v13, 15, v1\nv_lshlrev_b32 v4, 3, v13\nv_lshl_add_u32 v4, v10, 8, v4")
        a(f"s_lshl_b32 s{sT0}, s{sWA}, 14\ns_add_u32 s{sT0}, s{sT0}, {WKV}\nv_add_u32 v4, s{sT0}, v4")
        a("v_lshlrev_b32 v13, 4, v13\nv_lshl_add_u32 v6, v10, 3, v13")
        a("v_bfe_u32 v14, v1, 4, 1\nv_lshl_add_u32 v5, v14, 9, v13\nv_lshrrev_b32 v14, 5, v1\nv_lshl_add_u32 v5, v14, 3, v5")
        a(f"v_mov_b32 v7, {LFL+L_VFL}")
        a("v_lshrrev_b32 v10, 3, v1\nv_lshl_add_u32 v8, v10, 4, v11")
        a(f"s_and_b32 s{sT1}, s{sWA}, 1\ns_lshl_b32 s{sT1}, s{sT1}, 9\ns_add_u32 s{sT1}, s{sT1}, {XROW}\nv_add_u32 v8, s{sT1}, v8")
        a("v_lshlrev_b32 v9, 4, v3\nv_and_b32 v14, 1, v10\nv_lshl_add_u32 v9, v14, 9, v9\nv_lshrrev_b32 v10, 1, v10\nv_lshl_add_u32 v9, v10, 10, v9")
        a(f"v_add_u32 v3, {XROW}, v12")
        if self.o.direct:
            a("s_waitcnt lgkmcnt(0)")
            a("s_barrier")
        a("s_waitcnt vmcnt(8)")

    def a_late(self):
        a = self.a
        aV, aO = self.aV, self.aO
        a("v_and_b32 v10, 31, v1\nv_cmp_eq_u32 vcc, 16, v10\nv_mov_b32 v11, 0x3f803f80")
        a(f"v_mov_b32 v{self.aIDX}, 0xdddddddd")
        a("v_cndmask_b32 v11, 0, v11, vcc")
        for b in aV:
            for r in range(b, b + 8):
                a(f"v_mov_b32 v{r}, v11")
        a(f"v_and_b32 v10, 15, v1\nv_lshlrev_b32 v10, 4, v10\nv_lshrrev_b32 v11, 5, v1\nv_lshl_add_u32 v10, v11, 8, v10\nv_add_u32 v{self.aOV}, {VF-KF}, v10")
        a("v_lshlrev_b32 v10, 2, v1")
        for dt in range(1, 4):
            a(f"s_add_u32 s{sT0}, s{sWA}, {dt}\ns_and_b32 s{sT0}, s{sT0}, 3\ns_mul_i32 s{sT0}, s{sT0}, 13824\ns_add_u32 s{sT0}, s{sT0}, {RING + (dt-1)*4608}")
            a(f"v_add_u32 v{self.aWR+dt-1}, s{sT0}, v2\nv_add_u32 v{self.aWL+dt-1}, s{sT0}, v10")
        a(f"s_mul_i32 s{sT0}, s{sWA}, 13824")
        a(f"v_add_u32 v{self.aRR}, s{sT0}, v2\nv_add_u32 v{self.aRL}, s{sT0}, v10")
        a(f"v_and_b32 v10, 3, v1\nv_lshlrev_b32 v10, 2, v10\nv_add_u32 v{self.aGF}, {LFL}, v10")
        a(f"s_lshl_b32 s{sT0}, s{sWA}, 2\ns_add_u32 s{sT0}, s{sT0}, {LFL}\nv_mov_b32 v{self.aMF}, s{sT0}")
        for r in range(aO, aO + 128):
            a(f"v_mov_b32 v{r}, 0")
        a(f"s_mov_b32 s{sXM}, 0xffff\ns_mov_b32 s{sXM+1}, 0xffff")
        a(f"s_lshl_b32 s{sKB}, s{sWA}, 14\ns_add_u32 s{sKB}, s{sKB}, {KF}")
        if self.o.rot and self.o.xoff:
            a(f"s_lshl1_add_u32 s{sIDX}, s{sX8}, s{sI}\ns_and_b32 s{sIDX}, s{sIDX}, 15")
        elif self.o.rot:
            a(f"s_and_b32 s{sIDX}, s{sI}, 15")
        else:
            a(f"s_mov_b32 s{sIDX}, 0")
        a(f"s_lshl_b32 s{sK}, s{sIDX}, 10\ns_add_u32 s{sK}, s{sK}, s{sKB}")

    def k_step(self):
        return [f"s_add_u32 s{sIDX}, s{sIDX}, 1", f"s_and_b32 s{sIDX}, s{sIDX}, 15", f"s_lshl_b32 s{sK}, s{sIDX}, 10", f"s_add_u32 s{sK}, s{sK}, s{sKB}"]
    def ld_k(self, buf):
        return f"buffer_load_dwordx4 {vr(self.aK[buf],4)}, v2, {srd(R_WS)}, s{sK} offen sc1"
    def ld_v(self, buf):
        return "\n".join([f"s_mov_b64 exec, s[{sXM}:{sXM+1}]",
                          f"buffer_load_dwordx4 {vr(self.aV[buf],4)}, v{self.aOV}, {srd(R_WS)}, s{sK} offen sc1",
                          f"buffer_load_dwordx4 {vr(self.aV[buf]+4,4)}, v{self.aOV}, {srd(R_WS)}, s{sK} offen offset:512 sc1",
                          "s_mov_b64 exec, -1"])

    def ld_v1(self, buf, u):
        return "\n".join([f"s_mov_b64 exec, s[{sXM}:{sXM+1}]",
                          f"buffer_load_dwordx4 {vr(self.aV[buf]+4*u,4)}, v{self.aOV}, {srd(R_WS)}, s{sK} offen offset:{512*u} sc1",
                          "s_mov_b64 exec, -1"])

    def tile(self, seq, t, kb, prev, nxt_tile, ex):
        a = self.a
        aK, aV, aS, aQ, aO = self.aK, self.aV, self.aS, self.aQ, self.aO
        cur, nxt = aS[seq & 1], aS[(seq + 1) & 1]
        for i in range(16):
            a(f"v_exp_f32 v{cur+i}, v{cur+i}" if "noexp" not in self.o.hack else f"v_mov_b32 v{cur+i}, v{cur+i}\ns_nop 0")
            if i == 1 and "nopv" not in self.o.hack:
                a(f"v_smfmac_f32_32x32x32_bf16 {vr(aO+16*prev[0],16)}, {vr(aV[prev[1]]+4,4)}, {vr(nxt+8,8)}, v{self.aIDX}")
                if "postpv1" in ex:
                    a(ex["postpv1"])
            if i == 4 and nxt_tile is not None:
                if "preqk" in ex:
                    a(ex["preqk"])
                a(f"v_mfma_f32_32x32x16_bf16 {vr(nxt,16)}, {vr(aK[nxt_tile[1]],4)}, {vr(aQ+4*nxt_tile[0],4)}, 0")
                if "postqk" in ex:
                    a(ex["postqk"])
            if i == self.o.p0 and "nopv" not in self.o.hack:
                a(f"v_smfmac_f32_32x32x32_bf16 {vr(aO+16*t,16)}, {vr(aV[kb],4)}, {vr(cur,8)}, v{self.aIDX}")
            if i in ex:
                a(ex[i])

    def merge_writes(self, slot):
        dt, hd = slot >> 1, slot & 1
        O = self.aO + 16 * slot
        return [f"ds_write_b128 v{self.aWR+dt-1}, {vr(O,4)} offset:{hd*2304}",
                f"ds_write_b128 v{self.aWR+dt-1}, {vr(O+4,4)} offset:{hd*2304+1024}",
                f"ds_write_b32 v{self.aWL+dt-1}, v{O+8} offset:{hd*2304+2048}"]

    def a_main(self):
        a, o = self.a, self.o
        vm = Vm(a)
        aK, aV, aS, aQ, aO = self.aK, self.aV, self.aS, self.aQ, self.aO
        a("L_a_main:")
        if o.direct:
            a("s_setprio 0")
        self.a_late()
        for r in range(aS[1] + 8, aS[1] + 16):
            a(f"v_mov_b32 v{r}, 0")
        for t in range(8):
            a(f"s_lshl1_add_u32 s{sT0}, s{sWA}, {t}\ns_and_b32 s{sT0}, s{sT0}, 7\ns_lshl_b32 s{sT0}, s{sT0}, 10\ns_add_u32 s{sT0}, s{sT0}, {QX}")
            a(f"v_add_u32 v{64+t}, s{sT0}, v2")
        if o.atouch:
            self.slot_touch_addr(13, 1)
            if not o.t1:
                a("v_mov_b32 v13, 0x40000000")
            a(f"s_bitcmp1_b32 s{sW}, 1\ns_cselect_b32 s68, s{R_W3}, s{R_W1}\ns_cselect_b32 s69, s{R_W3+1}, s{R_W1+1}\ns_mov_b32 s70, 1835008\ns_mov_b32 s71, 0x20000")
            a(f"s_and_b32 s{sT0}, s{sI}, 3\ns_lshl2_add_u32 s{sT0}, s{sX8}, s{sT0}\ns_lshl_b32 s{sT0}, s{sT0}, 16\ns_lshr_b32 s{sT1}, s{sI}, 2\ns_lshl_b32 s{sT1}, s{sT1}, 7\ns_add_u32 s72, s{sT0}, s{sT1}")
            a(f"s_cmp_eq_u32 s{sWA}, {0 if o.tx else 99}\ns_cselect_b32 s72, s72, 0x40000000\nv_lshlrev_b32 v12, 10, v1")
        a(f"v_lshlrev_b32 v3, 7, v1\ns_lshl_b32 s{sT2}, s{sWA}, 13\ns_add_u32 s{sT2}, s{sT2}, {F0}")
        a(f"v_and_b32 v7, 7, v1\nv_lshlrev_b32 v7, 2, v7\nv_add_u32 v7, {LFL+L_QMAX}, v7")
        if o.wqlate and o.wq_at == "pub":
            L = self.lab("nowq")
            a(f"s_cmp_lt_u32 s{sW}, 6\ns_cbranch_scc1 {L}")
            a("v_mov_b32 v9, 1\ns_waitcnt vmcnt(0)")
            a(f"ds_write_b32 v{self.aMF}, v9 offset:{L_WQF - 8}")
            a(f"{L}:")
        if o.ring01 == "apub":
            a("v_mov_b32 v9, 1\ns_waitcnt vmcnt(0)")
            a(f"ds_write_b32 v{self.aMF}, v9 offset:{L_R0}")
        if o.kvlate:
            self.spin_lds(self.aMF, 8, "v_cmp_eq_u32 vcc, -1, v8", sleep=1, off=L_QMAX)
        else:
            self.spin_lds(self.aMF, 8, "v_cmp_gt_u32 vcc, 1, v8", sleep=1, off=L_GATE)
        if o.direct:
            a(f"s_setprio {o.aprio0}")
        self.poll_global(3, f"s{sT2}", 4, 2, vm, sleep=o.asleep)
        self.stamp(4)
        for b in range(3):
            a(self.ld_k(b))
            if b < 2:
                a(self.ld_v(b))
                a("\n".join(self.k_step()))
        self.reduce64("v_max_u32", 5, 6)
        a(f"ds_write_b32 v{self.aMF}, v5 offset:{L_KMAX}")
        self.spin_lds(7, 8, "v_cmp_eq_u32 vcc, -1, v8")
        self.stamp(5)
        for t in range(8):
            a(f"ds_read_b128 {vr(aQ+4*t,4)}, v{64+t}")
        Lne = self.lab("noep")
        a(f"s_or_b32 s{sT0}, s{sP}, s{sWA}\ns_cmp_lg_u32 s{sT0}, 0\ns_cbranch_scc1 {Lne}")
        a(f"v_mov_b32 v9, s{sE}\nv_mov_b32 v3, 0\ns_mov_b32 s{sT0}, {FL}")
        self.flag_store(9, 1, 3, f"s{sT0}")
        a(f"{Lne}:")
        for ctl in ("quad_perm:[1,0,3,2]", "quad_perm:[2,3,0,1]"):
            a(f"s_nop 1\nv_max_u32_dpp v8, v8, v8 {ctl} row_mask:0xf bank_mask:0xf")
        a("s_nop 1\nv_mov_b32_dpp v9, v8 row_half_mirror row_mask:0xf bank_mask:0xf")
        a("v_mul_f32 v8, v8, v9")
        a(f"v_cmp_nge_f32 vcc, {f2u(THRESH2):#x}, v8")
        a("s_branch L_a_slow" if o.slow else "s_cbranch_vccnz L_a_slow")
        a(f"s_setprio {o.prioA}")
        a("v_mov_b32 v9, 1")
        a(f"ds_write_b32 v{self.aMF}, v9 offset:{L_ASTART}")
        a("s_waitcnt vmcnt(4) lgkmcnt(0)")
        if o.only == "G":
            a("s_branch L_a_merge_full")
        a(f"v_mfma_f32_32x32x16_bf16 {vr(aS[0],16)}, {vr(aK[0],4)}, {vr(aQ,4)}, 0")
        a(f"s_mov_b32 s{sCNT}, {4 if o.skiplast else 5}")
        if o.atouch:
            a(f"s_lshl2_add_u32 s{sT4}, s{sI}, s{sWA}\ns_lshl_b32 s{sT5}, s{sT4}, 12\ns_mul_i32 s{sT4}, s{sT4}, 14336\ns_mov_b32 s{sT3}, 0x40000000")
            a("v_lshlrev_b32 v15, 7, v1")
        a("s_nop 7\ns_nop 2")
        self.stamp(6)
        if o.ts:
            a(f"s_memtime s[{sPCX}:{sPCX+1}]\ns_waitcnt lgkmcnt(0)\ns_mov_b32 s{sTS+13}, s{sPCX}")
        def rounds(peeled, last=False):
            for kb in range(3):
                if o.trace:
                    a(f"s_mul_i32 s{sTS+9}, s{sCNT}, -3\ns_add_u32 s{sTS+9}, s{sTS+9}, 15")
                    self.trace_pt(None, kb, sTS + 9)
                for t in range(8):
                    ex = {}
                    prev = (t - 1, kb) if t else (7, (kb + 2) % 3)
                    nx = (t + 1, kb) if t < 7 else (0, (kb + 1) % 3)
                    def guarded(txt):
                        L = self.lab("skip")
                        return f"s_cmp_eq_u32 s{sCNT}, 1\ns_cbranch_scc1 {L}\n{txt}\n{L}:"
                    if t == o.vt:
                        ex[o.p0] = self.ld_v((kb + 2) % 3)
                        if last and kb == 2:
                            del ex[o.p0]
                    extra = 0
                    if peeled and kb == o.tk:
                        if t == 1:
                            ex[6] = f"buffer_load_dword v14, v15, {srd(R_W2)}, s{sT4} offen"
                        if t == 2:
                            ex[3] = f"s_add_u32 s{sT4}, s{sT4}, 8192"
                            ex[6] = f"buffer_load_dword v14, v15, {srd(R_W2)}, s{sT4} offen"
                        if t == 3:
                            ex[6] = f"buffer_load_dword v14, v15, {srd(R_WO)}, s{sT5} offen"
                        if t == 4 and o.tx:
                            ex[6] = f"buffer_load_dword v14, v12, {srd(R_X)}, s72 offen"
                        if t == 5 and o.t1:
                            ex[6] = f"buffer_load_dword v14, v13, s[68:71], 0 offen"
                    ntouch = 3 + bool(o.tx) + bool(o.t1)
                    if (peeled and kb in (o.tk, o.tk + 1)) or (not peeled and o.atouch == 2 and o.tk == 2 and kb == 0):
                        extra = ntouch
                    if t == 7:
                        ex["preqk"] = f"s_waitcnt vmcnt({3 + extra + (1 if o.trace else 0)})"
                        ex[5], ex[6], ex[7], ex[8] = self.k_step()
                        ex[o.p0] = self.ld_k(kb)
                        if last and kb >= 1:
                            del ex[o.p0]
                            for i in (5, 6, 7, 8):
                                del ex[i]
                        if last and kb == 2:
                            ex["preqk"] = "s_waitcnt vmcnt(0)"
                        if kb == 2 and not last:
                            ex[11] = f"s_sub_u32 s{sCNT}, s{sCNT}, 1"
                            ex[14] = f"s_cmp_lg_u32 s{sCNT}, 0"
                    self.tile(t, t, kb, prev, nx, ex)
        self.trv = 10
        if o.atouch == 2:
            rounds(True)
        a(".p2align 3")
        a("L_a_loop:")
        rounds(False)
        a("s_cbranch_scc1 L_a_loop")
        if o.skiplast:
            rounds(False, last=True)
        if o.lastprio:
            a(f"s_setprio {o.lastprio}")
        self.trace_pt(None, 15)
        a(f"ds_read_b32 v8, v{self.aGF}")
        order = [0, 2, 3, 4, 5, 6, 7, 1] if o.peel else list(range(8))
        for n, t in enumerate(order):
            ex = {}
            prev = (order[n - 1], 0) if n else (7, 2)
            nx = (order[n + 1], 0) if n < 7 else None
            if n == 0:
                ex[12] = "s_waitcnt lgkmcnt(0)"
                ex[13] = "SPIN"
            if o.peel and n >= 3:
                w = self.merge_writes(order[n - 2])
                ex[3], ex[7], ex[12] = w
            if n == 0:
                self.tile_with_guard(n, t, prev, nx)
            else:
                self.tile(n, t, 0, prev, nx, ex)
        if o.n0 >= 0:
            a("v_mov_b32 v9, 1")
            a(f"ds_write_b32 v{self.aMF}, v9 offset:{L_ADONE}")
        a("s_nop 1")
        a(f"v_smfmac_f32_32x32x32_bf16 {vr(aO+16*order[7],16)}, {vr(aV[0]+4,4)}, {vr(aS[1]+8,8)}, v{self.aIDX}")
        if o.peel:
            for x in self.merge_writes(7):
                a(x)
            a("s_branch L_a_merge")
        a("L_a_merge_full:")
        self.spin_lds(self.aGF, 8, "v_cmp_gt_u32 vcc, 17, v8")
        if o.n0 >= 0:
            a("v_mov_b32 v9, 1")
            a(f"ds_write_b32 v{self.aMF}, v9 offset:{L_ADONE}")
        a("s_nop 7")
        for slot in range(2, 8):
            for x in self.merge_writes(slot):
                a(x)
        a("L_a_merge:")
        if o.mprio:
            a(f"s_setprio {o.mprio}")
        self.trace_pt(None, 16)
        self.stamp(7)
        if o.ts:
            a(f"s_memtime s[{sPCX}:{sPCX+1}]\ns_waitcnt lgkmcnt(0)\ns_sub_u32 s{sTS+13}, s{sPCX}, s{sTS+13}")
        a("v_mov_b32 v9, 1")
        a(f"s_lshl2_add_u32 s{sT0}, s{sG}, s{sWA}\ns_lshl_b32 s{sT0}, s{sT0}, 5\ns_lshl1_add_u32 s{sT0}, s{sJ}, s{sT0}\ns_lshl_b32 s{sT0}, s{sT0}, 10\ns_add_u32 s{sT0}, s{sT0}, {OF}")
        a(f"s_lshl2_add_u32 s{sT1}, s{sP}, s{sWA}\ns_lshl_b32 s{sT1}, s{sT1}, 7\ns_add_u32 s{sT1}, s{sT1}, {FO}")
        a("s_waitcnt lgkmcnt(0)")
        a(f"ds_write_b32 v{self.aMF}, v9 offset:{L_MFL}")
        self.stamp(10)
        self.spin_lds(self.aGF, 8, "v_cmp_gt_u32 vcc, 1, v8", off=L_MFL)
        self.stamp(11)
        T = 64
        for dt in range(3):
            for hd in range(2):
                b = T + 10 * (2 * dt + hd)
                off = dt * 4608 + hd * 2304
                a(f"ds_read_b128 {vr(b,4)}, v{self.aRR} offset:{off}")
                a(f"ds_read_b128 {vr(b+4,4)}, v{self.aRR} offset:{off+1024}")
                a(f"ds_read_b32 v{b+8}, v{self.aRL} offset:{off+2048}")
            if dt:
                a("s_waitcnt lgkmcnt(6)")
                self.acc_add(T, dt - 1)
        a(f"v_mov_b32 v16, s{sE}\nv_mov_b32 v17, 0")
        a("s_waitcnt lgkmcnt(0)")
        self.acc_add(T, 2)
        a(f"v_mov_b32 v14, v{aO+8}\nv_mov_b32 v15, v{aO+24}")
        a("s_nop 0")
        a(f"v_permlane32_swap_b32 v{aO+8}, v14")
        a(f"v_permlane32_swap_b32 v{aO+24}, v15")
        a(f"v_rcp_f32 v14, v{aO+8}\nv_rcp_f32 v18, v{aO+24}")
        a("s_nop 0")
        for hd in range(2):
            O = aO + 16 * hd
            for i in range(4):
                a(f"v_pk_mul_f32 {vr(O+2*i,2)}, {vr(O+2*i,2)}, {vr(14+4*hd,2)} op_sel_hi:[1,0]")
            for i in range(4):
                a(f"v_cvt_pk_bf16_f32 v{20+4*hd+i}, v{O+2*i}, v{O+2*i+1}")
            a(f"buffer_store_dwordx4 {vr(20+4*hd,4)}, v2, {srd(R_WS)}, s{sT0} offen offset:{1024*hd} sc1")
            if o.dup & 4:
                a(f"buffer_store_dwordx4 {vr(20+4*hd,4)}, v2, {srd(R_WS)}, s{sT0} offen offset:{1024*hd} {o.dupf}")
        self.stamp(12)
        a("s_waitcnt vmcnt(0)")
        a("s_mov_b64 exec, 1")
        a(f"buffer_store_dword v16, v17, {srd(R_WS)}, s{sT1} offen sc1")
        self.stamp(8)
        self.stamp_flush()
        a("s_endpgm")

    def tile_with_guard(self, n, t, prev, nx):
        a = self.a
        self.tile(n, t, 0, prev, nx, {})
        a("s_waitcnt lgkmcnt(0)")
        self.spin_lds(self.aGF, 8, "v_cmp_gt_u32 vcc, 17, v8", peeked=True)

    def acc_add(self, T, dt):
        a = self.a
        for hd in range(2):
            b = T + 10 * (2 * dt + hd)
            O = self.aO + 16 * hd
            for i in range(4):
                a(f"v_pk_add_f32 {vr(O+2*i,2)}, {vr(O+2*i,2)}, {vr(b+2*i,2)}")
            a(f"v_add_f32 v{O+8}, v{O+8}, v{b+8}")

    def a_slow(self):
        a = self.a
        aK, aV, aS, aQ, aO = self.aK, self.aV, self.aS, self.aQ, self.aO
        a("L_a_slow:")
        a("v_mov_b32 v3, 1")
        a(f"ds_write_b32 v{self.aMF}, v3 offset:{L_ASTART}")
        a("s_waitcnt vmcnt(0) lgkmcnt(0)")
        S, M = aS[0], 4
        for t in range(8):
            a(f"v_mov_b32 v{M+t}, 0xff800000")
        a(f"s_mov_b32 s{sK}, {KF}\ns_mov_b32 s{sCNT}, 64")
        a("L_slow_max:")
        a(self.ld_k(0))
        a("s_waitcnt vmcnt(0)")
        for t in range(8):
            a(f"v_mfma_f32_32x32x16_bf16 {vr(S,16)}, {vr(aK[0],4)}, {vr(aQ+4*t,4)}, 0")
            a("s_nop 7\ns_nop 3")
            for i in range(8):
                a(f"v_max3_f32 v{M+t}, v{S+2*i}, v{S+2*i+1}, v{M+t}")
        a(f"s_add_u32 s{sK}, s{sK}, 1024\ns_sub_u32 s{sCNT}, s{sCNT}, 1\ns_cmp_lg_u32 s{sCNT}, 0")
        a("s_cbranch_scc1 L_slow_max")
        for t in range(8):
            a(f"v_mov_b32 v3, v{M+t}\ns_nop 1\nv_permlane32_swap_b32 v{M+t}, v3\nv_max_f32 v{M+t}, v{M+t}, v3")
        a(f"s_mov_b32 s{sK}, s{sKB}\ns_mov_b32 s{sCNT}, 16")
        a("L_slow_pv:")
        a(self.ld_k(0))
        a(self.ld_v(0))
        a("s_waitcnt vmcnt(0)")
        for t in range(8):
            a(f"v_mfma_f32_32x32x16_bf16 {vr(S,16)}, {vr(aK[0],4)}, {vr(aQ+4*t,4)}, 0")
            a("s_nop 7\ns_nop 3")
            for i in range(16):
                a(f"v_sub_f32 v{S+i}, v{S+i}, v{M+t}")
            for i in range(16):
                a(f"v_exp_f32 v{S+i}, v{S+i}")
            a("s_nop 1")
            for u in range(2):
                a(f"v_smfmac_f32_32x32x32_bf16 {vr(aO+16*t,16)}, {vr(aV[0]+4*u,4)}, {vr(S+8*u,8)}, v{self.aIDX}")
        a(f"s_add_u32 s{sK}, s{sK}, 1024\ns_sub_u32 s{sCNT}, s{sCNT}, 1\ns_cmp_lg_u32 s{sCNT}, 0")
        a("s_cbranch_scc1 L_slow_pv")
        a("s_branch L_a_merge_full")

    gRG0, gRU0, gRG1, gRU1 = 3, 4, 5, 6
    dV = 7
    gT = 8
    gTQ, gFL, gMY, gTMP = 12, 13, 14, 15
    gONE = 0
    gE = 16
    gP = 24
    dXR = 32
    dT, dF, dXA, vEP, vZ, vPK = 40, 42, 43, 44, 45, 46
    gA = 48
    gC = 64
    gX = 128
    dH = 128

    def g_early(self):
        a, o = self.a, self.o
        vm = self.vmG = Vm(a)
        if not o.direct:
            vm.issue("xrow")
        gT, dT = self.gT, self.dT
        a("L_g_early:")
        if o.code_pf == 1:
            self.code_prefetch(vm)
        if o.dyn:
            L = self.lab("noxt")
            a(f"s_sub_u32 s{sT0}, s2, 1\ns_and_b32 s{sT0}, s{sT0}, s2\ns_xor_b32 s{sT1}, s{sW}, 1\ns_or_b32 s{sT0}, s{sT0}, s{sT1}\ns_cmp_lg_u32 s{sT0}, 0\ns_cbranch_scc1 {L}")
            a(f"s_ff1_i32_b32 s{sT1}, s2\ns_add_u32 s{sT1}, s{sT1}, 1\ns_lshl_b32 s{sT1}, s{sT1}, 7\ns_add_u32 s{sT1}, s{sT1}, {XT}")
            a(f"s_getreg_b32 s{sT2}, hwreg(HW_REG_XCC_ID, 0, 4)")
            a("s_waitcnt lgkmcnt(0)")
            a(f"s_mul_i32 s{sT3}, s{sE}, 0x9E3779B1\ns_add_u32 s{sT3}, s{sT3}, 0x7F4A7C15")
            a(f"v_mov_b32 v20, s{sT3}\nv_mov_b32 v21, s{sT2}\nv_mov_b32 v22, 0")
            self.flag_store(20, 2, 22, f"s{sT1}")
            a(f"{L}:")
        if o.twq:
            L = self.lab("twq")
            a(f"s_cmp_lg_u32 s{sW}, 0\ns_cbranch_scc1 {L}")
            a(f"s_and_b32 s{sT0}, s{sG}, 3\ns_and_b32 s{sT1}, s{sJ}, 1\ns_lshl1_add_u32 s{sT0}, s{sT0}, s{sT1}\ns_lshl_b32 s{sT0}, s{sT0}, 16\ns_lshl_b32 s{sT1}, s{sJ}, 6\ns_add_u32 s{sT0}, s{sT0}, s{sT1}")
            a(f"v_lshlrev_b32 v18, 10, v1\nbuffer_load_dword v46, v18, {srd(R_WQ)}, s{sT0} offen {o.tnt}")
            a(f"s_waitcnt vmcnt({1 + (1 if o.code_pf == 1 else 0)})")
            a(f"{L}:")
        if o.direct:
            return self.g_direct(vm)
        if o.t0 == 1:
            self.first_slot_touch(vm)
        a("v_lshrrev_b32 v18, 2, v1\nv_lshlrev_b32 v18, 10, v18\nv_and_b32 v19, 3, v1\nv_lshl_add_u32 v17, v19, 4, v18")
        if o.wq_at == "early":
            self.wq_dma(vm)
        vm.wait("xrow")
        if o.wq_at == "xarr":
            self.wq_dma(vm)
        a("s_branch L_ln")

    def code_prefetch(self, vm):
        a, o = self.a, self.o
        a(f"s_sub_u32 s{sPC}, s{sPC}, L_pc-{NAME}\ns_subb_u32 s{sPC+1}, s{sPC+1}, 0")
        if o.pfshare > 1:
            n = 64 // o.pfshare + (1 if (o.skiplast or o.nE) else 0)
            a(f"s_and_b32 s{sT0}, s{sI}, {o.pfshare-1}\ns_lshl2_add_u32 s{sT0}, s{sT0}, s{sW}\ns_mul_i32 s{sT0}, s{sT0}, {n*128}")
            a(f"s_mov_b64 exec, {(1 << n) - 1:#x}")
        else:
            a(f"s_lshl_b32 s{sT0}, s{sW}, 13")
        a(f"v_lshlrev_b32 v18, 7, v1\nv_add_u32 v18, s{sT0}, v18")
        a(f"v_min_u32 v18, L_code_end-{NAME}-4, v18")
        a(f"global_load_dword v47, v18, s[{sPC}:{sPC+1}]")
        if o.pfshare > 1:
            a("s_mov_b64 exec, -1")
        vm.issue("pf")
        if o.atouch == 2:
            a(f"v_add_u32 v18, 32768, v18\nv_min_u32 v18, L_code_end-{NAME}-4, v18\ns_mov_b64 exec, 0xffff")
            a(f"global_load_dword v47, v18, s[{sPC}:{sPC+1}]\ns_mov_b64 exec, -1")
            vm.issue("pf")

    def stage_dma(self, n, vm):
        a = self.a
        a(f"s_add_u32 s{sT0}, s{sROT}, {n}\ns_and_b32 s{sT0}, s{sT0}, 7\ns_lshl_b32 s{sT0}, s{sT0}, 7\ns_add_u32 s{sT0}, s{sT0}, s{sXB}")
        a(f"s_add_u32 m0, s{sT3}, {(n&3)*4096}")
        for i in range(4):
            a(f"s_add_u32 s{sT1}, s{sT0}, {i*8192 - (i&3)*1024 + (0 if i else 0)}" if i else "s_nop 0")
            a(f"buffer_load_dwordx4 v{18 + (i&1)}, {srd(R_X)}, s{sT1 if i else sT0} offen offset:{i*1024} lds")
            vm.issue(("st", n))

    def g_direct(self, vm):
        a, o = self.a, self.o
        gX = self.gX
        a(f"s_setprio {o.gprio0}")
        self.rot_expr(sROT)
        a(f"s_lshl2_add_u32 s{sT0}, s{sG}, s{sW}\ns_lshl_b32 s{sXB}, s{sT0}, 15\ns_lshl_b32 s{sT3}, s{sW}, 14")
        a("v_lshrrev_b32 v20, 3, v1\nv_and_b32 v21, 7, v1\nv_lshrrev_b32 v22, 4, v1\nv_xor_b32 v21, v21, v22\nv_lshlrev_b32 v21, 4, v21")
        a("v_lshl_add_u32 v18, v20, 10, v21\nv_xor_b32 v19, 64, v18")
        a(f"s_load_dword s{sE}, s[{R_WS}:{R_WS+1}], {FL}")
        a("s_barrier")
        for n in range(o.sdepth):
            self.stage_dma(n, vm)
        a(f"s_mov_b32 s{sFXA}, s{sT3}")
        a("v_mov_b32 v28, v18\nv_mov_b32 v29, v19")
        self.g_late(direct=True)
        a(f"s_mov_b32 s{sT3}, s{sFXA}\nv_mov_b32 v18, v28\nv_mov_b32 v19, v29")
        a("v_and_b32 v20, 31, v1\nv_lshrrev_b32 v21, 5, v1\nv_bfe_u32 v22, v1, 1, 3\nv_xor_b32 v21, v21, v22\nv_lshlrev_b32 v21, 4, v21\nv_lshl_add_u32 v20, v20, 7, v21")
        a(f"v_add_u32 v20, s{sT3}, v20\nv_xor_b32 v21, 32, v20\nv_xor_b32 v22, 64, v20\nv_xor_b32 v23, 0x60, v20")
        a(f"v_mov_b32 v24, 0\nv_mov_b32 v25, 0\nv_mov_b32 v26, 0\nv_mov_b32 v27, 0\nv_mov_b32 v30, 0x3f803f80")
        a("s_waitcnt lgkmcnt(0)")
        a(f"s_mul_i32 s{sE}, s{sE}, 0x9E3779B1\ns_add_u32 s{sE}, s{sE}, 0x7F4A7C15")
        a(f"v_mov_b32 v{self.vEP}, s{sE}")
        self.stamp(1)
        def stats(n):
            for r in range(gX + 16 * n, gX + 16 * n + 16):
                a(f"v_dot2c_f32_bf16 v{24 + (r & 1)}, v{r}, v30")
                a(f"v_dot2c_f32_bf16 v{26 + (r & 1)}, v{r}, v{r}")
        for n in range(8):
            vm.wait(("st", n))
            for ks in range(4):
                a(f"ds_read_b128 {vr(gX + 16*n + 4*ks, 4)}, v{20+ks} offset:{(n&3)*4096}")
            if n:
                stats(n - 1)
            a("s_waitcnt lgkmcnt(0)")
            if n + o.sdepth < 8:
                self.stage_dma(n + o.sdepth, vm)
        self.stamp(2)
        a(f"ds_write_b32 v{self.gMY}, v{self.gONE} offset:{L_STG}")
        if o.gate_at == "stg":
            a(f"ds_write_b32 v{self.gMY}, v{self.gONE} offset:{L_GATE}")
        stats(7)
        a("s_nop 2")
        a("v_add_f32 v24, v24, v25\nv_add_f32 v26, v26, v27")
        a("v_mov_b32 v25, v24\nv_mov_b32 v27, v26\ns_nop 0")
        a("v_permlane32_swap_b32 v24, v25\nv_permlane32_swap_b32 v26, v27")
        a("v_add_f32 v24, v24, v25\nv_add_f32 v26, v26, v27")
        a(f"v_mul_f32 v24, {f2u(1/512):#x}, v24\nv_mul_f32 v26, {f2u(1/512):#x}, v26")
        a("v_fma_f32 v26, -v24, v24, v26\nv_max_f32 v26, 0, v26")
        a("v_cvt_pk_bf16_f32 v24, v24, v26")
        a(f"v_and_b32 v26, s{sMASK}, v24\nv_lshlrev_b32 v24, 16, v24\nv_add_f32 v26, {f2u(1e-5):#x}, v26")
        a("v_cvt_pk_bf16_f32 v26, v26, v26\nv_lshlrev_b32 v26, 16, v26\nv_sqrt_f32 v26, v26\ns_nop 0")
        a("v_cvt_pk_bf16_f32 v26, v26, v26\nv_lshlrev_b32 v26, 16, v26\nv_rcp_f32 v32, v26\ns_nop 0")
        a("v_mul_f32 v34, -v24, v32")
        a("s_branch L_g_bar1")

    def first_slot_touch(self, vm):
        a = self.a
        self.slot_touch_addr(18, 0)
        L, L2 = self.lab("tw3"), self.lab("tw3x")
        nt = self.o.tnt
        a(f"s_bitcmp1_b32 s{sW}, 1\ns_cbranch_scc1 {L}")
        a(f"buffer_load_dword v46, v18, {srd(R_W1)}, 0 offen {nt}\ns_branch {L2}")
        a(f"{L}:\nbuffer_load_dword v46, v18, {srd(R_W3)}, 0 offen {nt}\n{L2}:")
        vm.issue("t0")

    def slot_touch_addr(self, v, p):
        a, o = self.a, self.o
        if o.rotup:
            a(f"s_lshl1_add_u32 s{sT0}, s{sJ}, s{sG}\ns_and_b32 s{sT0}, s{sT0}, {o.rotup}\ns_lshl_b32 s{sT0}, s{sT0}, 6")
        else:
            a(f"s_and_b32 s{sT0}, s{sG}, 7\ns_lshl_b32 s{sT0}, s{sT0}, 6")
        a(f"v_add_u32 v{v}, s{sT0}, v1\nv_mul_u32_u24 v{v}, 3584, v{v}")
        a(f"s_and_b32 s{sT1}, s{sW}, 1\ns_mul_i32 s{sT1}, s{sT1}, {124 if p == 0 else 92}\ns_mul_i32 s{sT0}, s{sJ}, 224\ns_add_u32 s{sT0}, s{sT0}, s{sT1}")
        if p:
            a(f"s_add_u32 s{sT0}, s{sT0}, 128")
        a(f"v_add_u32 v{v}, s{sT0}, v{v}")

    def g_late(self, direct=False):
        a, o = self.a, self.o
        gT, dT = self.gT, self.dT
        a("v_and_b32 v19, 3, v1")
        RG0, RU0, RG1, RU1 = self.gRG0, self.gRU0, self.gRG1, self.gRU1
        a("v_bfe_u32 v20, v1, 1, 2\nv_bfe_u32 v21, v1, 4, 1\nv_xor_b32 v20, v20, v21")
        a("v_lshrrev_b32 v22, 3, v1\nv_mul_u32_u24 v23, 3584, v22\nv_and_b32 v24, 1, v1\nv_lshl_add_u32 v23, v24, 4, v23")
        a(f"v_lshl_add_u32 v{RG0}, v20, 5, v23")
        a(f"v_xor_b32 v24, 2, v20\nv_lshl_add_u32 v{RU0}, v24, 5, v23")
        a("v_mov_b32 v25, 0x40000000")
        a("v_cmp_eq_u32 vcc, 3, v20")
        a(f"v_cmp_eq_u32 s[{sT2}:{sT3}], 3, v24")
        a("v_bfe_u32 v26, v1, 2, 1\nv_xor_b32 v26, v26, v21\nv_lshlrev_b32 v26, 6, v26\nv_lshl_add_u32 v26, v19, 4, v26")
        a(f"v_cndmask_b32 v{RG1}, v{RG0}, v25, vcc")
        a(f"v_cndmask_b32 v{RU1}, v{RU0}, v25, s[{sT2}:{sT3}]")
        a(f"v_lshl_add_u32 v{self.dV}, v22, 10, v26")
        a(f"s_mul_i32 s{sBASE}, s{sW}, {16*3584}\ns_mul_i32 s{sT0}, s{sJ}, 224\ns_add_u32 s{sBASE}, s{sBASE}, s{sT0}")
        a(f"s_lshl_b32 s{sW4096}, s{sW}, 12")
        self.rot_expr(sROT)
        a("v_lshlrev_b32 v19, 3, v19\nv_bfe_u32 v20, v1, 2, 2\nv_lshrrev_b32 v22, 5, v1\nv_bfe_u32 v23, v1, 3, 1")
        a(f"v_lshl_add_u32 v24, v22, 9, v19\nv_lshl_add_u32 v24, v20, 6, v24\nv_lshl_add_u32 v24, v21, 5, v24\nv_add_u32 v{self.gTQ}, {WQI}, v24")
        a("v_lshl_add_u32 v24, v21, 11, v19\nv_lshl_add_u32 v24, v22, 10, v24\nv_lshl_add_u32 v24, v20, 7, v24")
        a(f"v_lshl_add_u32 v25, v21, 1, v23\nv_lshl_add_u32 v{gT}, v25, 5, v24")
        for mt in range(1, 4):
            a(f"v_xor_b32 v{gT+mt}, {32*mt}, v{gT}")
        if not (direct and o.dlate):
            self.g_late_d()
        a(f"v_and_b32 v24, 3, v1\nv_lshlrev_b32 v24, 2, v24\nv_add_u32 v{self.gFL}, {LFL}, v24")
        a(f"s_lshl_b32 s{sT0}, s{sW}, 2\ns_add_u32 s{sT0}, s{sT0}, {LFL}\nv_mov_b32 v{self.gMY}, s{sT0}")
        a(f"v_mov_b32 v{self.gONE}, 1\nv_mov_b32 v{self.vZ}, 0")
        nl, qs = f2u(-LOG2E), f2u(0.25 * LOG2E)
        a(f"s_mov_b32 s{sNL2}, {nl:#x}\ns_mov_b32 s{sNL2+1}, {nl:#x}\ns_mov_b32 s{sONE}, 1.0\ns_mov_b32 s{sONE+1}, 1.0")
        a(f"s_mov_b32 s{sQS}, {qs:#x}\ns_mov_b32 s{sQS+1}, {qs:#x}")
        a(f"s_lshl2_add_u32 s{sT0}, s{sG}, s{sW}")
        if not direct:
            a("v_and_b32 v16, 7, v1\nv_lshlrev_b32 v16, 7, v16")
            a(f"s_lshl_b32 s{sFXA}, s{sT0}, 10\ns_add_u32 s{sFXA}, s{sFXA}, {FX}")
            a(f"s_lshl_b32 s{sXB}, s{sT0}, 15\ns_add_u32 s{sXB}, s{sXB}, {XN}")
        a(f"s_mul_i32 s{sHS}, s{sT0}, 112\ns_mul_i32 s{sT1}, s{sJ}, 7\ns_add_u32 s{sHS}, s{sHS}, s{sT1}\ns_lshl_b32 s{sHS}, s{sHS}, 10\ns_add_u32 s{sHS}, s{sHS}, {HF}")
        a(f"s_lshl2_add_u32 s{sFH}, s{sP}, s{sW}\ns_lshl_b32 s{sFH}, s{sFH}, 7\ns_add_u32 s{sFH}, s{sFH}, {FH}")

    def g_late_d(self, redo=False):
        a, o = self.a, self.o
        gT, dT = self.gT, self.dT
        if redo:
            a("v_and_b32 v19, 3, v1\nv_lshlrev_b32 v19, 3, v19\nv_bfe_u32 v20, v1, 2, 2\nv_bfe_u32 v21, v1, 4, 1\nv_lshrrev_b32 v22, 5, v1\nv_bfe_u32 v23, v1, 3, 1")
        a(f"s_and_b32 s{sT5}, s{sI}, 3\ns_lshl2_add_u32 s{sT2}, s{sX8}, s{sT5}")
        a(f"s_lshr_b32 s{sNN}, s{sI}, 2")
        if o.nxor:
            a(f"s_xor_b32 s{sNN}, s{sNN}, {o.nxor}")
        a(f"s_lshl_b32 s{sT4}, s{sNN}, 7")
        a(f"s_mul_i32 s{sW2}, s{sW}, {28*16384}")
        if "w2n0" not in o.hack:
            a(f"s_add_u32 s{sW2}, s{sW2}, s{sT4}")
        a(f"s_lshl_b32 s{sWO}, s{sW}, 17\ns_add_u32 s{sWO}, s{sWO}, s{sT4}")
        a(f"s_lshl_b32 s{sRB}, s{sW}, 14\ns_add_u32 s{sRB}, s{sRB}, {RB0}")
        if o.rot:
            a(f"s_lshl1_add_u32 s{sRX}, s{sT5}, s{sNN}\ns_lshl_b32 s{sRX}, s{sRX}, 1")
            if o.xoff:
                a(f"s_lshl1_add_u32 s{sRX}, s{sX8}, s{sRX}")
            a(f"s_and_b32 s{sRX}, s{sRX}, 15")
            a(f"s_lshl1_add_u32 s{sRY}, s{sT5}, s{sNN}\ns_mul_i32 s{sRY}, s{sRY}, 3\ns_lshr_b32 s{sRY}, s{sRY}, 1")
            if o.xoff:
                a(f"s_add_u32 s{sRY}, s{sRY}, s{sX8}")
            for _ in range(2):
                a(f"s_sub_u32 s{sT0}, s{sRY}, 12\ns_cmp_ge_u32 s{sRY}, 12\ns_cselect_b32 s{sRY}, s{sT0}, s{sRY}")
        else:
            a(f"s_mov_b32 s{sRX}, 0\ns_mov_b32 s{sRY}, 0\ns_mov_b32 s{sNN}, 0")
        a(f"s_lshr_b32 s{sT0}, s{sW}, 1\ns_lshl1_add_u32 s{sT0}, s{sT2}, s{sT0}\ns_xor_b32 s{sT1}, s{sT0}, 1\ns_mul_i32 s{sT5}, s{sW}, 28")
        for sH, sO, st in ((sH0, sO0, sT0), (sH1, sO1, sT1)):
            a(f"s_mul_i32 s{sH}, s{st}, 112\ns_add_u32 s{sH}, s{sH}, s{sT5}\ns_lshl_b32 s{sH}, s{sH}, 10\ns_add_u32 s{sH}, s{sH}, {HF}")
            a(f"s_lshl_b32 s{sO}, s{st}, 2\ns_add_u32 s{sO}, s{sO}, s{sW}\ns_lshl_b32 s{sO}, s{sO}, 13\ns_add_u32 s{sO}, s{sO}, {OF}")
        a(f"s_lshl_b32 s{sOUT}, s{sT0}, 15\ns_add_u32 s{sOUT}, s{sOUT}, s{sT4}\ns_and_b32 s{sT1}, s{sW}, 1\ns_lshl_b32 s{sT1}, s{sT1}, 6\ns_add_u32 s{sOUT}, s{sOUT}, s{sT1}")
        a("v_lshl_add_u32 v24, v21, 5, v19\nv_lshl_add_u32 v24, v20, 7, v24\nv_lshl_add_u32 v24, v22, 9, v24\nv_lshl_add_u32 v24, v23, 6, v24")
        a(f"v_xor_b32 v24, s{sT1}, v24\nv_add_u32 v{dT}, s{sRB}, v24\nv_xor_b32 v{dT+1}, 64, v{dT}")
        a(f"s_lshr_b32 s{sT0}, s{sT2}, 1\ns_lshl2_add_u32 s{sT0}, s{sT0}, s{sW}\ns_lshl_b32 s{sT0}, s{sT0}, 4")
        a(f"s_and_b32 s{sT1}, s{sT2}, 1\ns_lshl1_add_u32 s{sT0}, s{sT1}, s{sT0}\ns_lshl_b32 s{sT0}, s{sT0}, 7")
        a(f"v_and_b32 v24, 3, v1\nv_lshlrev_b32 v25, 9, v24\nv_bfe_u32 v26, v1, 2, 1\nv_lshl_add_u32 v25, v26, 7, v25\nv_add_u32 v{self.dF}, s{sT0}, v25")
        a(f"v_and_b32 v25, 31, v1\nv_lshlrev_b32 v25, 10, v25\nv_lshl_add_u32 v{self.dXA}, v22, 3, v25")

    def wq_dma(self, vm):
        a = self.a
        a(f"s_lshl_b32 s{sT4}, s{sJ}, 6")
        a(f"s_lshl_b32 s{sT1}, s{sW}, 13\ns_add_u32 m0, s{sT1}, {WQI}")
        if self.o.rotup:
            a(f"s_lshl1_add_u32 s{sT5}, s{sJ}, s{sG}\ns_and_b32 s{sT5}, s{sT5}, {self.o.rotup}")
        else:
            a(f"s_mov_b32 s{sT5}, 0")
        for n in range(8):
            if n:
                a("s_add_u32 m0, m0, 1024")
            if n & 3 == 0:
                a(f"s_lshl1_add_u32 s{sT0}, s{sW}, s{sT5}\ns_add_u32 s{sT0}, s{sT0}, {n>>2}\ns_and_b32 s{sT0}, s{sT0}, 7\ns_lshl_b32 s{sT0}, s{sT0}, 16\ns_add_u32 s{sT0}, s{sT0}, s{sT4}")
            else:
                a(f"s_add_u32 s{sT0}, s{sT0}, 16384")
            a(f"buffer_load_dwordx4 v17, {srd(R_WQ)}, s{sT0} offen lds")
            vm.issue("wq")

    def ring_dma_parts(self, b, vm):
        a = self.a
        p, sl = b >> 3, b & 7
        vg, vu = (self.gRG0, self.gRU0) if p == 0 else (self.gRG1, self.gRU1)
        def p0():
            a(f"s_add_u32 s{sT0}, s{sROT}, {sl}\ns_and_b32 s{sT0}, s{sT0}, 7\ns_mul_i32 s{sT0}, s{sT0}, {64*3584}\ns_add_u32 s{sT0}, s{sT0}, s{sBASE}")
            a(f"s_add_u32 m0, s{sW4096}, {(b & 3) * 16384}")
            a(f"s_add_u32 s{sT1}, s{sT0}, {p*128 + 8*3584 - 1024}")
            if p:
                a(f"s_add_u32 s{sT0}, s{sT0}, {p*128}")
            a(f"buffer_load_dwordx4 v{vg}, {srd(R_W1)}, s{sT0} offen lds"); vm.issue(("ring", b))
        def p1():
            a(f"buffer_load_dwordx4 v{vg}, {srd(R_W1)}, s{sT1} offen offset:1024 lds"); vm.issue(("ring", b))
            a("s_add_u32 m0, m0, 2048")
        def p2():
            if self.o.batch:
                a("s_nop 0")
            a(f"buffer_load_dwordx4 v{vu}, {srd(R_W3)}, s{sT0} offen lds"); vm.issue(("ring", b))
        def p3():
            a(f"buffer_load_dwordx4 v{vu}, {srd(R_W3)}, s{sT1} offen offset:1024 lds"); vm.issue(("ring", b))
        return [p0, p1, p2, p3]

    def ring_fill(self, vm, lo, hi):
        for b in range(lo, hi):
            ps = self.ring_dma_parts(b, vm)
            ps[0](); ps[1](); self.a("s_nop 0"); ps[2](); ps[3]()

    def tr_pair(self, dst, vaddr, off, qstep):
        self.a(f"ds_read_b64_tr_b16 {vr(dst,2)}, v{vaddr} offset:{off}")
        self.a(f"ds_read_b64_tr_b16 {vr(dst+2,2)}, v{vaddr} offset:{off+qstep}")

    def kstep_index(self, n):
        a = self.a
        if n < 16:
            a(f"s_add_u32 s{sKS}, s{sRX}, {n}\ns_and_b32 s{sKS}, s{sKS}, 15\ns_lshr_b32 s{sT2}, s{sKS}, 2\ns_mul_i32 s{sT2}, s{sT2}, 3\ns_add_u32 s{sKS}, s{sKS}, s{sT2}")
        elif n < 28:
            a(f"s_add_u32 s{sKS}, s{sRY}, {n-16}\ns_sub_u32 s{sT2}, s{sKS}, 12\ns_cmp_ge_u32 s{sKS}, 12\ns_cselect_b32 s{sKS}, s{sT2}, s{sKS}")
            a(f"s_mul_i32 s{sT2}, s{sKS}, 11\ns_lshr_b32 s{sT2}, s{sT2}, 5\ns_lshl2_add_u32 s{sKS}, s{sT2}, s{sKS}\ns_add_u32 s{sKS}, s{sKS}, 4")
        else:
            a(f"s_add_u32 s{sKS}, s{sNN}, {n-28}\ns_and_b32 s{sKS}, s{sKS}, 7")

    def w2_dma(self, n, vm):
        a = self.a
        R, s = (R_W2, sW2) if n < 28 else (R_WO, sWO)
        a(f"s_add_u32 m0, s{sRB}, {(n & 7) * 2048}")
        a(f"s_lshl_b32 s{sT0}, s{sKS}, 14\ns_add_u32 s{sT0}, s{sT0}, s{s}\ns_add_u32 s{sT1}, s{sT0}, {8192 - 1024}")
        a(f"buffer_load_dwordx4 v{self.dV}, {srd(R)}, s{sT0} offen lds")
        a(f"buffer_load_dwordx4 v{self.dV}, {srd(R)}, s{sT1} offen offset:1024 lds")
        vm.issue(("w2", n)); vm.issue(("w2", n))

    def ldB(self, n, vm):
        a = self.a
        a(f"s_lshl_b32 s{sT0}, s{sKS}, 10")
        for bp in range(2):
            s = (sH0, sH1)[bp] if n < 28 else (sO0, sO1)[bp]
            a(f"s_add_u32 s{sT1}, s{sT0}, s{s}")
            a(f"buffer_load_dwordx4 {vr(self.dH+8*(n&15)+4*bp,4)}, v2, {srd(R_WS)}, s{sT1} offen sc1")
            vm.issue(("b", n))

    def resid_load(self, vm):
        a = self.a
        for i in range(4 if "nores" not in self.o.hack else 0):
            a(f"buffer_load_dwordx2 {vr(self.dXR+2*i,2)}, v{self.dXA}, {srd(R_X)}, s{sOUT} offen offset:{16*i}")
            vm.issue("xres")

    def g_main(self):
        a, o = self.a, self.o
        vm = self.vmG
        gT, gA, gC, gX, gE, gP = self.gT, self.gA, self.gC, self.gX, self.gE, self.gP
        ONE, TMP, FLG, MY = self.gONE, self.gTMP, self.gFL, self.gMY
        a("L_g_bar1:")
        if o.direct:
            self.q_direct(vm)
        else:
            a(f"v_mov_b32 v{self.vEP}, s{sE}")
            if o.dyn:
                L, L2 = self.lab("nopk"), self.lab("slot")
                a(f"s_cmp_lg_u32 s{sW}, 0\ns_cbranch_scc1 {L}")
                a(f"v_lshlrev_b32 v16, 7, v1\ns_mov_b32 s{sT3}, {XT}")
                q0 = list(vm.q)
                self.peek_global(16, f"s{sT3}", self.vPK, 2, vm, "xt", 9)
                a("s_barrier")
                a(f"s_setprio {o.prioGhi}")
                self.make_slot(vm)
                a(f"s_branch {L2}")
                a(f"{L}:")
                vm.q = q0
                a("s_barrier")
                a(f"s_setprio {o.prioGhi}")
                a(f"{L2}:")
                self.stamp(2)
                self.get_slot(18, 19)
            else:
                a("s_barrier")
                self.stamp(2)
                a(f"s_setprio {o.prioGhi}")
            if o.wq_at == "bar1":
                self.wq_dma(vm)
            if o.code_pf == 2:
                self.code_prefetch(vm)
            if o.t0 == 2:
                self.first_slot_touch(vm)
            self.g_late()
            if o.t0 == 3:
                a(f"v_and_b32 v18, 1, v1\nv_lshlrev_b32 v18, 2, v18\nv_add_u32 v18, {LFL+L_PUB}, v18")
                self.spin_lds(18, 19, "v_cmp_gt_u32 vcc, 1, v19", sleep=1)
                self.first_slot_touch(vm)
            if o.ring01 == "pub":
                a(f"v_and_b32 v18, 1, v1\nv_lshlrev_b32 v18, 2, v18\nv_add_u32 v18, {LFL+L_PUB}, v18")
                self.spin_lds(18, 19, "v_cmp_gt_u32 vcc, 1, v19", sleep=1)
                self.ring_fill(vm, 0, 2)
            if o.wq_at != "pub":
                vm.wait("wq")
                a(f"ds_write_b32 v{MY}, v{ONE} offset:{L_WQF}")
            self.stamp(3)
            self.poll_global(16, f"s{sFXA}", 19, 1, vm, lanes=8)
            a(f"ds_write_b32 v{MY}, v{ONE} offset:{L_GATE}")
            self.stamp(4)
            for s in range(32):
                if s & 3 == 0:
                    a(f"s_add_u32 s{sT0}, s{sROT}, {s>>2}\ns_and_b32 s{sT0}, s{sT0}, 7\ns_lshl_b32 s{sT0}, s{sT0}, 12\ns_add_u32 s{sT0}, s{sT0}, s{sXB}")
                a(f"buffer_load_dwordx4 {vr(gX+4*s,4)}, v2, {srd(R_WS)}, s{sT0} offen offset:{1024*(s&3)} sc1")
                vm.issue(("x", s))
            if o.ring01 == "afterx":
                self.ring_fill(vm, 0, 1)
            if o.wq_at == "pub":
                a(f"v_and_b32 v18, 1, v1\nv_lshlrev_b32 v18, 2, v18\nv_add_u32 v18, {LFL+L_WQF}, v18")
                self.spin_lds(18, TMP, f"v_cmp_gt_u32 vcc, 1, v{TMP}")
            else:
                self.spin_lds(FLG, TMP, f"v_cmp_gt_u32 vcc, 1, v{TMP}", off=L_WQF)
            for s in range(4):
                self.tr_pair(gA + 4 * s, self.gTQ, 1024 * s, 256)
            for s in range(32):
                left = min(3, 31 - s)
                vm.wait(("x", s), f"lgkmcnt({2*left})")
                c = "0" if s == 0 else vr(gC, 16)
                a(f"v_mfma_f32_32x32x16_bf16 {vr(gC,16)}, {vr(gA+4*(s%4),4)}, {vr(gX+4*s,4)}, {c}")
                if s + 4 < 32:
                    self.tr_pair(gA + 4 * (s % 4), self.gTQ, 1024 * (s + 4), 256)
                if s == o.r0at:
                    self.ring_fill(vm, 0, 1)
        if not o.gtrace and not o.gs:
            self.stamp(5)
        a(f"s_lshl_b32 s{sT0}, s{sW}, 11\ns_add_u32 s{sT0}, s{sT0}, {QX}")
        a(f"v_add_u32 v18, s{sT0}, v2")
        a("s_nop 8")
        for i in range(8):
            a(f"v_pk_mul_f32 {vr(gC+2*i,2)}, {vr(gC+2*i,2)}, s[{sQS}:{sQS+1}]")
        for i in range(8):
            a(f"v_cvt_pk_bf16_f32 v{gP+i}, v{gC+2*i}, v{gC+2*i+1}")
        a(f"ds_write_b128 v18, {vr(gP,4)}")
        a(f"ds_write_b128 v18, {vr(gP+4,4)} offset:1024")
        a(f"v_mul_f32 v{gE}, v{gC}, v{gC}\nv_mul_f32 v{gE+1}, v{gC+8}, v{gC+8}")
        for i in range(1, 8):
            a(f"v_fmac_f32 v{gE}, v{gC+i}, v{gC+i}\nv_fmac_f32 v{gE+1}, v{gC+8+i}, v{gC+8+i}")
        a("s_nop 1")
        a(f"v_permlane32_swap_b32 v{gE}, v{gE+1}")
        a(f"v_add_f32 v{gE}, v{gE}, v{gE+1}")
        a(f"v_and_b32 v{gE}, 0x7fffffff, v{gE}")
        self.reduce64("v_max_u32", gE, gE + 1)
        a("s_waitcnt lgkmcnt(0)")
        a(f"ds_write_b32 v{MY}, v{gE} offset:{L_QMAX}")
        self.stamp(6)
        if o.only == "A":
            a(f"v_mov_b32 v{TMP}, 18\nds_write_b32 v{MY}, v{TMP}\ns_waitcnt vmcnt(0) lgkmcnt(0)")
            self.stamp_flush()
            a("s_endpgm")
            return
        if o.ring01 == "apub":
            self.spin_lds(FLG, TMP, f"v_cmp_gt_u32 vcc, 1, v{TMP}", off=L_R0)
        elif o.astart:
            self.spin_lds(MY, TMP, f"v_cmp_gt_u32 vcc, 1, v{TMP}", sleep=1, off=L_ASTART)
        if o.direct and o.ringat != "stg":
            self.spin_lds(FLG, TMP, f"v_cmp_gt_u32 vcc, 1, v{TMP}", off=L_STG)
        if not (o.direct and o.ringat == "stg"):
            self.ring_fill(vm, {"pub": 2, "afterx": 1, "none": 1 if o.r0at >= 0 else 0, "apub": o.fill}[o.ring01], o.fill)
        LA = 4
        lg = Lg(a)
        items = []
        for b in range(16):
            for ks in range(4):
                for mt in range(4 if b < 8 else 3):
                    items.append((len(items), b, ks, mt))
        def mf(it):
            (n, b, ks, mt) = it
            kk = 4 * (b & 7) + ks
            c = "0" if kk == 0 else vr(gC + 16 * mt, 16)
            if "nomfma" in o.hack and kk > 0:
                return
            a(f"v_mfma_f32_32x32x16_bf16 {vr(gC+16*mt,16)}, {vr(gA+4*(n%LA),4)}, {vr(gX+4*kk,4)}, {c}")
        def rd(it):
            (n, b, ks, mt) = it
            if "nolds" in o.hack and n >= LA:
                return
            self.tr_pair(gA + 4 * (n % LA), gT + mt, (b & 3) * 16384 + ks * 4096, 512)
            lg.issue(("r", n)); lg.issue(("r", n))
        def signal():
            a(f"s_mov_b64 exec, 1\nds_add_u32 v{MY}, v{ONE}\ns_mov_b64 exec, -1"); lg.issue("sig")
        def peek():
            a(f"ds_read_b32 v{TMP}, v{FLG}"); lg.issue("peek")
        def check(target):
            waitcnt(a, lg=lg, ltag="peek")
            a(f"s_setprio {o.prioGhi}")
            self.spin_lds(FLG, TMP, f"v_cmp_gt_u32 vcc, {target}, v{TMP}", peeked=True)
            a(f"s_setprio {self.curp}")
        self.curp = o.prioGhi if o.hiup > 0 else o.prioG
        if o.direct and o.dlate:
            self.g_late_d(redo=True)
        vm.wait(("ring", 0))
        if o.ring01 == "apub" and o.astart:
            self.spin_lds(MY, TMP, f"v_cmp_gt_u32 vcc, 1, v{TMP}", sleep=1, off=L_ASTART)
        if o.fill < 3:
            self.ring_fill(vm, o.fill, 3)
        signal(); peek(); check(1)
        if not o.batch:
            for it in items[:LA]:
                rd(it)
        extras = {}
        def at(n, f):
            extras.setdefault(n, []).append(f)
        first = {b: min(n for (n, bb, _, _) in items if bb == b) for b in range(16)}
        def flag_h0():
            assert vm.need(("h", 3)) is None
            self.flag_store(self.vEP, 1, self.vZ, f"s{sFH}"); vm.issue("fl")
        def peek_h(tag):
            a(f"s_mov_b32 s{sT3}, {FH}")
            self.peek_global(self.dF, f"s{sT3}", self.vPK, 2, vm, tag, 8)
        def check_h(tag, word):
            a(f"s_setprio {o.prioGhi}")
            self.poll_global(self.dF, f"s{sT3}", self.vPK, 2, vm, lanes=8, word=word, first_issued=tag)
            a(f"s_setprio {self.curp}")
        self.peek_h, self.check_h = peek_h, check_h
        for b in range(16):
            f0 = first[b]
            if b < 15:
                at(f0 + 1, lambda b=b: (vm.wait(("ring", b + 1)), signal()))
                at(f0 + 2, peek)
                at(f0 + 5, lambda b=b: check(b + 2))
            if (0 if o.fill < 4 else 1) <= b <= 12 and "nodma" not in o.hack:
                for k, part in enumerate(self.ring_dma_parts(b + 3, vm)):
                    at(f0 + 6 + k, part)
            if b == 10:
                at(f0 + 3, flag_h0)
            if b == 12:
                at(f0 + 10, lambda: peek_h("pk0"))
            LD = o.LD
            if b == 13:
                at(f0 + 11, lambda: check_h("pk0", 0))
            if b == 14:
                if not o.w2pre:
                    for k in range(min(LD, 4)):
                        at(f0 + 3 + 2 * k + (k > 0), lambda n=k: (self.kstep_index(n), self.w2_dma(n, vm)))
                at(f0 + 11, lambda: self.resid_load(vm))
            if b == 15 and not o.w2pre:
                for k in range(4, LD):
                    at(f0 + k - 3, lambda n=k: (self.kstep_index(n), self.w2_dma(n, vm)))
            nh = o.hpre or LD
            if b == 14 and nh > 4:
                for k in range(nh - 4):
                    at(f0 + 1 + 2 * k, lambda n=k: (self.kstep_index(n), self.ldB(n, vm)))
            if b == 15:
                for k in range(max(0, nh - 4), nh):
                    at(f0 + 2 * (k - max(0, nh - 4)) + 2, lambda n=k: (self.kstep_index(n), self.ldB(n, vm)))
        self.w2_done = 0
        pre8 = 0
        if o.w2pre:
            for spec in str(o.w2pre).split("+"):
                sb, cnt = map(int, spec.split("x"))
                for k in range(cnt):
                    n = self.w2_done; self.w2_done += 1
                    if sb == 8:
                        pre8 += 1
                    else:
                        at(first[sb] + (10, 11, 0, 3)[k // 1 % 4] if cnt <= 4 else first[sb] + k, lambda n=n: (self.kstep_index(n), self.w2_dma(n, vm)))
        n_pre8_first = self.w2_done - sum(int(x.split("x")[1]) for x in str(o.w2pre).split("+") if x and int(x.split("x")[0]) >= 8) if o.w2pre else 0
        a(f"s_setprio {self.curp}")
        if o.batch:
            BUF = (gA, 16)
            steps = [(b, ks) for b in range(16) for ks in range(4)]
            def nm_of(b): return 4 if b < 8 else 3
            def rdk(q):
                b, ks = steps[q]
                for mt in range(nm_of(b)):
                    if mt == nm_of(b) - 1 and len(lg.q) + 2 > 15:
                        n_keep = 13
                        a(f"s_waitcnt lgkmcnt({n_keep})"); lg.q = lg.q[len(lg.q) - n_keep:]
                    self.tr_pair(BUF[q & 1] + 4 * mt, gT + mt, (b & 3) * 16384 + ks * 4096, 512)
                    lg.issue(("k", q)); lg.issue(("k", q))
            rdk(0); rdk(1)
            for q, (b, ks) in enumerate(steps):
                if ks == 0:
                    if b == o.hiup and b > 0:
                        self.curp = o.prioG
                        a(f"s_setprio {self.curp}")
                    self.trv = 28
                    self.trace_pt(vm, b)
                    if o.gtrace and b in (1, 4, 8, 12):
                        self.stamp({1: 1, 4: 2, 8: 3, 12: 5}[b])
                if q == 32:
                    a(f"s_setprio {o.prioGhi}")
                    for k in range(pre8):
                        self.kstep_index(n_pre8_first + k)
                        self.w2_dma(n_pre8_first + k, vm)
                    a("s_nop 7")
                    self.silu_store(0, 4, vm)
                    a(f"s_setprio {self.curp}")
                    rdk(33)
                    if o.gtrace:
                        self.stamp(4)
                waitcnt(a, lg=lg, ltag=("k", q))
                kk = 4 * (b & 7) + ks
                for mt in range(nm_of(b)):
                    c = "0" if kk == 0 else vr(gC + 16 * mt, 16)
                    a(f"v_mfma_f32_32x32x16_bf16 {vr(gC+16*mt,16)}, {vr(BUF[q&1]+4*mt,4)}, {vr(gX+4*kk,4)}, {c}")
                nb = nm_of(b)
                lo, hi = first[b] + ks * nb, first[b] + (ks + 1) * nb
                late = []
                for n in range(lo, hi):
                    for f in extras.get(n, []):
                        late.append(f)
                if ks == 2 and b < 15:
                    pass
                if q + 2 < len(steps) and q + 2 != 33:
                    rdk(q + 2)
                for f in late:
                    f()
        else:
            for it in items:
                n, b = it[0], it[1]
                if n == first[b] and b == o.hiup and b > 0:
                    self.curp = o.prioG
                    a(f"s_setprio {self.curp}")
                if n == first[b]:
                    self.trv = 28
                    self.trace_pt(vm, b)
                if o.gs and n == first[b] and o.gs <= b < o.gs + 5:
                    self.stamp(b - o.gs + 1)
                if o.gtrace and n == first[b] and b in (1, 4, 8, 12):
                    self.stamp({1: 1, 4: 2, 8: 3, 12: 5}[b])
                if n == first[8]:
                    a(f"s_setprio {o.prioGhi}")
                    for k in range(pre8):
                        self.kstep_index(n_pre8_first + k)
                        self.w2_dma(n_pre8_first + k, vm)
                    a("s_nop 7")
                    self.silu_store(0, 4, vm)
                    a(f"s_setprio {self.curp}")
                    if o.gtrace:
                        self.stamp(4)
                waitcnt(a, lg=lg, ltag=("r", n))
                mf(it)
                if n + LA < len(items):
                    rd(items[n + LA])
                for f in extras.get(n, []):
                    f()
        signal()
        a(f"s_setprio {o.prioGhi}")
        a("s_nop 7\ns_nop 1")
        self.silu_store(4, 3, vm)
        self.stamp(7)
        self.down(vm)

    def q_direct(self, vm):
        a, o = self.a, self.o
        gA, gC, gX = self.gA, self.gC, self.gX
        TMP, FLG = self.gTMP, self.gFL
        if o.ringat == "stg":
            self.spin_lds(FLG, TMP, f"v_cmp_gt_u32 vcc, 1, v{TMP}", off=L_STG)
            self.ring_fill(vm, 0, o.fill)
        self.stamp(3)
        def norm(s):
            for i in range(4):
                r, t = gX + 4 * s + i, 16 + 2 * i + 8 * (s & 1)
                a(f"v_lshlrev_b32 v{t}, 16, v{r}\nv_and_b32 v{t+1}, s{sMASK}, v{r}")
            for i in range(4):
                t = 16 + 2 * i + 8 * (s & 1)
                a(f"v_pk_fma_f32 {vr(t,2)}, {vr(t,2)}, v[32:33], v[34:35] op_sel_hi:[1,0,0]")
            for i in range(4):
                r, t = gX + 4 * s + i, 16 + 2 * i + 8 * (s & 1)
                a(f"v_cvt_pk_bf16_f32 v{r}, v{t}, v{t+1}")
        for s in range(4):
            norm(s)
        a(f"v_and_b32 v36, 1, v1\nv_lshlrev_b32 v36, 2, v36\nv_add_u32 v36, {LFL+L_WQF}, v36")
        self.spin_lds(36, TMP, f"v_cmp_gt_u32 vcc, 1, v{TMP}")
        self.stamp(4)
        for s in range(4):
            self.tr_pair(gA + 4 * s, self.gTQ, 1024 * s, 256)
        for s in range(32):
            if o.gate_at == s:
                a(f"ds_write_b32 v{self.gMY}, v{self.gONE} offset:{L_GATE}")
            if s + 4 < 32:
                norm(s + 4)
            left = min(3, 31 - s)
            a(f"s_waitcnt lgkmcnt({0 if o.gate_at == s else 2*left})")
            c = "0" if s == 0 else vr(gC, 16)
            a(f"v_mfma_f32_32x32x16_bf16 {vr(gC,16)}, {vr(gA+4*(s%4),4)}, {vr(gX+4*s,4)}, {c}")
            if s + 4 < 32:
                self.tr_pair(gA + 4 * (s % 4), self.gTQ, 1024 * (s + 4), 256)

    def silu_store(self, mt0, nm, vm):
        a = self.a
        gC, gE, gP = self.gC, self.gE, self.gP
        for m in range(nm):
            G, U, E, P = gC + 16 * m, gC + 16 * m + 8, gE, gP + 4 * (m & 1)
            for i in range(4):
                a(f"v_pk_mul_f32 {vr(E+2*i,2)}, {vr(G+2*i,2)}, s[{sNL2}:{sNL2+1}]")
            for i in range(8):
                a(f"v_exp_f32 v{E+i}, v{E+i}")
            for i in range(4):
                a(f"v_pk_mul_f32 {vr(G+2*i,2)}, {vr(G+2*i,2)}, {vr(U+2*i,2)}")
            for i in range(4):
                a(f"v_pk_add_f32 {vr(E+2*i,2)}, {vr(E+2*i,2)}, s[{sONE}:{sONE+1}]")
            for i in range(8):
                a(f"v_rcp_f32 v{E+i}, v{E+i}")
            if m == 0 and mt0:
                a(f"s_add_u32 s{sHS}, s{sHS}, {1024*mt0}")
            else:
                a("s_nop 0")
            for i in range(4):
                a(f"v_pk_mul_f32 {vr(G+2*i,2)}, {vr(G+2*i,2)}, {vr(E+2*i,2)}")
            for i in range(4):
                a(f"v_cvt_pk_bf16_f32 v{P+i}, v{G+2*i}, v{G+2*i+1}")
            a(f"buffer_store_dwordx4 {vr(P,4)}, v2, {srd(R_WS)}, s{sHS} offen offset:{1024*m} sc1")
            vm.issue(("h", mt0 + m))
            if self.o.dup & 2:
                a(f"buffer_store_dwordx4 {vr(P,4)}, v2, {srd(R_WS)}, s{sHS} offen offset:{1024*m} {self.o.dupf}")
                vm.issue(("h", mt0 + m))

    def red_addr(self):
        a = self.a
        a(f"v_add_u32 v16, s{sRB}, v2")
        for u in range(1, 4):
            a(f"s_xor_b32 s{sT0}, s{sW}, {u}\ns_lshl_b32 s{sT0}, s{sT0}, 14\ns_add_u32 s{sT0}, s{sT0}, {RB0 + (u-1)*4096}")
            a(f"v_add_u32 v{16+u}, s{sT0}, v2")
        a(f"v_mov_b32 v{self.gTMP}, 18")

    def down(self, vm):
        a, o = self.a, self.o
        gA, gC, gP, dT, dH = self.gA, self.gC, self.gP, self.dT, self.dH
        def rdA(n):
            buf = gA + 8 * (n & 1)
            self.tr_pair(buf, dT, (n & 7) * 2048, 1024)
            self.tr_pair(buf + 4, dT + 1, (n & 7) * 2048, 1024)
        LD = o.LD
        early_gate = 2 <= o.n0 <= 16 - LD
        assert o.n0 < 0 or o.n0 >= 2
        nxt = {"w": self.w2_done if o.w2pre else LD, "b": o.hpre or LD}
        def fill(wmax, bmax):
            while nxt["w"] <= wmax or nxt["b"] <= bmax:
                dw, db = nxt["w"] <= wmax, nxt["b"] <= bmax
                m = min(nxt["w"] if dw else 99, nxt["b"] if db else 99)
                self.kstep_index(m)
                if dw and nxt["w"] == m:
                    self.w2_dma(m, vm); nxt["w"] += 1
                if db and nxt["b"] == m:
                    self.ldB(m, vm); nxt["b"] += 1
        if o.fastred:
            self.red_addr()
            a(f"v_lshrrev_b32 v20, 5, v1\nv_lshl_add_u32 v20, v20, 3, v{self.dXA}\nv_mov_b32 v21, 18")
        vm.wait("xres")
        rdA(0)
        for i in range(8):
            a(f"v_lshlrev_b32 v{gC+2*i}, 16, v{self.dXR+i}")
            a(f"v_and_b32 v{gC+2*i+1}, s{sMASK}, v{self.dXR+i}")
        self.stamp(8)
        self.curp = o.prioGhi if o.hidown > 0 else o.prioG
        a(f"s_setprio {self.curp}")
        def step(n, nP):
            if n == o.hidown and n > 0:
                self.curp = o.prioG
                a(f"s_setprio {self.curp}")
            self.trv = 28
            self.trace_pt(vm, 17 + n)
            if o.dtrace and n in (4, 8, 13, 16, 22):
                self.a(f"s_memrealtime s[{sTS+(1,2,3,4,5)[(4,8,13,16,22).index(n)]-((sTS+(1,2,3,4,5)[(4,8,13,16,22).index(n)])&1)}:{sTS+(1,2,3,4,5)[(4,8,13,16,22).index(n)]-((sTS+(1,2,3,4,5)[(4,8,13,16,22).index(n)])&1)+1}]" if False else "s_nop 0")
                self.stamp({4: 1, 8: 2, 13: 3, 16: 4, 22: 5}[n])
            if n == nP - 3 and nP < 28:
                a(f"s_mov_b32 s{sT3}, {FO}")
                self.peek_global(self.dF, f"s{sT3}", self.vPK, 1, vm, "pko", 8)
            if n == 28 and nP < 28:
                self.stamp(9)
            if n == nP:
                a(f"s_setprio {o.prioGhi}")
                if nP == 28:
                    self.stamp(9)
                    a(f"s_mov_b32 s{sT3}, {FO}")
                    self.poll_global(self.dF, f"s{sT3}", self.vPK, 1, vm, lanes=8)
                else:
                    assert nxt["b"] > 27 and nP >= 20
                    self.poll_global(self.dF, f"s{sT3}", self.vPK, 1, vm, lanes=8, first_issued="pko")
                self.stamp(10)
                for m in range(28, 36):
                    self.kstep_index(m)
                    self.ldB(m, vm)
            if n == o.n0:
                if early_gate:
                    fill(min(n + 7, 35), min(n + 15, 15))
                    a(f"s_mov_b32 s{sT3}, {FH}\ns_setprio {o.prioGhi}")
                    self.poll_global(self.dF, f"s{sT3}", self.vPK, 2, vm, lanes=8, word=1, sleep=2)
                fill(min(n + 7, 35), min(n + 15, 27))
                a(f"s_setprio {o.prioGhi}")
                self.spin_lds(self.gMY, self.gTMP, f"v_cmp_gt_u32 vcc, 1, v{self.gTMP}", sleep=2, off=L_ADONE)
            if n + 1 < 36:
                vm.wait(("w2", n + 1))
                rdA(n + 1)
                vm.wait(("b", n), "lgkmcnt(4)")
            else:
                vm.wait(("b", n), "lgkmcnt(0)")
            buf = gA + 8 * (n & 1)
            for u in ((1, 3, 2, 0) if (o.fastred and n == 35) else (0, 1, 3, 2)):
                ap, bp = u & 1, u >> 1
                c = "0" if (n == 0 and u) else vr(gC + 16 * u, 16)
                a(f"v_mfma_f32_32x32x16_bf16 {vr(gC+16*u,16)}, {vr(buf+4*ap,4)}, {vr(dH+8*(n&15)+4*bp,4)}, {c}")
            if n == 1:
                vm.wait(("h", 6))
                self.flag_store(self.vEP, 1, self.vZ, f"s{sFH}", off=4); vm.issue("fl")
            pk1 = o.pk1 if o.deep >= 0 else 16 - LD - 3
            if n == pk1 and not early_gate:
                self.peek_h("pk1")
            if n == pk1 + 3 and not early_gate:
                self.check_h("pk1", 1)
            if o.n0 >= 0 and n >= o.n0:
                fill(min(n + 8, 35), min(n + 16, 27))
            elif o.deep >= 0 and n >= o.deep:
                bcap = 27 if n >= pk1 + 3 else 15
                fill(min(n + 8, 35, nxt["w"] - 1 + o.dstep), min(n + 16, bcap, nxt["b"] - 1 + o.dstep))
            elif o.LDW == 8:
                fill(min(n + 8, 35), min(n + LD, 27))
            else:
                fill(min(n + (o.LDW or LD), 27), min(n + LD, 27))
                if 20 <= n < 28:
                    fill(n + 8 if nxt["w"] >= 28 else -1, -1)
        if not o.nE:
            for n in range(36):
                step(n, o.nP)
        else:
            import copy
            for n in range(o.nE):
                if n == o.nE - 3:
                    a(f"s_mov_b32 s{sT3}, {FO}")
                    self.peek_global(self.dF, f"s{sT3}", self.vPK, 1, vm, "pko", 8)
                step(n, 99)
            assert nxt["b"] > 27
            Ll, Lj = self.lab("olate"), self.lab("ojoin")
            vm.wait("pko")
            a(f"s_setprio {o.prioGhi}\ns_mov_b64 exec, 0xff\nv_cmp_ne_u32 vcc, s{sE}, v{self.vPK}\ns_mov_b64 exec, -1\ns_setprio {self.curp}")
            a(f"s_cbranch_vccnz {Ll}")
            q0, nx0, cp0 = list(vm.q), dict(nxt), self.curp
            self.stamp(10)
            for m in range(28, 36):
                self.kstep_index(m)
                self.ldB(m, vm)
            for n in range(o.nE, 36):
                if n == 28:
                    self.stamp(9)
                step(n, 99)
            a(f"s_branch {Lj}")
            a(f"{Ll}:")
            vm.q = q0; nxt.update(nx0); self.curp = cp0
            for n in range(o.nE, 36):
                step(n, 28)
            a(f"{Lj}:")
        self.stamp(11)
        if not o.fastred:
            self.red_addr()
            a("s_nop 1")
        else:
            a("s_nop 7\ns_nop 0")
        for u in ((1, 3, 2) if o.fastred else (1, 2, 3)):
            for q in range(4):
                a(f"ds_write_b128 v16, {vr(gC+16*u+4*q,4)} offset:{(u-1)*4096+q*1024}")
        if not o.fastred:
            a(f"v_lshrrev_b32 v20, 5, v1\nv_lshl_add_u32 v20, v20, 3, v{self.dXA}")
        a("s_waitcnt lgkmcnt(0)")
        a(f"ds_write_b32 v{self.gMY}, v{21 if o.fastred else self.gTMP}")
        self.spin_lds(self.gFL, self.gTMP, f"v_cmp_gt_u32 vcc, 18, v{self.gTMP}")
        for u in range(1, 4):
            for q in range(4):
                a(f"ds_read_b128 {vr(gC+16*u+4*q,4)}, v{16+u} offset:{q*1024}")
        for u in range(1, 4):
            a(f"s_waitcnt lgkmcnt({4*(3-u)})")
            for i in range(8):
                a(f"v_pk_add_f32 {vr(gC+2*i,2)}, {vr(gC+2*i,2)}, {vr(gC+16*u+2*i,2)}")
        for i in range(8):
            a(f"v_cvt_pk_bf16_f32 v{gP+i}, v{gC+2*i}, v{gC+2*i+1}")
        a("s_nop 0")
        for k in (0, 4):
            a(f"v_permlane32_swap_b32 v{gP+k}, v{gP+k+2}\nv_permlane32_swap_b32 v{gP+k+1}, v{gP+k+3}")
        a(f"buffer_store_dwordx4 {vr(gP,4)}, v20, {srd(R_OUT)}, s{sOUT} offen {o.ost}")
        a(f"buffer_store_dwordx4 {vr(gP+4,4)}, v20, {srd(R_OUT)}, s{sOUT} offen offset:32 {o.ost}")
        self.stamp(12)
        if o.ts:
            a("s_waitcnt vmcnt(0)")
            self.stamp(13)
        self.stamp_flush()
        a("s_endpgm")

    def build(self):
        a = self.a
        self.prologue()
        self.a_main()
        self.g_early()
        self.g_main()
        self.a_slow()
        a("L_end:")
        a("s_endpgm")
        a("L_code_end:")
        return a


HEADER = """; Fused LayerNorm + MQA attention + SwiGLU FFN, one persistent launch (256 workgroups x 8 waves).
; @launch grid=(256,1,1) block=(512,1,1) lds={lds}
.amdgcn_target "amdgcn-amd-amdhsa--gfx950"
.text
.globl {name}
.p2align 8
.type {name},@function
{name}:
"""
FOOTER = """.section .rodata,"a"
.p2align 6
.amdhsa_kernel {name}
  .amdhsa_next_free_vgpr 256
  .amdhsa_next_free_sgpr 102
  .amdhsa_accum_offset 256
  .amdhsa_group_segment_fixed_size 0
  .amdhsa_kernarg_size 96
  .amdhsa_user_sgpr_count 2
  .amdhsa_user_sgpr_kernarg_segment_ptr 1
  .amdhsa_system_sgpr_workgroup_id_x 1
.end_amdhsa_kernel
"""

def generate(check=True, **kw):
    g = Gen(**kw)
    a = g.build()
    if check:
        errs = check_hazards(a.lines) + check_waits(a.lines)
        for e in errs[:6]:
            print(e, file=sys.stderr)
        if errs:
            print(f"{len(errs)} problems", file=sys.stderr)
    return HEADER.format(name=NAME, lds=LDS_SIZE) + a.text() + FOOTER.format(name=NAME)

if __name__ == "__main__":
    out = "parallel_sum__grouped_kv_mqa__glu_gated_swiglu__prompt.s"
    kw = {}
    args = sys.argv[1:]
    i = 0
    while i < len(args):
        x = args[i]
        if x == "-o":
            out = args[i + 1]; i += 2
        elif "=" in x:
            k, v = x.split("=", 1)
            try:
                v = int(v)
            except ValueError:
                pass
            kw[k] = v; i += 1
        else:
            kw[x.lstrip("-")] = True; i += 1
    txt = generate(**kw)
    open(out, "w").write(txt)
    print("wrote", out, len(txt), "bytes", kw)
```

```python
import sys, struct, argparse
from asmlib import Asm, Vm, Lg, waitcnt, check_hazards, check_waits

NAME = "parallel_sum__grouped_kv_mqa__glu_gated_swiglu__prompt_kernel"

def f2u(x):
    return struct.unpack("<I", struct.pack("<f", x))[0]

FL = 0x0
F0 = 0x1000
XT = 0xA000
FH = 0x10000
FO = 0x30000
FX = 0x50000
TS = 0x60000
XN = 0x100000
KF = 0x300000
VF = 0x310000
OF = 0x400000
HF = 0x600000
WS_SIZE = 0x1000000
RING = 0
WQI = 65536
WKV = 98304
XROW = 131072
PITCH = 1040
QX = 140288
LFL = 148480
L_GCNT, L_QMAX, L_KMAX, L_MFL, L_WQF, L_VFL, L_PUB, L_GATE, L_ADONE, L_ASTART, L_ROW, L_STG, L_R0, L_XI = 0, 16, 32, 48, 64, 80, 88, 96, 112, 128, 144, 160, 176, 192
LDS_SIZE = 163840
RB0 = 65536

R_X, R_WS, R_WQ, R_WK, R_WV, R_W1, R_W3, R_W2, R_WO, R_OUT = [4 * i + 4 for i in range(10)]
sW, sG, sJ, sP, sE = 44, 45, 46, 47, 48
sMASK = 49
sT0, sT1, sT2, sT3, sT4, sT5 = 50, 51, 52, 53, 54, 55
sCNT = 56
sX8, sI = 57, 58
sROT = 59
sXM = 60
sNL2 = 62
sONE = 64
sQS = 66
sBASE, sW4096 = 68, 69
sH0, sH1, sO0, sO1 = 70, 71, 72, 73
sW2, sWO, sRB, sOUT = 74, 75, 76, 77
sK, sWA = 78, 79
sPC = 80
sTS = 84
sPCX = 98
sIDX, sKB, sFH = 3, 100, 101
sRX, sRY, sNN, sKS = 0, 1, 2, 80
sHS, sXB, sFXA = 81, 82, 83

def srd(r):
    return f"s[{r}:{r+3}]"
def vr(a, n):
    return f"v[{a}:{a+n-1}]" if n > 1 else f"v{a}"

LOG2E = 1.4426950408889634
THRESH2 = 60.0 * 60.0
SPIN_G = 200000
SPIN_L = 2000000


class Gen:
    def __init__(self, **o):
        d = dict(ts=False, slow=False, prioA=1, prioG=0, prioGhi=2, code_pf=1, rotup=1, rot=1, n0=-1, asleep=0,
                 xnt="nt", wq_at="pub", ring01="none", gtrace=False, only="", dbg=False, amap=2, lnfast=1, peel=1, kvlate=0, astart=1, atouch=0, xoff=1, trace=0, LD=3, fill=1, p0=13, t0=0, t1=1, tx=1, tnt='', vpos=2, kpos=1, hiup=0, hidown=0, probe=-1, pw=0, pm=20, ost='', direct=0, ringat='stg', sdepth=4, aprio0=3, wqw=0, gate_at=0, dlate=1, gprio0=1, hack='', nxor=0, txor=0, tk=1, pfshare=32, vt=4, deep=-1, pk1=4, skiplast=0, dstep=2, w2pre='8x4+12x2+13x2', hpre=0, LDW=8, dtrace=0, batch=0, nP=28, fastred=1, mprio=0, lastprio=0, nE=0, twq=0, gs=0, dup=0, dupf='', r0at=-1, wqlate=1, nosleep=1, dyn=1, jit=0, rotmode=1, f0s=5, kvfirst=3, boost=0, boostd=0, nopk=0, xmid=-1)
        d.update(o)
        if d["direct"]:
            for k, v in dict(amap=2, kvlate=0, astart=0).items():
                if k not in o:
                    d[k] = v
        self.o = type("O", (), d)
        self.a = Asm()
        self.uid = 0

    def lab(self, s):
        self.uid += 1
        return f"L_{s}_{self.uid}"

    def jitter(self):
        if not self.o.jit:
            return
        a = self.a
        self.uid += 1
        L, Lx = f"L_jit_{self.uid}", f"L_jitx_{self.uid}"
        k = (self.uid * 2654435761 + self.o.jit * 40503) & 0x7fffffff
        a(f"s_lshl3_add_u32 s98, s{sP}, s{sW}\ns_add_u32 s98, s98, {k & 0xffff}\ns_mul_i32 s98, s98, 0x9E3779B1\ns_lshr_b32 s98, s98, 26")
        a(f"s_cmp_lt_u32 s98, 40\ns_cbranch_scc1 {Lx}\ns_sub_u32 s98, s98, 39")
        a(f"{L}:\ns_sleep {8 + (k >> 16) % 24}\ns_sub_u32 s98, s98, 1\ns_cmp_lg_u32 s98, 0\ns_cbranch_scc1 {L}\n{Lx}:")

    def stamp(self, i):
        self.jitter()
        self._stamp(i)

    def _stamp(self, i):
        if self.o.ts:
            self.a(f"s_memrealtime s[{sPCX}:{sPCX+1}]\ns_waitcnt lgkmcnt(0)\ns_mov_b32 s{sTS+i}, s{sPCX}")

    def trace_pt(self, vm, idx, dyn=None):
        if not self.o.trace or (vm is not None and self.o.trace == 2):
            return
        a = self.a
        a(f"s_memrealtime s[{sPCX}:{sPCX+1}]\ns_memtime s[{sTS+10}:{sTS+11}]\ns_waitcnt lgkmcnt(0)")
        a(f"s_lshl3_add_u32 s{sTS+12}, s{sP}, s{sW}\ns_lshl_b32 s{sTS+12}, s{sTS+12}, 6\ns_add_u32 s{sTS+12}, s{sTS+12}, {idx}")
        if dyn is not None:
            a(f"s_add_u32 s{sTS+12}, s{sTS+12}, s{dyn}")
        a(f"s_lshl_b32 s{sTS+12}, s{sTS+12}, 3\ns_add_u32 s{sTS+12}, s{sTS+12}, {0xE00000}")
        a(f"s_mov_b64 exec, 1\nv_mov_b32 v{self.trv}, s{sPCX}\nv_mov_b32 v{self.trv+1}, s{sTS+10}\nv_mov_b32 v{self.trv+2}, 0")
        a(f"buffer_store_dwordx2 v[{self.trv}:{self.trv+1}], v{self.trv+2}, {srd(R_WS)}, s{sTS+12} offen\ns_mov_b64 exec, -1")
        if vm is not None:
            vm.issue("trace")

    def stamp_flush(self):
        if not self.o.ts:
            return
        a = self.a
        if self.o.probe >= 0:
            L, Lx = self.lab("probe"), self.lab("probex")
            a(f"s_lshl3_add_u32 s{sT0}, s{sP}, s{sW}\ns_cmp_lg_u32 s{sT0}, {100*8 + self.o.pw}\ns_cbranch_scc1 {Lx}")
            a(f"s_sub_u32 s{sT1}, s{sTS+self.o.probe}, s{sTS}\ns_mul_i32 s{sT1}, s{sT1}, {self.o.pm}")
            a(f"s_memrealtime s[{sPCX}:{sPCX+1}]\ns_waitcnt lgkmcnt(0)\ns_mov_b32 s{sT2}, s{sPCX}")
            a(f"{L}:\ns_memrealtime s[{sPCX}:{sPCX+1}]\ns_waitcnt lgkmcnt(0)\ns_sub_u32 s{sT3}, s{sPCX}, s{sT2}\ns_cmp_lt_u32 s{sT3}, s{sT1}\ns_cbranch_scc1 {L}")
            a(f"{Lx}:")
            return
        a(f"s_lshl_b32 s{sT0}, s{sP}, 3\ns_add_u32 s{sT0}, s{sT0}, s{sW}\ns_lshl_b32 s{sT0}, s{sT0}, 6\ns_add_u32 s{sT0}, s{sT0}, {TS}")
        a("s_mov_b64 exec, 1")
        a("v_mov_b32 v2, 0")
        for i in range(16):
            a(f"v_mov_b32 v3, s{sTS+i}")
            a(f"buffer_store_dword v3, v2, {srd(R_WS)}, s{sT0} offen offset:{4*i}")
        a("s_waitcnt vmcnt(0)")

    def reduce64(self, op, v, t):
        a = self.a
        for ctl in ("quad_perm:[1,0,3,2]", "quad_perm:[2,3,0,1]", "row_half_mirror", "row_mirror"):
            a("s_nop 1")
            a(f"{op}_dpp v{v}, v{v}, v{v} {ctl} row_mask:0xf bank_mask:0xf")
        for sw in ("v_permlane16_swap_b32", "v_permlane32_swap_b32"):
            a(f"v_mov_b32 v{t}, v{v}")
            a("s_nop 1")
            a(f"{sw} v{v}, v{t}")
            a(f"{op} v{v}, v{v}, v{t}")

    def reduce64x2(self, v0, t0, v1, t1):
        a = self.a
        a("s_nop 1")
        for ctl in ("quad_perm:[1,0,3,2]", "quad_perm:[2,3,0,1]", "row_half_mirror", "row_mirror"):
            a(f"v_add_f32_dpp v{v0}, v{v0}, v{v0} {ctl} row_mask:0xf bank_mask:0xf")
            a(f"v_add_f32_dpp v{v1}, v{v1}, v{v1} {ctl} row_mask:0xf bank_mask:0xf")
            a("s_nop 0")
        for sw in ("v_permlane16_swap_b32", "v_permlane32_swap_b32"):
            a(f"v_mov_b32 v{t0}, v{v0}\nv_mov_b32 v{t1}, v{v1}\ns_nop 0")
            a(f"{sw} v{v0}, v{t0}\n{sw} v{v1}, v{t1}")
            a(f"v_add_f32 v{v0}, v{v0}, v{t0}\nv_add_f32 v{v1}, v{v1}, v{t1}")

    def poll_global(self, vaddr, soff, vdst, ndw, vm, lanes=64, sleep=0, word=0, first_issued=None):
        a = self.a
        L, Lo, Lc = self.lab("poll"), self.lab("pollx"), self.lab("pollc")
        ld = "buffer_load_dword" if ndw == 1 else "buffer_load_dwordx2"
        if first_issued is not None:
            vm.wait(first_issued)
        a(f"s_mov_b32 s{sCNT}, 0")
        if lanes < 64:
            a(f"s_mov_b64 exec, {(1 << lanes) - 1:#x}")
        if first_issued is not None:
            a(f"v_cmp_ne_u32 vcc, s{sE}, v{vdst+word}")
            a(f"s_cbranch_vccz {Lo}")
        elif sleep:
            a(f"s_branch {Lc}")
        a(f"{L}:")
        if sleep:
            a(f"s_sleep {sleep}")
            a(f"{Lc}:")
        a(f"{ld} {vr(vdst, ndw)}, v{vaddr}, {srd(R_WS)}, {soff} offen sc1")
        a(f"s_add_u32 s{sCNT}, s{sCNT}, 1")
        a("s_waitcnt vmcnt(0)")
        a(f"v_cmp_ne_u32 vcc, s{sE}, v{vdst+word}")
        a(f"s_cmp_gt_u32 s{sCNT}, {SPIN_G}")
        a(f"s_cbranch_scc1 {Lo}")
        a(f"s_cbranch_vccnz {L}")
        a(f"{Lo}:")
        if lanes < 64:
            a("s_mov_b64 exec, -1")
        if first_issued is None:
            vm.q = []

    def peek_global(self, vaddr, soff, vdst, ndw, vm, tag, lanes):
        a = self.a
        ld = "buffer_load_dword" if ndw == 1 else "buffer_load_dwordx2"
        a(f"s_mov_b64 exec, {(1 << lanes) - 1:#x}")
        a(f"{ld} {vr(vdst, ndw)}, v{vaddr}, {srd(R_WS)}, {soff} offen sc1")
        a("s_mov_b64 exec, -1")
        vm.issue(tag)

    def spin_lds(self, vaddr, vdst, cmp, sleep=0, off=0, peeked=False):
        a = self.a
        L, Lo = self.lab("spin"), self.lab("spinx")
        o = f" offset:{off}" if off else ""
        a(f"s_mov_b32 s{sCNT}, 0")
        if peeked:
            a(cmp)
            a(f"s_cbranch_vccz {Lo}")
        a(f"{L}:")
        if sleep and not self.o.nosleep:
            a(f"s_sleep {sleep}")
        a(f"ds_read_b32 v{vdst}, v{vaddr}{o}")
        a(f"s_add_u32 s{sCNT}, s{sCNT}, 1")
        a("s_waitcnt lgkmcnt(0)")
        a(cmp)
        a(f"s_cmp_gt_u32 s{sCNT}, {SPIN_L}")
        a(f"s_cbranch_scc1 {Lo}")
        a(f"s_cbranch_vccnz {L}")
        a(f"{Lo}:")

    def flag_store(self, vdata, ndw, vzero, soff, off=0):
        a = self.a
        st = "buffer_store_dword" if ndw == 1 else "buffer_store_dwordx2"
        o = f" offset:{off}" if off else ""
        a("s_mov_b64 exec, 1")
        a(f"{st} {vr(vdata, ndw)}, v{vzero}, {srd(R_WS)}, {soff} offen{o} sc1")
        a("s_mov_b64 exec, -1")

    def prologue(self):
        a, o = self.a, self.o
        a("s_cmp_ge_u32 s2, 256")
        a("s_cbranch_scc1 L_end")
        if o.ts:
            a(f"s_memrealtime s[{sPCX}:{sPCX+1}]")
        for r, off in ((R_X, 0), (R_WK, 16), (R_WV, 24), (R_WS, 88), (R_WQ, 8), (R_W1, 48), (R_W3, 56), (R_W2, 64), (R_WO, 32), (R_OUT, 72)):
            a(f"s_load_dwordx2 s[{r}:{r+1}], s[0:1], {off}")
        a(f"s_getpc_b64 s[{sPC}:{sPC+1}]")
        a("L_pc:")
        a("v_lshrrev_b32 v3, 6, v0")
        a("v_and_b32 v1, 63, v0")
        a(f"v_readfirstlane_b32 s{sW}, v3")
        a("v_lshlrev_b32 v2, 4, v1")
        a(f"s_and_b32 s{sX8}, s2, 7\ns_lshr_b32 s{sI}, s2, 3")
        if o.dyn:
            assert not o.direct and o.wq_at == "pub"
            a(f"s_mov_b32 s{sP}, s2\ns_and_b32 s{sJ}, s2, 15")
        else:
            self.slot_ids()
        for r, size in ((R_X, 2097152), (R_WK, 16384), (R_WV, 16384), (R_WS, WS_SIZE), (R_WQ, 524288), (R_W1, 1835008),
                        (R_W3, 1835008), (R_W2, 1835008), (R_WO, 524288), (R_OUT, 2097152)):
            a(f"s_mov_b32 s{r+2}, {size}\ns_mov_b32 s{r+3}, 0x20000")
        a(f"s_lshl3_add_u32 s{sT0}, s{sP}, s{sW}\ns_lshl_b32 s{sT0}, s{sT0}, 10")
        a(f"s_mov_b32 s{sMASK}, 0xffff0000")
        a("s_waitcnt lgkmcnt(0)")
        if o.ts:
            a(f"s_mov_b32 s{sTS}, s{sPCX}")
            for i in range(1, 14):
                a(f"s_mov_b32 s{sTS+i}, 0")
        if o.direct:
            return self.prologue_direct()
        a(f"buffer_load_dwordx4 v[64:67], v2, {srd(R_X)}, s{sT0} offen {o.xnt}")
        a(f"s_load_dword s{sE}, s[{R_WS}:{R_WS+1}], {FL}")
        for r in (3, 4, 5, 6, 7, 8, 9, 17):
            a(f"v_mov_b32 v{r}, 0")
        a(f"s_cmp_lt_u32 s{sW}, 4")
        a("s_cbranch_scc1 L_g_early")
        self.a_early()
        a("L_ln:")
        self.stamp(1)
        self.layernorm()
        a(f"s_cmp_lt_u32 s{sW}, 4")
        a("s_cbranch_scc1 L_g_bar1")
        a("s_waitcnt vmcnt(0)")
        a("s_barrier")
        self.stamp(2)
        a(f"s_cmp_ge_u32 s{sW}, 6")
        a("s_cbranch_scc1 L_xn_store")
        self.kv_proj()
        if o.ring01 == "apub":
            self.a_ring0()
        if o.dyn:
            a("L_a_slot:")
            self.get_slot(12, 13)
            a("s_branch L_a_main")
        a("L_xn_store:")
        self.xn_store()

    def slot_ids(self):
        a, o = self.a, self.o
        if o.amap == 8:
            a(f"s_and_b32 s{sT0}, s{sX8}, 1\ns_and_b32 s{sT1}, s{sI}, 7\ns_lshl3_add_u32 s{sG}, s{sT0}, s{sT1}")
            a(f"s_lshr_b32 s{sT0}, s{sX8}, 1\ns_lshr_b32 s{sT1}, s{sI}, 3\ns_lshl2_add_u32 s{sJ}, s{sT0}, s{sT1}")
        elif o.amap == 4:
            a(f"s_and_b32 s{sT0}, s{sX8}, 3\ns_and_b32 s{sT1}, s{sI}, 3\ns_lshl2_add_u32 s{sG}, s{sT0}, s{sT1}")
            a(f"s_lshr_b32 s{sT0}, s{sX8}, 2\ns_lshr_b32 s{sT1}, s{sI}, 2\ns_lshl3_add_u32 s{sJ}, s{sT0}, s{sT1}")
        else:
            a(f"s_lshr_b32 s{sT1}, s{sI}, 4\ns_lshl1_add_u32 s{sG}, s{sX8}, s{sT1}\ns_and_b32 s{sJ}, s{sI}, 15")
        a(f"s_lshl4_add_u32 s{sP}, s{sG}, s{sJ}")

    def get_slot(self, vaddr, vtmp):
        a = self.a
        a(f"v_mov_b32 v{vaddr}, {LFL+L_XI}")
        self.spin_lds(vaddr, vtmp, f"v_cmp_eq_u32 vcc, 0, v{vtmp}")
        a(f"v_readfirstlane_b32 s{sI}, v{vtmp}")
        a(f"s_and_b32 s{sX8}, s{sI}, 7\ns_bfe_u32 s{sI}, s{sI}, 0x50003")
        self.slot_ids()

    def make_slot(self, vm):
        a = self.a
        B4, B2, B1, X, I, N, V, T, U, C0 = 62, 63, 64, 65, 66, 67, 68, 69, 70, 71
        a(f"s_mov_b32 s{sT3}, {XT}")
        self.poll_global(16, f"s{sT3}", self.vPK, 2, vm, lanes=9, first_issued="xt")
        a(f"v_readlane_b32 s{C0}, v{self.vPK+1}, 0")
        a(f"s_mov_b32 s{B4}, 0\ns_mov_b32 s{B2}, 0\ns_mov_b32 s{B1}, 0\ns_mov_b32 s{X}, 0\ns_mov_b32 s{I}, 0\ns_mov_b32 s{N}, 0")
        for k in range(8):
            a(f"v_readlane_b32 s{V}, v{self.vPK+1}, {k+1}")
            a(f"s_sub_u32 s{V}, s{V}, s{C0}\ns_and_b32 s{V}, s{V}, 7")
            a(f"s_bitcmp1_b32 s2, {k}\ns_cselect_b32 s{T}, s{V}, 0\ns_xor_b32 s{X}, s{X}, s{T}")
            if k >= 6:
                continue
            for e in (B4, B2, B1):
                a(f"s_xor_b32 s{T}, s{V}, s{e}\ns_min_u32 s{V}, s{V}, s{T}")
            a(f"s_cmp_ge_u32 s{V}, 4\ns_cselect_b32 s{B4}, s{V}, s{B4}")
            a(f"s_lshr_b32 s{T}, s{V}, 1\ns_cmp_eq_u32 s{T}, 1\ns_cselect_b32 s{B2}, s{V}, s{B2}")
            a(f"s_cmp_eq_u32 s{V}, 1\ns_cselect_b32 s{B1}, 1, s{B1}")
            a(f"s_cmp_eq_u32 s{V}, 0\ns_cselect_b32 s{T}, 1, 0")
            a(f"s_lshr_b32 s{U}, s2, {k}\ns_and_b32 s{U}, s{U}, s{T}\ns_lshl_b32 s{U}, s{U}, s{N}\ns_or_b32 s{I}, s{I}, s{U}\ns_add_u32 s{N}, s{N}, s{T}")
        a(f"s_lshr_b32 s{T}, s2, 6\ns_lshl3_add_u32 s{I}, s{T}, s{I}\ns_lshl3_add_u32 s{X}, s{I}, s{X}")
        a(f"s_cmp_eq_u32 s{N}, 3\ns_cselect_b32 s{X}, s{X}, s2\ns_or_b32 s{X}, s{X}, 0x100")
        a(f"v_mov_b32 v19, s{X}\nv_mov_b32 v18, {LFL+L_XI}")
        a("ds_write_b32 v18, v19")

    def prologue_direct(self):
        a, o = self.a, self.o
        for r in (3, 4, 5, 6, 7, 8, 9, 17):
            a(f"v_mov_b32 v{r}, 0")
        a(f"s_cmp_lt_u32 s{sW}, 4")
        a("s_cbranch_scc1 L_g_early")
        a(f"s_setprio {o.aprio0}")
        a(f"s_sub_u32 s{sWA}, s{sW}, 4\ns_lshl2_add_u32 s{sT0}, s{sP}, s{sWA}\ns_lshl_b32 s{sT0}, s{sT0}, 11")
        a(f"buffer_load_dwordx4 v[64:67], v2, {srd(R_X)}, s{sT0} offen")
        a(f"buffer_load_dwordx4 v[96:99], v2, {srd(R_X)}, s{sT0} offen offset:1024")
        a(f"s_load_dword s{sE}, s[{R_WS}:{R_WS+1}], {FL}")
        self.a_early()
        self.stamp(1)
        self.layernorm2()
        a("v_mov_b32 v10, 1")
        a(f"s_lshl_b32 s{sT0}, s{sWA}, 2\ns_add_u32 s{sT0}, s{sT0}, {LFL}\nv_mov_b32 v11, s{sT0}")
        a(f"v_and_b32 v12, 3, v1\nv_lshlrev_b32 v12, 2, v12\nv_add_u32 v12, {LFL+L_ROW}, v12")
        a("s_waitcnt vmcnt(0) lgkmcnt(0)")
        a(f"ds_write_b32 v11, v10 offset:{L_ROW}")
        a(f"s_cmp_ge_u32 s{sW}, 6")
        a("s_cbranch_scc1 L_xn_store")
        self.spin_lds(12, 13, "v_cmp_gt_u32 vcc, 1, v13")
        self.stamp(2)
        self.kv_proj()
        a("L_xn_store:")
        self.wq_by_a()

    def wq_by_a(self):
        a, o = self.a, self.o
        a(f"v_mov_b32 v10, 1\ns_lshl_b32 s{sT0}, s{sWA}, 2\ns_add_u32 s{sT0}, s{sT0}, {LFL}\nv_mov_b32 v11, s{sT0}")
        if o.wqw:
            a(f"v_mov_b32 v12, {LFL+L_VFL}")
            self.spin_lds(12, 13, "v_cmp_gt_u32 vcc, 1, v13", sleep=1)
        a("v_lshrrev_b32 v18, 2, v1\nv_lshlrev_b32 v18, 10, v18\nv_and_b32 v19, 3, v1\nv_lshl_add_u32 v17, v19, 4, v18")
        a(f"s_lshl_b32 s{sT4}, s{sJ}, 6\ns_and_b32 s{sT2}, s{sWA}, 1\ns_lshl_b32 s{sT1}, s{sT2}, 14\ns_add_u32 m0, s{sT1}, {WQI}")
        self.rot_expr(sT5)
        for n in range(16):
            if n:
                a("s_add_u32 m0, m0, 1024")
            if n & 3 == 0:
                a(f"s_lshl2_add_u32 s{sT0}, s{sT2}, s{sT5}\ns_add_u32 s{sT0}, s{sT0}, {n>>2}\ns_and_b32 s{sT0}, s{sT0}, 7\ns_lshl_b32 s{sT0}, s{sT0}, 16\ns_add_u32 s{sT0}, s{sT0}, s{sT4}")
            else:
                a(f"s_add_u32 s{sT0}, s{sT0}, 16384")
            a(f"buffer_load_dwordx4 v17, {srd(R_WQ)}, s{sT0} offen lds")
        if o.wqlate and not o.direct:
            return
        a("s_waitcnt vmcnt(0)")
        if o.direct:
            self.stamp(3)
        a(f"ds_write_b32 v11, v10 offset:{L_WQF - 8}")

    def rot_expr(self, sd):
        a, o = self.a, self.o
        if o.rotmode == 1:
            a(f"s_and_b32 s{sd}, s{sG}, 1\ns_add_u32 s{sd}, s{sd}, s{sJ}\ns_and_b32 s{sd}, s{sd}, 7")
        elif o.rotmode == 2:
            a(f"s_and_b32 s{sd}, s{sJ}, 7")
        elif o.rotmode == 3:
            a(f"s_and_b32 s{sd}, s{sG}, 1\ns_lshl1_add_u32 s{sd}, s{sJ}, s{sd}\ns_and_b32 s{sd}, s{sd}, 7")
        elif not o.rotup:
            a(f"s_mov_b32 s{sd}, 0")
        elif o.direct:
            a(f"s_add_u32 s{sd}, s{sJ}, s{sG}\ns_and_b32 s{sd}, s{sd}, {o.rotup}")
        else:
            a(f"s_lshl1_add_u32 s{sd}, s{sJ}, s{sG}\ns_and_b32 s{sd}, s{sd}, {o.rotup}")

    def layernorm2(self):
        import re
        saved = self.a
        streams = []
        for k in range(2):
            t = Asm()
            self.a = t
            self.layernorm(row=k)
            streams.append(t.lines)
        self.a = saved
        l0, l1 = streams
        def shift(ln):
            return re.sub(r"\bv(\d+)\b|\[(\d+):(\d+)\]", lambda m: (f"v{int(m.group(1))+32}" if int(m.group(1)) >= 64 else m.group(0)) if m.group(1)
                          else (f"[{int(m.group(2))+32}:{int(m.group(3))+32}]" if int(m.group(2)) >= 64 else m.group(0)), ln)
        assert len(l0) == len(l1)
        for x, y in zip(l0, l1):
            if x.startswith("s_nop"):
                n = int(x.split()[1])
                if n >= 1 and False:
                    saved(x)
                saved("s_nop 0") if n >= 1 else None
                continue
            saved(x)
            saved(shift(y) if y.startswith(("v_", "ds_")) else y)
        saved("s_waitcnt lgkmcnt(0)")
        saved(f"s_mul_i32 s{sE}, s{sE}, 0x9E3779B1\ns_add_u32 s{sE}, s{sE}, 0x7F4A7C15")

    def layernorm(self, row=None):
        a = self.a
        X, F, D = 64, 68, 76
        sT0, sT1 = (50, 51) if not row else (52, 53)
        if row is None:
            rowaddr = f"s_mul_i32 s{sT0}, s{sW}, {PITCH}\ns_add_u32 s{sT0}, s{sT0}, {XROW}"
        else:
            rowaddr = f"s_mul_i32 s{sT0}, s{sWA}, {2*PITCH}\ns_add_u32 s{sT0}, s{sT0}, {XROW + row*PITCH}"
        for i in range(4):
            a(f"v_lshlrev_b32 v{F+2*i}, 16, v{X+i}")
            a(f"v_and_b32 v{F+2*i+1}, s{sMASK}, v{X+i}")
        if self.o.lnfast:
            a(f"v_readfirstlane_b32 s{sT1}, v{F}")
            a(rowaddr)
            for i in range(8):
                a(f"v_subrev_f32 v{D+i}, s{sT1}, v{F+i}")
            a(f"v_add_f32 v84, v{D}, v{D+1}\nv_mul_f32 v85, v{D}, v{D}\nv_add_f32 v86, v{D+2}, v{D+3}\nv_mul_f32 v87, v{D+1}, v{D+1}")
            a(f"v_add_f32 v88, v{D+4}, v{D+5}\nv_add_f32 v89, v{D+6}, v{D+7}")
            for i in range(2, 8):
                a(f"v_fmac_f32 v{85+2*(i&1)}, v{D+i}, v{D+i}")
            a("v_add_f32 v84, v84, v86\nv_add_f32 v88, v88, v89\nv_add_f32 v85, v85, v87\nv_add_f32 v84, v84, v88")
            self.reduce64x2(84, 86, 85, 87)
            a(f"v_mul_f32 v84, {f2u(1/512):#x}, v84\nv_mul_f32 v85, {f2u(1/512):#x}, v85")
            a("v_fma_f32 v85, -v84, v84, v85")
            a(f"v_add_f32 v84, s{sT1}, v84")
            a("v_max_f32 v85, 0, v85")
        else:
            a(rowaddr)
            a(f"v_add_f32 v84, v{F}, v{F+1}\nv_add_f32 v85, v{F+2}, v{F+3}\nv_add_f32 v86, v{F+4}, v{F+5}\nv_add_f32 v87, v{F+6}, v{F+7}")
            a("v_add_f32 v84, v84, v85\nv_add_f32 v86, v86, v87\nv_add_f32 v84, v84, v86")
            self.reduce64("v_add_f32", 84, 85)
            a(f"v_mul_f32 v84, {f2u(1/512):#x}, v84")
            for i in range(8):
                a(f"v_sub_f32 v{D+i}, v{F+i}, v84")
            a(f"v_mul_f32 v85, v{D}, v{D}\nv_mul_f32 v86, v{D+1}, v{D+1}")
            for i in range(2, 8):
                a(f"v_fmac_f32 v{85+(i&1)}, v{D+i}, v{D+i}")
            a("v_add_f32 v85, v85, v86")
            self.reduce64("v_add_f32", 85, 86)
            a(f"v_mul_f32 v85, {f2u(1/512):#x}, v85")
        a("v_cvt_pk_bf16_f32 v86, v84, v85")
        a(f"v_and_b32 v87, s{sMASK}, v86")
        a("v_lshlrev_b32 v86, 16, v86")
        a(f"v_add_f32 v87, {f2u(1e-5):#x}, v87")
        for i in range(2):
            a(f"v_sub_f32 v{F+i}, v{F+i}, v86")
        a("v_cvt_pk_bf16_f32 v87, v87, v87")
        a(f"v_sub_f32 v{F+2}, v{F+2}, v86")
        a("v_lshlrev_b32 v87, 16, v87")
        a(f"v_sub_f32 v{F+3}, v{F+3}, v86")
        a("v_sqrt_f32 v87, v87")
        for i in range(4, 8):
            a(f"v_sub_f32 v{F+i}, v{F+i}, v86")
        a("v_cvt_pk_bf16_f32 v87, v87, v87")
        for i in range(2):
            a(f"v_cvt_pk_bf16_f32 v{X+i}, v{F+2*i}, v{F+2*i+1}")
        a("v_lshlrev_b32 v87, 16, v87")
        a(f"v_cvt_pk_bf16_f32 v{X+2}, v{F+4}, v{F+5}")
        a("v_rcp_f32 v87, v87")
        a(f"v_cvt_pk_bf16_f32 v{X+3}, v{F+6}, v{F+7}")
        for i in range(4):
            a(f"v_lshlrev_b32 v{F+2*i}, 16, v{X+i}")
            a(f"v_and_b32 v{F+2*i+1}, s{sMASK}, v{X+i}")
        for i in range(8):
            a(f"v_mul_f32 v{F+i}, v{F+i}, v87")
        a(f"v_add_u32 v88, s{sT0}, v2")
        for i in range(4):
            a(f"v_cvt_pk_bf16_f32 v{X+i}, v{F+2*i}, v{F+2*i+1}")
        a("ds_write_b128 v88, v[64:67]")
        if row is not None:
            return
        a("s_waitcnt lgkmcnt(0)")
        a(f"s_mul_i32 s{sE}, s{sE}, 0x9E3779B1\ns_add_u32 s{sE}, s{sE}, 0x7F4A7C15")

    def kv_proj(self):
        a = self.a
        NB = 5
        def rd(s):
            b = 64 + 8 * (s % NB)
            a(f"ds_read_b128 {vr(b,4)}, v3 offset:{64*s}")
            a(f"ds_read_b64_tr_b16 {vr(b+4,2)}, v4 offset:{1024*s}")
            a(f"ds_read_b64_tr_b16 {vr(b+6,2)}, v4 offset:{1024*s+128}")
        for s in range(NB):
            rd(s)
        a(f"s_cmp_eq_u32 s{sW}, 5")
        a("s_cbranch_scc1 L_vproj")
        for var in ("K", "V"):
            if var == "V":
                a("L_vproj:")
            for s in range(16):
                left = min(NB - 1, 15 - s)
                a(f"s_waitcnt lgkmcnt({3*left})")
                b = 64 + 8 * (s % NB)
                X, Wf = vr(b, 4), vr(b + 4, 4)
                c = "0" if s == 0 else "v[112:115]"
                if var == "K":
                    a(f"v_mfma_f32_16x16x32_bf16 v[112:115], {Wf}, {X}, {c}")
                else:
                    a(f"v_mfma_f32_16x16x32_bf16 v[112:115], {X}, {Wf}, {c}")
                if s + NB < 16:
                    rd(s + NB)
            a(f"s_lshr_b32 s{sT0}, s{sP}, 2\ns_lshl_b32 s{sT0}, s{sT0}, 10\ns_and_b32 s{sT1}, s{sJ}, 3")
            if var == "K":
                a(f"s_lshl_b32 s{sT1}, s{sT1}, 7\ns_add_u32 s{sT0}, s{sT0}, s{sT1}\ns_add_u32 s{sT0}, s{sT0}, {KF}")
                a(f"s_mov_b32 s{sT2}, 0x00ff00ff\ns_mov_b32 s{sT3}, 0x00ff00ff")
                a("s_nop 0")
                a("v_cvt_pk_bf16_f32 v8, v112, v113\nv_cvt_pk_bf16_f32 v9, v114, v115")
                a(f"s_mov_b64 exec, s[{sT2}:{sT3}]")
                a(f"buffer_store_dwordx2 v[8:9], v5, {srd(R_WS)}, s{sT0} offen sc1")
                a("s_mov_b64 exec, -1")
                a("v_mul_f32 v11, v112, v112\nv_fmac_f32 v11, v113, v113\nv_fmac_f32 v11, v114, v114\nv_fmac_f32 v11, v115, v115")
                for sw in ("v_permlane16_swap_b32", "v_permlane32_swap_b32"):
                    a(f"v_mov_b32 v12, v11\ns_nop 1\n{sw} v11, v12\nv_add_f32 v11, v11, v12")
                a("v_and_b32 v11, 0x7fffffff, v11")
                for ctl in ("quad_perm:[1,0,3,2]", "quad_perm:[2,3,0,1]", "row_half_mirror"):
                    a(f"s_nop 1\nv_max_u32_dpp v11, v11, v11 {ctl} row_mask:0xf bank_mask:0xf")
                a(f"s_lshl_b32 s{sT0}, s{sP}, {self.o.f0s}\ns_add_u32 s{sT0}, s{sT0}, {F0}")
                a(f"v_mov_b32 v10, s{sE}\nv_mov_b32 v13, 0")
                self.spin_lds(7, 12, "v_cmp_gt_u32 vcc, 1, v12")
                a("s_waitcnt vmcnt(0)")
                self.stamp(3)
                self.flag_store(10, 2, 13, f"s{sT0}")
                a("s_branch L_a_ring0" if self.o.ring01 == "apub" else ("s_branch L_a_slot" if self.o.dyn else "s_branch L_a_main"))
            else:
                a(f"s_lshl_b32 s{sT1}, s{sT1}, 8\ns_add_u32 s{sT0}, s{sT0}, s{sT1}\ns_add_u32 s{sT0}, s{sT0}, {VF}")
                a("s_nop 2")
                a("v_cvt_pk_bf16_f32 v8, v112, v113\nv_cvt_pk_bf16_f32 v9, v114, v115")
                a("s_mov_b32 exec_hi, 0")
                a(f"buffer_store_dwordx2 v[8:9], v6, {srd(R_WS)}, s{sT0} offen sc1")
                a("s_mov_b64 exec, -1")
                a("v_mov_b32 v8, 1")
                a("s_waitcnt vmcnt(0)")
                self.stamp(3)
                a("ds_write_b32 v7, v8")
                a("s_branch L_a_ring0" if self.o.ring01 == "apub" else ("s_branch L_a_slot" if self.o.dyn else "s_branch L_a_main"))

    def a_ring0(self):
        a, o = self.a, self.o
        a("L_a_ring0:")
        a("v_bfe_u32 v20, v1, 1, 2\nv_bfe_u32 v21, v1, 4, 1\nv_xor_b32 v20, v20, v21")
        a("v_lshrrev_b32 v22, 3, v1\nv_mul_u32_u24 v23, 3584, v22\nv_and_b32 v24, 1, v1\nv_lshl_add_u32 v23, v24, 4, v23")
        a("v_lshl_add_u32 v18, v20, 5, v23\nv_xor_b32 v24, 2, v20\nv_lshl_add_u32 v19, v24, 5, v23")
        self.rot_expr(sT5)
        a(f"s_mul_i32 s{sT2}, s{sJ}, 224\ns_mul_i32 s{sT3}, s{sWA}, {32*3584}\ns_add_u32 s{sT2}, s{sT2}, s{sT3}\ns_lshl_b32 s{sT4}, s{sWA}, 13")
        for b in range(o.fill):
            a(f"s_add_u32 s{sT0}, s{sT5}, {b}\ns_and_b32 s{sT0}, s{sT0}, 7\ns_mul_i32 s{sT0}, s{sT0}, {64*3584}\ns_add_u32 s{sT0}, s{sT0}, s{sT2}")
            for u in range(2):
                a(f"s_add_u32 m0, s{sT4}, {b*16384 + u*4096}")
                a(f"s_add_u32 s{sT1}, s{sT0}, {8*3584 - 1024}")
                a(f"buffer_load_dwordx4 v18, {srd(R_W1)}, s{sT0} offen lds")
                a(f"buffer_load_dwordx4 v18, {srd(R_W1)}, s{sT1} offen offset:1024 lds")
                a("s_add_u32 m0, m0, 2048\ns_nop 0")
                a(f"buffer_load_dwordx4 v19, {srd(R_W3)}, s{sT0} offen lds")
                a(f"buffer_load_dwordx4 v19, {srd(R_W3)}, s{sT1} offen offset:1024 lds")
                if u == 0:
                    a(f"s_add_u32 s{sT0}, s{sT0}, {16*3584}")
        a("s_branch L_a_main")

    def xn_store(self):
        a = self.a
        for n in range(4):
            a(f"ds_read_b128 {vr(64+4*n,4)}, v8 offset:{128*n}")
        a(f"s_sub_u32 s{sT1}, s{sW}, 6\ns_lshr_b32 s{sT0}, s{sP}, 2\ns_lshl_b32 s{sT0}, s{sT0}, 15\ns_lshl_b32 s{sT2}, s{sT1}, 14\ns_add_u32 s{sT0}, s{sT0}, s{sT2}")
        a(f"s_and_b32 s{sT2}, s{sJ}, 3\ns_lshl_b32 s{sT2}, s{sT2}, 7\ns_add_u32 s{sT0}, s{sT0}, s{sT2}\ns_add_u32 s{sT0}, s{sT0}, {XN}")
        for n in range(4):
            a(f"s_waitcnt lgkmcnt({3-n})")
            a(f"buffer_store_dwordx4 {vr(64+4*n,4)}, v9, {srd(R_WS)}, s{sT0} offen sc1")
            if self.o.dup & 1:
                a(f"buffer_store_dwordx4 {vr(64+4*n,4)}, v9, {srd(R_WS)}, s{sT0} offen {self.o.dupf}")
            if n < 3:
                a(f"s_add_u32 s{sT0}, s{sT0}, 4096")
        a(f"s_lshl1_add_u32 s{sT0}, s{sP}, s{sT1}\ns_lshl_b32 s{sT0}, s{sT0}, 7\ns_add_u32 s{sT0}, s{sT0}, {FX}")
        a(f"s_lshl_b32 s{sT1}, s{sT1}, 2\ns_add_u32 s{sT1}, s{sT1}, {LFL+L_PUB}")
        a(f"v_mov_b32 v4, s{sE}\nv_mov_b32 v3, 0\nv_mov_b32 v5, s{sT1}\nv_mov_b32 v6, 1")
        a("s_waitcnt vmcnt(0)")
        self.stamp(3)
        self.flag_store(4, 1, 3, f"s{sT0}")
        a("ds_write_b32 v5, v6")
        if self.o.dyn:
            self.get_slot(12, 13)
        if self.o.wq_at == "pub":
            self.wq_by_a()

    aK = (28, 40, 52)
    aV = (32, 44, 56)
    aIDX, aOV = 27, 26
    aS = (64, 80)
    aQ = 96
    aO = 128
    aWR, aWL, aRR, aRL, aGF, aMF = 20, 23, 18, 19, 16, 17

    def a_early(self):
        a = self.a
        aV, aO = self.aV, self.aO
        if not self.o.direct:
            a(f"s_sub_u32 s{sWA}, s{sW}, 4")
        a(f"s_lshl_b32 s{sT0}, s{sWA}, 12")
        a(f"s_add_u32 m0, s{sT0}, {WKV}")
        a("s_nop 0")
        for n in range(4):
            a(f"buffer_load_dwordx4 v2, {srd(R_WK)}, s{sT0} offen offset:{1024*n} lds")
        a(f"s_add_u32 m0, s{sT0}, {WKV+16384}")
        a("s_nop 0")
        for n in range(4):
            a(f"buffer_load_dwordx4 v2, {srd(R_WV)}, s{sT0} offen offset:{1024*n} lds")
        a("v_add_u32 v11, -4, v1\nv_cmp_gt_u32 vcc, 8, v11")
        a(f"v_lshlrev_b32 v10, 2, v1\nv_add_u32 v10, {LFL}, v10")
        a("v_cndmask_b32 v11, 0, -1, vcc")
        a("ds_write_b32 v10, v11")
        a("v_and_b32 v3, 7, v1\nv_lshrrev_b32 v10, 4, v1")
        a(f"v_mul_u32_u24 v11, {PITCH}, v3\nv_lshl_add_u32 v12, v10, 4, v11")
        a("v_and_b32 v13, 15, v1\nv_lshlrev_b32 v4, 3, v13\nv_lshl_add_u32 v4, v10, 8, v4")
        a(f"s_lshl_b32 s{sT0}, s{sWA}, 14\ns_add_u32 s{sT0}, s{sT0}, {WKV}\nv_add_u32 v4, s{sT0}, v4")
        a("v_lshlrev_b32 v13, 4, v13\nv_lshl_add_u32 v6, v10, 3, v13")
        a("v_bfe_u32 v14, v1, 4, 1\nv_lshl_add_u32 v5, v14, 9, v13\nv_lshrrev_b32 v14, 5, v1\nv_lshl_add_u32 v5, v14, 3, v5")
        a(f"v_mov_b32 v7, {LFL+L_VFL}")
        a("v_lshrrev_b32 v10, 3, v1\nv_lshl_add_u32 v8, v10, 4, v11")
        a(f"s_and_b32 s{sT1}, s{sWA}, 1\ns_lshl_b32 s{sT1}, s{sT1}, 9\ns_add_u32 s{sT1}, s{sT1}, {XROW}\nv_add_u32 v8, s{sT1}, v8")
        a("v_lshlrev_b32 v9, 4, v3\nv_and_b32 v14, 1, v10\nv_lshl_add_u32 v9, v14, 9, v9\nv_lshrrev_b32 v10, 1, v10\nv_lshl_add_u32 v9, v10, 10, v9")
        a(f"v_add_u32 v3, {XROW}, v12")
        if self.o.direct:
            a("s_waitcnt lgkmcnt(0)")
            a("s_barrier")
        a("s_waitcnt vmcnt(8)")

    def a_late(self):
        a = self.a
        aV, aO = self.aV, self.aO
        a("v_and_b32 v10, 31, v1\nv_cmp_eq_u32 vcc, 16, v10\nv_mov_b32 v11, 0x3f803f80")
        a(f"v_mov_b32 v{self.aIDX}, 0xdddddddd")
        a("v_cndmask_b32 v11, 0, v11, vcc")
        for b in aV:
            for r in range(b, b + 8):
                a(f"v_mov_b32 v{r}, v11")
        a(f"v_and_b32 v10, 15, v1\nv_lshlrev_b32 v10, 4, v10\nv_lshrrev_b32 v11, 5, v1\nv_lshl_add_u32 v10, v11, 8, v10\nv_add_u32 v{self.aOV}, {VF-KF}, v10")
        a("v_lshlrev_b32 v10, 2, v1")
        for dt in range(1, 4):
            a(f"s_add_u32 s{sT0}, s{sWA}, {dt}\ns_and_b32 s{sT0}, s{sT0}, 3\ns_mul_i32 s{sT0}, s{sT0}, 13824\ns_add_u32 s{sT0}, s{sT0}, {RING + (dt-1)*4608}")
            a(f"v_add_u32 v{self.aWR+dt-1}, s{sT0}, v2\nv_add_u32 v{self.aWL+dt-1}, s{sT0}, v10")
        a(f"s_mul_i32 s{sT0}, s{sWA}, 13824")
        a(f"v_add_u32 v{self.aRR}, s{sT0}, v2\nv_add_u32 v{self.aRL}, s{sT0}, v10")
        a(f"v_and_b32 v10, 3, v1\nv_lshlrev_b32 v10, 2, v10\nv_add_u32 v{self.aGF}, {LFL}, v10")
        a(f"s_lshl_b32 s{sT0}, s{sWA}, 2\ns_add_u32 s{sT0}, s{sT0}, {LFL}\nv_mov_b32 v{self.aMF}, s{sT0}")
        for r in range(aO, aO + 128):
            a(f"v_mov_b32 v{r}, 0")
        a(f"s_mov_b32 s{sXM}, 0xffff\ns_mov_b32 s{sXM+1}, 0xffff")
        a(f"s_lshl_b32 s{sKB}, s{sWA}, 14\ns_add_u32 s{sKB}, s{sKB}, {KF}")
        if self.o.rot and self.o.xoff:
            a(f"s_lshl1_add_u32 s{sIDX}, s{sX8}, s{sI}\ns_and_b32 s{sIDX}, s{sIDX}, 15")
        elif self.o.rot:
            a(f"s_and_b32 s{sIDX}, s{sI}, 15")
        else:
            a(f"s_mov_b32 s{sIDX}, 0")
        a(f"s_lshl_b32 s{sK}, s{sIDX}, 10\ns_add_u32 s{sK}, s{sK}, s{sKB}")

    def k_step(self):
        return [f"s_add_u32 s{sIDX}, s{sIDX}, 1", f"s_and_b32 s{sIDX}, s{sIDX}, 15", f"s_lshl_b32 s{sK}, s{sIDX}, 10", f"s_add_u32 s{sK}, s{sK}, s{sKB}"]
    def ld_k(self, buf):
        return f"buffer_load_dwordx4 {vr(self.aK[buf],4)}, v2, {srd(R_WS)}, s{sK} offen sc1"
    def ld_v(self, buf):
        return "\n".join([f"s_mov_b64 exec, s[{sXM}:{sXM+1}]",
                          f"buffer_load_dwordx4 {vr(self.aV[buf],4)}, v{self.aOV}, {srd(R_WS)}, s{sK} offen sc1",
                          f"buffer_load_dwordx4 {vr(self.aV[buf]+4,4)}, v{self.aOV}, {srd(R_WS)}, s{sK} offen offset:512 sc1",
                          "s_mov_b64 exec, -1"])

    def ld_v1(self, buf, u):
        return "\n".join([f"s_mov_b64 exec, s[{sXM}:{sXM+1}]",
                          f"buffer_load_dwordx4 {vr(self.aV[buf]+4*u,4)}, v{self.aOV}, {srd(R_WS)}, s{sK} offen offset:{512*u} sc1",
                          "s_mov_b64 exec, -1"])

    def tile(self, seq, t, kb, prev, nxt_tile, ex):
        a = self.a
        aK, aV, aS, aQ, aO = self.aK, self.aV, self.aS, self.aQ, self.aO
        cur, nxt = aS[seq & 1], aS[(seq + 1) & 1]
        for i in range(16):
            a(f"v_exp_f32 v{cur+i}, v{cur+i}" if "noexp" not in self.o.hack else f"v_mov_b32 v{cur+i}, v{cur+i}\ns_nop 0")
            if i == 1 and "nopv" not in self.o.hack:
                a(f"v_smfmac_f32_32x32x32_bf16 {vr(aO+16*prev[0],16)}, {vr(aV[prev[1]]+4,4)}, {vr(nxt+8,8)}, v{self.aIDX}")
                if "postpv1" in ex:
                    a(ex["postpv1"])
            if i == 4 and nxt_tile is not None:
                if "preqk" in ex:
                    a(ex["preqk"])
                a(f"v_mfma_f32_32x32x16_bf16 {vr(nxt,16)}, {vr(aK[nxt_tile[1]],4)}, {vr(aQ+4*nxt_tile[0],4)}, 0")
                if "postqk" in ex:
                    a(ex["postqk"])
            if i == self.o.p0 and "nopv" not in self.o.hack:
                a(f"v_smfmac_f32_32x32x32_bf16 {vr(aO+16*t,16)}, {vr(aV[kb],4)}, {vr(cur,8)}, v{self.aIDX}")
            if i in ex:
                a(ex[i])

    def merge_writes(self, slot):
        dt, hd = slot >> 1, slot & 1
        O = self.aO + 16 * slot
        return [f"ds_write_b128 v{self.aWR+dt-1}, {vr(O,4)} offset:{hd*2304}",
                f"ds_write_b128 v{self.aWR+dt-1}, {vr(O+4,4)} offset:{hd*2304+1024}",
                f"ds_write_b32 v{self.aWL+dt-1}, v{O+8} offset:{hd*2304+2048}"]

    def a_main(self):
        a, o = self.a, self.o
        vm = Vm(a)
        aK, aV, aS, aQ, aO = self.aK, self.aV, self.aS, self.aQ, self.aO
        a("L_a_main:")
        if o.direct:
            a("s_setprio 0")
        self.a_late()
        for r in range(aS[1] + 8, aS[1] + 16):
            a(f"v_mov_b32 v{r}, 0")
        for t in range(8):
            a(f"s_lshl1_add_u32 s{sT0}, s{sWA}, {t}\ns_and_b32 s{sT0}, s{sT0}, 7\ns_lshl_b32 s{sT0}, s{sT0}, 10\ns_add_u32 s{sT0}, s{sT0}, {QX}")
            a(f"v_add_u32 v{64+t}, s{sT0}, v2")
        if o.atouch:
            self.slot_touch_addr(13, 1)
            if not o.t1:
                a("v_mov_b32 v13, 0x40000000")
            a(f"s_bitcmp1_b32 s{sW}, 1\ns_cselect_b32 s68, s{R_W3}, s{R_W1}\ns_cselect_b32 s69, s{R_W3+1}, s{R_W1+1}\ns_mov_b32 s70, 1835008\ns_mov_b32 s71, 0x20000")
            a(f"s_and_b32 s{sT0}, s{sI}, 3\ns_lshl2_add_u32 s{sT0}, s{sX8}, s{sT0}\ns_lshl_b32 s{sT0}, s{sT0}, 16\ns_lshr_b32 s{sT1}, s{sI}, 2\ns_lshl_b32 s{sT1}, s{sT1}, 7\ns_add_u32 s72, s{sT0}, s{sT1}")
            a(f"s_cmp_eq_u32 s{sWA}, {0 if o.tx else 99}\ns_cselect_b32 s72, s72, 0x40000000\nv_lshlrev_b32 v12, 10, v1")
        a(f"v_lshlrev_b32 v3, {o.f0s}, v1\ns_lshl_b32 s{sT2}, s{sWA}, {6 + o.f0s}\ns_add_u32 s{sT2}, s{sT2}, {F0}")
        a(f"v_and_b32 v7, 7, v1\nv_lshlrev_b32 v7, 2, v7\nv_add_u32 v7, {LFL+L_QMAX}, v7")
        if o.wqlate and o.wq_at == "pub":
            L = self.lab("nowq")
            a(f"s_cmp_lt_u32 s{sW}, 6\ns_cbranch_scc1 {L}")
            a("v_mov_b32 v9, 1\ns_waitcnt vmcnt(0)")
            a(f"ds_write_b32 v{self.aMF}, v9 offset:{L_WQF - 8}")
            a(f"{L}:")
        if o.ring01 == "apub":
            a("v_mov_b32 v9, 1\ns_waitcnt vmcnt(0)")
            a(f"ds_write_b32 v{self.aMF}, v9 offset:{L_R0}")
        if o.kvlate:
            self.spin_lds(self.aMF, 8, "v_cmp_eq_u32 vcc, -1, v8", sleep=1, off=L_QMAX)
        else:
            self.spin_lds(self.aMF, 8, "v_cmp_gt_u32 vcc, 1, v8", sleep=1, off=L_GATE)
        if o.direct:
            a(f"s_setprio {o.aprio0}")
        self.poll_global(3, f"s{sT2}", 4, 2, vm, sleep=o.asleep)
        self.stamp(4)
        def kv_first(lo, hi):
            for b in range(lo, hi):
                a(self.ld_k(b))
                if b < 2:
                    a(self.ld_v(b))
                    a("\n".join(self.k_step()))
        kv_first(0, o.kvfirst)
        self.reduce64("v_max_u32", 5, 6)
        a(f"ds_write_b32 v{self.aMF}, v5 offset:{L_KMAX}")
        self.spin_lds(7, 8, "v_cmp_eq_u32 vcc, -1, v8")
        self.stamp(5)
        for t in range(8):
            a(f"ds_read_b128 {vr(aQ+4*t,4)}, v{64+t}")
        kv_first(o.kvfirst, 3)
        Lne = self.lab("noep")
        a(f"s_or_b32 s{sT0}, s{sP}, s{sWA}\ns_cmp_lg_u32 s{sT0}, 0\ns_cbranch_scc1 {Lne}")
        a(f"v_mov_b32 v9, s{sE}\nv_mov_b32 v3, 0\ns_mov_b32 s{sT0}, {FL}")
        self.flag_store(9, 1, 3, f"s{sT0}")
        a(f"{Lne}:")
        for ctl in ("quad_perm:[1,0,3,2]", "quad_perm:[2,3,0,1]"):
            a(f"s_nop 1\nv_max_u32_dpp v8, v8, v8 {ctl} row_mask:0xf bank_mask:0xf")
        a("s_nop 1\nv_mov_b32_dpp v9, v8 row_half_mirror row_mask:0xf bank_mask:0xf")
        a("v_mul_f32 v8, v8, v9")
        a(f"v_cmp_nge_f32 vcc, {f2u(THRESH2):#x}, v8")
        a("s_branch L_a_slow" if o.slow else "s_cbranch_vccnz L_a_slow")
        a(f"s_setprio {o.prioA}")
        a("v_mov_b32 v9, 1")
        a(f"ds_write_b32 v{self.aMF}, v9 offset:{L_ASTART}")
        a("s_waitcnt vmcnt(4) lgkmcnt(0)")
        if o.only == "G":
            a("s_branch L_a_merge_full")
        a(f"v_mfma_f32_32x32x16_bf16 {vr(aS[0],16)}, {vr(aK[0],4)}, {vr(aQ,4)}, 0")
        a(f"s_mov_b32 s{sCNT}, {4 if o.skiplast else 5}")
        if o.atouch:
            a(f"s_lshl2_add_u32 s{sT4}, s{sI}, s{sWA}\ns_lshl_b32 s{sT5}, s{sT4}, 12\ns_mul_i32 s{sT4}, s{sT4}, 14336\ns_mov_b32 s{sT3}, 0x40000000")
            a("v_lshlrev_b32 v15, 7, v1")
        a("s_nop 7\ns_nop 2")
        self.stamp(6)
        if o.ts:
            a(f"s_memtime s[{sPCX}:{sPCX+1}]\ns_waitcnt lgkmcnt(0)\ns_mov_b32 s{sTS+13}, s{sPCX}")
        def rounds(peeled, last=False):
            for kb in range(3):
                self.jitter()
                if o.trace:
                    a(f"s_mul_i32 s{sTS+9}, s{sCNT}, -3\ns_add_u32 s{sTS+9}, s{sTS+9}, 15")
                    self.trace_pt(None, kb, sTS + 9)
                for t in range(8):
                    ex = {}
                    prev = (t - 1, kb) if t else (7, (kb + 2) % 3)
                    nx = (t + 1, kb) if t < 7 else (0, (kb + 1) % 3)
                    def guarded(txt):
                        L = self.lab("skip")
                        return f"s_cmp_eq_u32 s{sCNT}, 1\ns_cbranch_scc1 {L}\n{txt}\n{L}:"
                    if t == o.vt:
                        ex[o.p0] = self.ld_v((kb + 2) % 3)
                        if last and kb == 2:
                            del ex[o.p0]
                    extra = 0
                    if peeled and kb == o.tk:
                        if t == 1:
                            ex[6] = f"buffer_load_dword v14, v15, {srd(R_W2)}, s{sT4} offen"
                        if t == 2:
                            ex[3] = f"s_add_u32 s{sT4}, s{sT4}, 8192"
                            ex[6] = f"buffer_load_dword v14, v15, {srd(R_W2)}, s{sT4} offen"
                        if t == 3:
                            ex[6] = f"buffer_load_dword v14, v15, {srd(R_WO)}, s{sT5} offen"
                        if t == 4 and o.tx:
                            ex[6] = f"buffer_load_dword v14, v12, {srd(R_X)}, s72 offen"
                        if t == 5 and o.t1:
                            ex[6] = f"buffer_load_dword v14, v13, s[68:71], 0 offen"
                    ntouch = 3 + bool(o.tx) + bool(o.t1)
                    if (peeled and kb in (o.tk, o.tk + 1)) or (not peeled and o.atouch == 2 and o.tk == 2 and kb == 0):
                        extra = ntouch
                    if t == 7:
                        ex["preqk"] = f"s_waitcnt vmcnt({3 + extra + (1 if o.trace else 0)})"
                        ex[5], ex[6], ex[7], ex[8] = self.k_step()
                        ex[o.p0] = self.ld_k(kb)
                        if last and kb >= 1:
                            del ex[o.p0]
                            for i in (5, 6, 7, 8):
                                del ex[i]
                        if last and kb == 2:
                            ex["preqk"] = "s_waitcnt vmcnt(0)"
                        if kb == 2 and not last:
                            ex[11] = f"s_sub_u32 s{sCNT}, s{sCNT}, 1"
                            ex[14] = f"s_cmp_lg_u32 s{sCNT}, 0"
                    self.tile(t, t, kb, prev, nx, ex)
        self.trv = 10
        if o.atouch == 2:
            rounds(True)
        a(".p2align 3")
        a("L_a_loop:")
        rounds(False)
        a("s_cbranch_scc1 L_a_loop")
        if o.skiplast:
            rounds(False, last=True)
        if o.lastprio:
            a(f"s_setprio {o.lastprio}")
        self.trace_pt(None, 15)
        a(f"ds_read_b32 v8, v{self.aGF}")
        order = [0, 2, 3, 4, 5, 6, 7, 1] if o.peel else list(range(8))
        for n, t in enumerate(order):
            ex = {}
            prev = (order[n - 1], 0) if n else (7, 2)
            nx = (order[n + 1], 0) if n < 7 else None
            if n == 0:
                ex[12] = "s_waitcnt lgkmcnt(0)"
                ex[13] = "SPIN"
            if o.peel and n >= 3:
                w = self.merge_writes(order[n - 2])
                ex[3], ex[7], ex[12] = w
            if n == 0:
                self.tile_with_guard(n, t, prev, nx)
            else:
                self.tile(n, t, 0, prev, nx, ex)
        if o.n0 >= 0:
            a("v_mov_b32 v9, 1")
            a(f"ds_write_b32 v{self.aMF}, v9 offset:{L_ADONE}")
        a("s_nop 1")
        a(f"v_smfmac_f32_32x32x32_bf16 {vr(aO+16*order[7],16)}, {vr(aV[0]+4,4)}, {vr(aS[1]+8,8)}, v{self.aIDX}")
        if o.peel:
            for x in self.merge_writes(7):
                a(x)
            a("s_branch L_a_merge")
        a("L_a_merge_full:")
        self.spin_lds(self.aGF, 8, "v_cmp_gt_u32 vcc, 17, v8")
        if o.n0 >= 0:
            a("v_mov_b32 v9, 1")
            a(f"ds_write_b32 v{self.aMF}, v9 offset:{L_ADONE}")
        a("s_nop 7")
        for slot in range(2, 8):
            for x in self.merge_writes(slot):
                a(x)
        a("L_a_merge:")
        if o.mprio:
            a(f"s_setprio {o.mprio}")
        self.trace_pt(None, 16)
        self.stamp(7)
        if o.ts:
            a(f"s_memtime s[{sPCX}:{sPCX+1}]\ns_waitcnt lgkmcnt(0)\ns_sub_u32 s{sTS+13}, s{sPCX}, s{sTS+13}")
        a("v_mov_b32 v9, 1")
        a(f"s_lshl2_add_u32 s{sT0}, s{sG}, s{sWA}\ns_lshl_b32 s{sT0}, s{sT0}, 5\ns_lshl1_add_u32 s{sT0}, s{sJ}, s{sT0}\ns_lshl_b32 s{sT0}, s{sT0}, 10\ns_add_u32 s{sT0}, s{sT0}, {OF}")
        a(f"s_lshl2_add_u32 s{sT1}, s{sP}, s{sWA}\ns_lshl_b32 s{sT1}, s{sT1}, 7\ns_add_u32 s{sT1}, s{sT1}, {FO}")
        a("s_waitcnt lgkmcnt(0)")
        a(f"ds_write_b32 v{self.aMF}, v9 offset:{L_MFL}")
        self.stamp(10)
        self.spin_lds(self.aGF, 8, "v_cmp_gt_u32 vcc, 1, v8", off=L_MFL)
        self.stamp(11)
        T = 64
        for dt in range(3):
            for hd in range(2):
                b = T + 10 * (2 * dt + hd)
                off = dt * 4608 + hd * 2304
                a(f"ds_read_b128 {vr(b,4)}, v{self.aRR} offset:{off}")
                a(f"ds_read_b128 {vr(b+4,4)}, v{self.aRR} offset:{off+1024}")
                a(f"ds_read_b32 v{b+8}, v{self.aRL} offset:{off+2048}")
            if dt:
                a("s_waitcnt lgkmcnt(6)")
                self.acc_add(T, dt - 1)
        a(f"v_mov_b32 v16, s{sE}\nv_mov_b32 v17, 0")
        a("s_waitcnt lgkmcnt(0)")
        self.acc_add(T, 2)
        a(f"v_mov_b32 v14, v{aO+8}\nv_mov_b32 v15, v{aO+24}")
        a("s_nop 0")
        a(f"v_permlane32_swap_b32 v{aO+8}, v14")
        a(f"v_permlane32_swap_b32 v{aO+24}, v15")
        a(f"v_rcp_f32 v14, v{aO+8}\nv_rcp_f32 v18, v{aO+24}")
        a("s_nop 0")
        for hd in range(2):
            O = aO + 16 * hd
            for i in range(4):
                a(f"v_pk_mul_f32 {vr(O+2*i,2)}, {vr(O+2*i,2)}, {vr(14+4*hd,2)} op_sel_hi:[1,0]")
            for i in range(4):
                a(f"v_cvt_pk_bf16_f32 v{20+4*hd+i}, v{O+2*i}, v{O+2*i+1}")
            a(f"buffer_store_dwordx4 {vr(20+4*hd,4)}, v2, {srd(R_WS)}, s{sT0} offen offset:{1024*hd} sc1")
            if o.dup & 4:
                a(f"buffer_store_dwordx4 {vr(20+4*hd,4)}, v2, {srd(R_WS)}, s{sT0} offen offset:{1024*hd} {o.dupf}")
        self.stamp(12)
        a("s_waitcnt vmcnt(0)")
        a("s_mov_b64 exec, 1")
        a(f"buffer_store_dword v16, v17, {srd(R_WS)}, s{sT1} offen sc1")
        self.stamp(8)
        self.stamp_flush()
        a("s_endpgm")

    def tile_with_guard(self, n, t, prev, nx):
        a = self.a
        self.tile(n, t, 0, prev, nx, {})
        a("s_waitcnt lgkmcnt(0)")
        self.spin_lds(self.aGF, 8, "v_cmp_gt_u32 vcc, 17, v8", peeked=True)

    def acc_add(self, T, dt):
        a = self.a
        for hd in range(2):
            b = T + 10 * (2 * dt + hd)
            O = self.aO + 16 * hd
            for i in range(4):
                a(f"v_pk_add_f32 {vr(O+2*i,2)}, {vr(O+2*i,2)}, {vr(b+2*i,2)}")
            a(f"v_add_f32 v{O+8}, v{O+8}, v{b+8}")

    def a_slow(self):
        a = self.a
        aK, aV, aS, aQ, aO = self.aK, self.aV, self.aS, self.aQ, self.aO
        a("L_a_slow:")
        a("v_mov_b32 v3, 1")
        a(f"ds_write_b32 v{self.aMF}, v3 offset:{L_ASTART}")
        a("s_waitcnt vmcnt(0) lgkmcnt(0)")
        S, M = aS[0], 4
        for t in range(8):
            a(f"v_mov_b32 v{M+t}, 0xff800000")
        a(f"s_mov_b32 s{sK}, {KF}\ns_mov_b32 s{sCNT}, 64")
        a("L_slow_max:")
        a(self.ld_k(0))
        a("s_waitcnt vmcnt(0)")
        for t in range(8):
            a(f"v_mfma_f32_32x32x16_bf16 {vr(S,16)}, {vr(aK[0],4)}, {vr(aQ+4*t,4)}, 0")
            a("s_nop 7\ns_nop 3")
            for i in range(8):
                a(f"v_max3_f32 v{M+t}, v{S+2*i}, v{S+2*i+1}, v{M+t}")
        a(f"s_add_u32 s{sK}, s{sK}, 1024\ns_sub_u32 s{sCNT}, s{sCNT}, 1\ns_cmp_lg_u32 s{sCNT}, 0")
        a("s_cbranch_scc1 L_slow_max")
        for t in range(8):
            a(f"v_mov_b32 v3, v{M+t}\ns_nop 1\nv_permlane32_swap_b32 v{M+t}, v3\nv_max_f32 v{M+t}, v{M+t}, v3")
        a(f"s_mov_b32 s{sK}, s{sKB}\ns_mov_b32 s{sCNT}, 16")
        a("L_slow_pv:")
        a(self.ld_k(0))
        a(self.ld_v(0))
        a("s_waitcnt vmcnt(0)")
        for t in range(8):
            a(f"v_mfma_f32_32x32x16_bf16 {vr(S,16)}, {vr(aK[0],4)}, {vr(aQ+4*t,4)}, 0")
            a("s_nop 7\ns_nop 3")
            for i in range(16):
                a(f"v_sub_f32 v{S+i}, v{S+i}, v{M+t}")
            for i in range(16):
                a(f"v_exp_f32 v{S+i}, v{S+i}")
            a("s_nop 1")
            for u in range(2):
                a(f"v_smfmac_f32_32x32x32_bf16 {vr(aO+16*t,16)}, {vr(aV[0]+4*u,4)}, {vr(S+8*u,8)}, v{self.aIDX}")
        a(f"s_add_u32 s{sK}, s{sK}, 1024\ns_sub_u32 s{sCNT}, s{sCNT}, 1\ns_cmp_lg_u32 s{sCNT}, 0")
        a("s_cbranch_scc1 L_slow_pv")
        a("s_branch L_a_merge_full")

    gRG0, gRU0, gRG1, gRU1 = 3, 4, 5, 6
    dV = 7
    gT = 8
    gTQ, gFL, gMY, gTMP = 12, 13, 14, 15
    gONE = 0
    gE = 16
    gP = 24
    dXR = 32
    dT, dF, dXA, vEP, vZ, vPK = 40, 42, 43, 44, 45, 46
    gA = 48
    gC = 64
    gX = 128
    dH = 128

    def g_early(self):
        a, o = self.a, self.o
        vm = self.vmG = Vm(a)
        if not o.direct:
            vm.issue("xrow")
        gT, dT = self.gT, self.dT
        a("L_g_early:")
        if o.code_pf == 1:
            self.code_prefetch(vm)
        if o.dyn:
            L = self.lab("noxt")
            a(f"s_sub_u32 s{sT0}, s2, 1\ns_and_b32 s{sT0}, s{sT0}, s2\ns_xor_b32 s{sT1}, s{sW}, 1\ns_or_b32 s{sT0}, s{sT0}, s{sT1}\ns_cmp_lg_u32 s{sT0}, 0\ns_cbranch_scc1 {L}")
            a(f"s_ff1_i32_b32 s{sT1}, s2\ns_add_u32 s{sT1}, s{sT1}, 1\ns_lshl_b32 s{sT1}, s{sT1}, 7\ns_add_u32 s{sT1}, s{sT1}, {XT}")
            a(f"s_getreg_b32 s{sT2}, hwreg(HW_REG_XCC_ID, 0, 4)")
            a("s_waitcnt lgkmcnt(0)")
            a(f"s_mul_i32 s{sT3}, s{sE}, 0x9E3779B1\ns_add_u32 s{sT3}, s{sT3}, 0x7F4A7C15")
            a(f"v_mov_b32 v20, s{sT3}\nv_mov_b32 v21, s{sT2}\nv_mov_b32 v22, 0")
            self.flag_store(20, 2, 22, f"s{sT1}")
            a(f"{L}:")
        if o.twq:
            L = self.lab("twq")
            a(f"s_cmp_lg_u32 s{sW}, 0\ns_cbranch_scc1 {L}")
            a(f"s_and_b32 s{sT0}, s{sG}, 3\ns_and_b32 s{sT1}, s{sJ}, 1\ns_lshl1_add_u32 s{sT0}, s{sT0}, s{sT1}\ns_lshl_b32 s{sT0}, s{sT0}, 16\ns_lshl_b32 s{sT1}, s{sJ}, 6\ns_add_u32 s{sT0}, s{sT0}, s{sT1}")
            a(f"v_lshlrev_b32 v18, 10, v1\nbuffer_load_dword v46, v18, {srd(R_WQ)}, s{sT0} offen {o.tnt}")
            a(f"s_waitcnt vmcnt({1 + (1 if o.code_pf == 1 else 0)})")
            a(f"{L}:")
        if o.direct:
            return self.g_direct(vm)
        if o.t0 == 1:
            self.first_slot_touch(vm)
        a("v_lshrrev_b32 v18, 2, v1\nv_lshlrev_b32 v18, 10, v18\nv_and_b32 v19, 3, v1\nv_lshl_add_u32 v17, v19, 4, v18")
        if o.wq_at == "early":
            self.wq_dma(vm)
        vm.wait("xrow")
        if o.wq_at == "xarr":
            self.wq_dma(vm)
        a("s_branch L_ln")

    def code_prefetch(self, vm):
        a, o = self.a, self.o
        a(f"s_sub_u32 s{sPC}, s{sPC}, L_pc-{NAME}\ns_subb_u32 s{sPC+1}, s{sPC+1}, 0")
        if o.pfshare > 1:
            n = 64 // o.pfshare + 1
            a(f"s_and_b32 s{sT0}, s{sI}, {o.pfshare-1}\ns_lshl2_add_u32 s{sT0}, s{sT0}, s{sW}\ns_mul_i32 s{sT0}, s{sT0}, {n*128}")
            a(f"s_mov_b64 exec, {(1 << n) - 1:#x}")
        else:
            a(f"s_lshl_b32 s{sT0}, s{sW}, 13")
        a(f"v_lshlrev_b32 v18, 7, v1\nv_add_u32 v18, s{sT0}, v18")
        a(f"v_min_u32 v18, L_code_end-{NAME}-4, v18")
        a(f"v_mov_b32 v19, s{sPC+1}\nv_add_co_u32 v18, vcc, s{sPC}, v18\ns_nop 1\nv_addc_co_u32 v19, vcc, 0, v19, vcc")
        a("global_load_dword v47, v[18:19], off")
        if o.pfshare > 1:
            a("s_mov_b64 exec, -1")
        vm.issue("pf")
        if o.atouch == 2:
            a(f"v_add_u32 v18, 32768, v18\nv_min_u32 v18, L_code_end-{NAME}-4, v18\ns_mov_b64 exec, 0xffff")
            a(f"global_load_dword v47, v18, s[{sPC}:{sPC+1}]\ns_mov_b64 exec, -1")
            vm.issue("pf")

    def stage_dma(self, n, vm):
        a = self.a
        a(f"s_add_u32 s{sT0}, s{sROT}, {n}\ns_and_b32 s{sT0}, s{sT0}, 7\ns_lshl_b32 s{sT0}, s{sT0}, 7\ns_add_u32 s{sT0}, s{sT0}, s{sXB}")
        a(f"s_add_u32 m0, s{sT3}, {(n&3)*4096}")
        for i in range(4):
            a(f"s_add_u32 s{sT1}, s{sT0}, {i*8192 - (i&3)*1024 + (0 if i else 0)}" if i else "s_nop 0")
            a(f"buffer_load_dwordx4 v{18 + (i&1)}, {srd(R_X)}, s{sT1 if i else sT0} offen offset:{i*1024} lds")
            vm.issue(("st", n))

    def g_direct(self, vm):
        a, o = self.a, self.o
        gX = self.gX
        a(f"s_setprio {o.gprio0}")
        self.rot_expr(sROT)
        a(f"s_lshl2_add_u32 s{sT0}, s{sG}, s{sW}\ns_lshl_b32 s{sXB}, s{sT0}, 15\ns_lshl_b32 s{sT3}, s{sW}, 14")
        a("v_lshrrev_b32 v20, 3, v1\nv_and_b32 v21, 7, v1\nv_lshrrev_b32 v22, 4, v1\nv_xor_b32 v21, v21, v22\nv_lshlrev_b32 v21, 4, v21")
        a("v_lshl_add_u32 v18, v20, 10, v21\nv_xor_b32 v19, 64, v18")
        a(f"s_load_dword s{sE}, s[{R_WS}:{R_WS+1}], {FL}")
        a("s_barrier")
        for n in range(o.sdepth):
            self.stage_dma(n, vm)
        a(f"s_mov_b32 s{sFXA}, s{sT3}")
        a("v_mov_b32 v28, v18\nv_mov_b32 v29, v19")
        self.g_late(direct=True)
        a(f"s_mov_b32 s{sT3}, s{sFXA}\nv_mov_b32 v18, v28\nv_mov_b32 v19, v29")
        a("v_and_b32 v20, 31, v1\nv_lshrrev_b32 v21, 5, v1\nv_bfe_u32 v22, v1, 1, 3\nv_xor_b32 v21, v21, v22\nv_lshlrev_b32 v21, 4, v21\nv_lshl_add_u32 v20, v20, 7, v21")
        a(f"v_add_u32 v20, s{sT3}, v20\nv_xor_b32 v21, 32, v20\nv_xor_b32 v22, 64, v20\nv_xor_b32 v23, 0x60, v20")
        a(f"v_mov_b32 v24, 0\nv_mov_b32 v25, 0\nv_mov_b32 v26, 0\nv_mov_b32 v27, 0\nv_mov_b32 v30, 0x3f803f80")
        a("s_waitcnt lgkmcnt(0)")
        a(f"s_mul_i32 s{sE}, s{sE}, 0x9E3779B1\ns_add_u32 s{sE}, s{sE}, 0x7F4A7C15")
        a(f"v_mov_b32 v{self.vEP}, s{sE}")
        self.stamp(1)
        def stats(n):
            for r in range(gX + 16 * n, gX + 16 * n + 16):
                a(f"v_dot2c_f32_bf16 v{24 + (r & 1)}, v{r}, v30")
                a(f"v_dot2c_f32_bf16 v{26 + (r & 1)}, v{r}, v{r}")
        for n in range(8):
            vm.wait(("st", n))
            for ks in range(4):
                a(f"ds_read_b128 {vr(gX + 16*n + 4*ks, 4)}, v{20+ks} offset:{(n&3)*4096}")
            if n:
                stats(n - 1)
            a("s_waitcnt lgkmcnt(0)")
            if n + o.sdepth < 8:
                self.stage_dma(n + o.sdepth, vm)
        self.stamp(2)
        a(f"ds_write_b32 v{self.gMY}, v{self.gONE} offset:{L_STG}")
        if o.gate_at == "stg":
            a(f"ds_write_b32 v{self.gMY}, v{self.gONE} offset:{L_GATE}")
        stats(7)
        a("s_nop 2")
        a("v_add_f32 v24, v24, v25\nv_add_f32 v26, v26, v27")
        a("v_mov_b32 v25, v24\nv_mov_b32 v27, v26\ns_nop 0")
        a("v_permlane32_swap_b32 v24, v25\nv_permlane32_swap_b32 v26, v27")
        a("v_add_f32 v24, v24, v25\nv_add_f32 v26, v26, v27")
        a(f"v_mul_f32 v24, {f2u(1/512):#x}, v24\nv_mul_f32 v26, {f2u(1/512):#x}, v26")
        a("v_fma_f32 v26, -v24, v24, v26\nv_max_f32 v26, 0, v26")
        a("v_cvt_pk_bf16_f32 v24, v24, v26")
        a(f"v_and_b32 v26, s{sMASK}, v24\nv_lshlrev_b32 v24, 16, v24\nv_add_f32 v26, {f2u(1e-5):#x}, v26")
        a("v_cvt_pk_bf16_f32 v26, v26, v26\nv_lshlrev_b32 v26, 16, v26\nv_sqrt_f32 v26, v26\ns_nop 0")
        a("v_cvt_pk_bf16_f32 v26, v26, v26\nv_lshlrev_b32 v26, 16, v26\nv_rcp_f32 v32, v26\ns_nop 0")
        a("v_mul_f32 v34, -v24, v32")
        a("s_branch L_g_bar1")

    def first_slot_touch(self, vm):
        a = self.a
        self.slot_touch_addr(18, 0)
        L, L2 = self.lab("tw3"), self.lab("tw3x")
        nt = self.o.tnt
        a(f"s_bitcmp1_b32 s{sW}, 1\ns_cbranch_scc1 {L}")
        a(f"buffer_load_dword v46, v18, {srd(R_W1)}, 0 offen {nt}\ns_branch {L2}")
        a(f"{L}:\nbuffer_load_dword v46, v18, {srd(R_W3)}, 0 offen {nt}\n{L2}:")
        vm.issue("t0")

    def slot_touch_addr(self, v, p):
        a, o = self.a, self.o
        if o.rotup:
            a(f"s_lshl1_add_u32 s{sT0}, s{sJ}, s{sG}\ns_and_b32 s{sT0}, s{sT0}, {o.rotup}\ns_lshl_b32 s{sT0}, s{sT0}, 6")
        else:
            a(f"s_and_b32 s{sT0}, s{sG}, 7\ns_lshl_b32 s{sT0}, s{sT0}, 6")
        a(f"v_add_u32 v{v}, s{sT0}, v1\nv_mul_u32_u24 v{v}, 3584, v{v}")
        a(f"s_and_b32 s{sT1}, s{sW}, 1\ns_mul_i32 s{sT1}, s{sT1}, {124 if p == 0 else 92}\ns_mul_i32 s{sT0}, s{sJ}, 224\ns_add_u32 s{sT0}, s{sT0}, s{sT1}")
        if p:
            a(f"s_add_u32 s{sT0}, s{sT0}, 128")
        a(f"v_add_u32 v{v}, s{sT0}, v{v}")

    def g_late(self, direct=False):
        a, o = self.a, self.o
        gT, dT = self.gT, self.dT
        a("v_and_b32 v19, 3, v1")
        RG0, RU0, RG1, RU1 = self.gRG0, self.gRU0, self.gRG1, self.gRU1
        a("v_bfe_u32 v20, v1, 1, 2\nv_bfe_u32 v21, v1, 4, 1\nv_xor_b32 v20, v20, v21")
        a("v_lshrrev_b32 v22, 3, v1\nv_mul_u32_u24 v23, 3584, v22\nv_and_b32 v24, 1, v1\nv_lshl_add_u32 v23, v24, 4, v23")
        a(f"v_lshl_add_u32 v{RG0}, v20, 5, v23")
        a(f"v_xor_b32 v24, 2, v20\nv_lshl_add_u32 v{RU0}, v24, 5, v23")
        a("v_mov_b32 v25, 0x40000000")
        a("v_cmp_eq_u32 vcc, 3, v20")
        a(f"v_cmp_eq_u32 s[{sT2}:{sT3}], 3, v24")
        a("v_bfe_u32 v26, v1, 2, 1\nv_xor_b32 v26, v26, v21\nv_lshlrev_b32 v26, 6, v26\nv_lshl_add_u32 v26, v19, 4, v26")
        a(f"v_cndmask_b32 v{RG1}, v{RG0}, v25, vcc")
        a(f"v_cndmask_b32 v{RU1}, v{RU0}, v25, s[{sT2}:{sT3}]")
        a(f"v_lshl_add_u32 v{self.dV}, v22, 10, v26")
        a(f"s_mul_i32 s{sBASE}, s{sW}, {16*3584}\ns_mul_i32 s{sT0}, s{sJ}, 224\ns_add_u32 s{sBASE}, s{sBASE}, s{sT0}")
        a(f"s_lshl_b32 s{sW4096}, s{sW}, 12")
        self.rot_expr(sROT)
        a("v_lshlrev_b32 v19, 3, v19\nv_bfe_u32 v20, v1, 2, 2\nv_lshrrev_b32 v22, 5, v1\nv_bfe_u32 v23, v1, 3, 1")
        a(f"v_lshl_add_u32 v24, v22, 9, v19\nv_lshl_add_u32 v24, v20, 6, v24\nv_lshl_add_u32 v24, v21, 5, v24\nv_add_u32 v{self.gTQ}, {WQI}, v24")
        a("v_lshl_add_u32 v24, v21, 11, v19\nv_lshl_add_u32 v24, v22, 10, v24\nv_lshl_add_u32 v24, v20, 7, v24")
        a(f"v_lshl_add_u32 v25, v21, 1, v23\nv_lshl_add_u32 v{gT}, v25, 5, v24")
        for mt in range(1, 4):
            a(f"v_xor_b32 v{gT+mt}, {32*mt}, v{gT}")
        if not (direct and o.dlate):
            self.g_late_d()
        a(f"v_and_b32 v24, 3, v1\nv_lshlrev_b32 v24, 2, v24\nv_add_u32 v{self.gFL}, {LFL}, v24")
        a(f"s_lshl_b32 s{sT0}, s{sW}, 2\ns_add_u32 s{sT0}, s{sT0}, {LFL}\nv_mov_b32 v{self.gMY}, s{sT0}")
        a(f"v_mov_b32 v{self.gONE}, 1\nv_mov_b32 v{self.vZ}, 0")
        nl, qs = f2u(-LOG2E), f2u(0.25 * LOG2E)
        a(f"s_mov_b32 s{sNL2}, {nl:#x}\ns_mov_b32 s{sNL2+1}, {nl:#x}\ns_mov_b32 s{sONE}, 1.0\ns_mov_b32 s{sONE+1}, 1.0")
        a(f"s_mov_b32 s{sQS}, {qs:#x}\ns_mov_b32 s{sQS+1}, {qs:#x}")
        a(f"s_lshl2_add_u32 s{sT0}, s{sG}, s{sW}")
        if not direct:
            a("v_and_b32 v16, 7, v1\nv_lshlrev_b32 v16, 7, v16")
            a(f"s_lshl_b32 s{sFXA}, s{sT0}, 10\ns_add_u32 s{sFXA}, s{sFXA}, {FX}")
            a(f"s_lshl_b32 s{sXB}, s{sT0}, 15\ns_add_u32 s{sXB}, s{sXB}, {XN}")
        a(f"s_mul_i32 s{sHS}, s{sT0}, 112\ns_mul_i32 s{sT1}, s{sJ}, 7\ns_add_u32 s{sHS}, s{sHS}, s{sT1}\ns_lshl_b32 s{sHS}, s{sHS}, 10\ns_add_u32 s{sHS}, s{sHS}, {HF}")
        a(f"s_lshl2_add_u32 s{sFH}, s{sP}, s{sW}\ns_lshl_b32 s{sFH}, s{sFH}, 7\ns_add_u32 s{sFH}, s{sFH}, {FH}")

    def g_late_d(self, redo=False):
        a, o = self.a, self.o
        gT, dT = self.gT, self.dT
        if redo:
            a("v_and_b32 v19, 3, v1\nv_lshlrev_b32 v19, 3, v19\nv_bfe_u32 v20, v1, 2, 2\nv_bfe_u32 v21, v1, 4, 1\nv_lshrrev_b32 v22, 5, v1\nv_bfe_u32 v23, v1, 3, 1")
        a(f"s_and_b32 s{sT5}, s{sI}, 3\ns_lshl2_add_u32 s{sT2}, s{sX8}, s{sT5}")
        a(f"s_lshr_b32 s{sNN}, s{sI}, 2")
        if o.nxor:
            a(f"s_xor_b32 s{sNN}, s{sNN}, {o.nxor}")
        a(f"s_lshl_b32 s{sT4}, s{sNN}, 7")
        a(f"s_mul_i32 s{sW2}, s{sW}, {28*16384}")
        if "w2n0" not in o.hack:
            a(f"s_add_u32 s{sW2}, s{sW2}, s{sT4}")
        a(f"s_lshl_b32 s{sWO}, s{sW}, 17\ns_add_u32 s{sWO}, s{sWO}, s{sT4}")
        a(f"s_lshl_b32 s{sRB}, s{sW}, 14\ns_add_u32 s{sRB}, s{sRB}, {RB0}")
        if o.rot:
            a(f"s_lshl1_add_u32 s{sRX}, s{sT5}, s{sNN}\ns_lshl_b32 s{sRX}, s{sRX}, 1")
            if o.xoff:
                a(f"s_lshl1_add_u32 s{sRX}, s{sX8}, s{sRX}")
            a(f"s_and_b32 s{sRX}, s{sRX}, 15")
            a(f"s_lshl1_add_u32 s{sRY}, s{sT5}, s{sNN}\ns_mul_i32 s{sRY}, s{sRY}, 3\ns_lshr_b32 s{sRY}, s{sRY}, 1")
            if o.xoff:
                a(f"s_add_u32 s{sRY}, s{sRY}, s{sX8}")
            for _ in range(2):
                a(f"s_sub_u32 s{sT0}, s{sRY}, 12\ns_cmp_ge_u32 s{sRY}, 12\ns_cselect_b32 s{sRY}, s{sT0}, s{sRY}")
        else:
            a(f"s_mov_b32 s{sRX}, 0\ns_mov_b32 s{sRY}, 0\ns_mov_b32 s{sNN}, 0")
        a(f"s_lshr_b32 s{sT0}, s{sW}, 1\ns_lshl1_add_u32 s{sT0}, s{sT2}, s{sT0}\ns_xor_b32 s{sT1}, s{sT0}, 1\ns_mul_i32 s{sT5}, s{sW}, 28")
        for sH, sO, st in ((sH0, sO0, sT0), (sH1, sO1, sT1)):
            a(f"s_mul_i32 s{sH}, s{st}, 112\ns_add_u32 s{sH}, s{sH}, s{sT5}\ns_lshl_b32 s{sH}, s{sH}, 10\ns_add_u32 s{sH}, s{sH}, {HF}")
            a(f"s_lshl_b32 s{sO}, s{st}, 2\ns_add_u32 s{sO}, s{sO}, s{sW}\ns_lshl_b32 s{sO}, s{sO}, 13\ns_add_u32 s{sO}, s{sO}, {OF}")
        a(f"s_lshl_b32 s{sOUT}, s{sT0}, 15\ns_add_u32 s{sOUT}, s{sOUT}, s{sT4}\ns_and_b32 s{sT1}, s{sW}, 1\ns_lshl_b32 s{sT1}, s{sT1}, 6\ns_add_u32 s{sOUT}, s{sOUT}, s{sT1}")
        a("v_lshl_add_u32 v24, v21, 5, v19\nv_lshl_add_u32 v24, v20, 7, v24\nv_lshl_add_u32 v24, v22, 9, v24\nv_lshl_add_u32 v24, v23, 6, v24")
        a(f"v_xor_b32 v24, s{sT1}, v24\nv_add_u32 v{dT}, s{sRB}, v24\nv_xor_b32 v{dT+1}, 64, v{dT}")
        a(f"s_lshr_b32 s{sT0}, s{sT2}, 1\ns_lshl2_add_u32 s{sT0}, s{sT0}, s{sW}\ns_lshl_b32 s{sT0}, s{sT0}, 4")
        a(f"s_and_b32 s{sT1}, s{sT2}, 1\ns_lshl1_add_u32 s{sT0}, s{sT1}, s{sT0}\ns_lshl_b32 s{sT0}, s{sT0}, 7")
        a(f"v_and_b32 v24, 3, v1\nv_lshlrev_b32 v25, 9, v24\nv_bfe_u32 v26, v1, 2, 1\nv_lshl_add_u32 v25, v26, 7, v25\nv_add_u32 v{self.dF}, s{sT0}, v25")
        a(f"v_and_b32 v25, 31, v1\nv_lshlrev_b32 v25, 10, v25\nv_lshl_add_u32 v{self.dXA}, v22, 3, v25")

    def wq_dma(self, vm):
        a = self.a
        a(f"s_lshl_b32 s{sT4}, s{sJ}, 6")
        a(f"s_lshl_b32 s{sT1}, s{sW}, 13\ns_add_u32 m0, s{sT1}, {WQI}")
        if self.o.rotup:
            a(f"s_lshl1_add_u32 s{sT5}, s{sJ}, s{sG}\ns_and_b32 s{sT5}, s{sT5}, {self.o.rotup}")
        else:
            a(f"s_mov_b32 s{sT5}, 0")
        for n in range(8):
            if n:
                a("s_add_u32 m0, m0, 1024")
            if n & 3 == 0:
                a(f"s_lshl1_add_u32 s{sT0}, s{sW}, s{sT5}\ns_add_u32 s{sT0}, s{sT0}, {n>>2}\ns_and_b32 s{sT0}, s{sT0}, 7\ns_lshl_b32 s{sT0}, s{sT0}, 16\ns_add_u32 s{sT0}, s{sT0}, s{sT4}")
            else:
                a(f"s_add_u32 s{sT0}, s{sT0}, 16384")
            a(f"buffer_load_dwordx4 v17, {srd(R_WQ)}, s{sT0} offen lds")
            vm.issue("wq")

    def ring_dma_parts(self, b, vm):
        a = self.a
        p, sl = b >> 3, b & 7
        vg, vu = (self.gRG0, self.gRU0) if p == 0 else (self.gRG1, self.gRU1)
        def p0():
            a(f"s_add_u32 s{sT0}, s{sROT}, {sl}\ns_and_b32 s{sT0}, s{sT0}, 7\ns_mul_i32 s{sT0}, s{sT0}, {64*3584}\ns_add_u32 s{sT0}, s{sT0}, s{sBASE}")
            a(f"s_add_u32 m0, s{sW4096}, {(b & 3) * 16384}")
            a(f"s_add_u32 s{sT1}, s{sT0}, {p*128 + 8*3584 - 1024}")
            if p:
                a(f"s_add_u32 s{sT0}, s{sT0}, {p*128}")
            a(f"buffer_load_dwordx4 v{vg}, {srd(R_W1)}, s{sT0} offen lds"); vm.issue(("ring", b))
        def p1():
            a(f"buffer_load_dwordx4 v{vg}, {srd(R_W1)}, s{sT1} offen offset:1024 lds"); vm.issue(("ring", b))
            a("s_add_u32 m0, m0, 2048")
        def p2():
            if self.o.batch:
                a("s_nop 0")
            a(f"buffer_load_dwordx4 v{vu}, {srd(R_W3)}, s{sT0} offen lds"); vm.issue(("ring", b))
        def p3():
            a(f"buffer_load_dwordx4 v{vu}, {srd(R_W3)}, s{sT1} offen offset:1024 lds"); vm.issue(("ring", b))
        return [p0, p1, p2, p3]

    def ring_fill(self, vm, lo, hi):
        for b in range(lo, hi):
            ps = self.ring_dma_parts(b, vm)
            ps[0](); ps[1](); self.a("s_nop 0"); ps[2](); ps[3]()

    def tr_pair(self, dst, vaddr, off, qstep):
        self.a(f"ds_read_b64_tr_b16 {vr(dst,2)}, v{vaddr} offset:{off}")
        self.a(f"ds_read_b64_tr_b16 {vr(dst+2,2)}, v{vaddr} offset:{off+qstep}")

    def kstep_index(self, n):
        a = self.a
        if n < 16:
            a(f"s_add_u32 s{sKS}, s{sRX}, {n}\ns_and_b32 s{sKS}, s{sKS}, 15\ns_lshr_b32 s{sT2}, s{sKS}, 2\ns_mul_i32 s{sT2}, s{sT2}, 3\ns_add_u32 s{sKS}, s{sKS}, s{sT2}")
        elif n < 28:
            a(f"s_add_u32 s{sKS}, s{sRY}, {n-16}\ns_sub_u32 s{sT2}, s{sKS}, 12\ns_cmp_ge_u32 s{sKS}, 12\ns_cselect_b32 s{sKS}, s{sT2}, s{sKS}")
            a(f"s_mul_i32 s{sT2}, s{sKS}, 11\ns_lshr_b32 s{sT2}, s{sT2}, 5\ns_lshl2_add_u32 s{sKS}, s{sT2}, s{sKS}\ns_add_u32 s{sKS}, s{sKS}, 4")
        else:
            a(f"s_add_u32 s{sKS}, s{sNN}, {n-28}\ns_and_b32 s{sKS}, s{sKS}, 7")

    def w2_dma(self, n, vm):
        a = self.a
        R, s = (R_W2, sW2) if n < 28 else (R_WO, sWO)
        a(f"s_add_u32 m0, s{sRB}, {(n & 7) * 2048}")
        a(f"s_lshl_b32 s{sT0}, s{sKS}, 14\ns_add_u32 s{sT0}, s{sT0}, s{s}\ns_add_u32 s{sT1}, s{sT0}, {8192 - 1024}")
        a(f"buffer_load_dwordx4 v{self.dV}, {srd(R)}, s{sT0} offen lds")
        a(f"buffer_load_dwordx4 v{self.dV}, {srd(R)}, s{sT1} offen offset:1024 lds")
        vm.issue(("w2", n)); vm.issue(("w2", n))

    def ldB(self, n, vm):
        a = self.a
        a(f"s_lshl_b32 s{sT0}, s{sKS}, 10")
        for bp in range(2):
            s = (sH0, sH1)[bp] if n < 28 else (sO0, sO1)[bp]
            a(f"s_add_u32 s{sT1}, s{sT0}, s{s}")
            a(f"buffer_load_dwordx4 {vr(self.dH+8*(n&15)+4*bp,4)}, v2, {srd(R_WS)}, s{sT1} offen sc1")
            vm.issue(("b", n))

    def resid_load(self, vm):
        a = self.a
        for i in range(4 if "nores" not in self.o.hack else 0):
            a(f"buffer_load_dwordx2 {vr(self.dXR+2*i,2)}, v{self.dXA}, {srd(R_X)}, s{sOUT} offen offset:{16*i}")
            vm.issue("xres")

    def g_main(self):
        a, o = self.a, self.o
        vm = self.vmG
        gT, gA, gC, gX, gE, gP = self.gT, self.gA, self.gC, self.gX, self.gE, self.gP
        ONE, TMP, FLG, MY = self.gONE, self.gTMP, self.gFL, self.gMY
        a("L_g_bar1:")
        if o.direct:
            self.q_direct(vm)
        else:
            a(f"v_mov_b32 v{self.vEP}, s{sE}")
            if o.dyn:
                L, L2 = self.lab("nopk"), self.lab("slot")
                a(f"s_cmp_lg_u32 s{sW}, 0\ns_cbranch_scc1 {L}")
                a(f"v_lshlrev_b32 v16, 7, v1\ns_mov_b32 s{sT3}, {XT}")
                q0 = list(vm.q)
                self.peek_global(16, f"s{sT3}", self.vPK, 2, vm, "xt", 9)
                a("s_barrier")
                a(f"s_setprio {o.prioGhi}")
                self.make_slot(vm)
                a(f"s_branch {L2}")
                a(f"{L}:")
                vm.q = q0
                a("s_barrier")
                a(f"s_setprio {o.prioGhi}")
                a(f"{L2}:")
                self.stamp(2)
                self.get_slot(18, 19)
            else:
                a("s_barrier")
                self.stamp(2)
                a(f"s_setprio {o.prioGhi}")
            if o.wq_at == "bar1":
                self.wq_dma(vm)
            if o.code_pf == 2:
                self.code_prefetch(vm)
            if o.t0 == 2:
                self.first_slot_touch(vm)
            self.g_late()
            if o.t0 == 3:
                a(f"v_and_b32 v18, 1, v1\nv_lshlrev_b32 v18, 2, v18\nv_add_u32 v18, {LFL+L_PUB}, v18")
                self.spin_lds(18, 19, "v_cmp_gt_u32 vcc, 1, v19", sleep=1)
                self.first_slot_touch(vm)
            if o.ring01 == "pub":
                a(f"v_and_b32 v18, 1, v1\nv_lshlrev_b32 v18, 2, v18\nv_add_u32 v18, {LFL+L_PUB}, v18")
                self.spin_lds(18, 19, "v_cmp_gt_u32 vcc, 1, v19", sleep=1)
                self.ring_fill(vm, 0, 2)
            if o.wq_at != "pub":
                vm.wait("wq")
                a(f"ds_write_b32 v{MY}, v{ONE} offset:{L_WQF}")
            self.stamp(3)
            self.poll_global(16, f"s{sFXA}", 19, 1, vm, lanes=8)
            a(f"ds_write_b32 v{MY}, v{ONE} offset:{L_GATE}")
            self.stamp(4)
            for s in range(32):
                if s & 3 == 0:
                    a(f"s_add_u32 s{sT0}, s{sROT}, {s>>2}\ns_and_b32 s{sT0}, s{sT0}, 7\ns_lshl_b32 s{sT0}, s{sT0}, 12\ns_add_u32 s{sT0}, s{sT0}, s{sXB}")
                a(f"buffer_load_dwordx4 {vr(gX+4*s,4)}, v2, {srd(R_WS)}, s{sT0} offen offset:{1024*(s&3)} sc1")
                vm.issue(("x", s))
                if s == o.xmid:
                    self.ring_fill(vm, 0, 1)
            if o.ring01 == "afterx":
                self.ring_fill(vm, 0, 1)
            if o.wq_at == "pub":
                a(f"v_and_b32 v18, 1, v1\nv_lshlrev_b32 v18, 2, v18\nv_add_u32 v18, {LFL+L_WQF}, v18")
                self.spin_lds(18, TMP, f"v_cmp_gt_u32 vcc, 1, v{TMP}")
            else:
                self.spin_lds(FLG, TMP, f"v_cmp_gt_u32 vcc, 1, v{TMP}", off=L_WQF)
            for s in range(4):
                self.tr_pair(gA + 4 * s, self.gTQ, 1024 * s, 256)
            for s in range(32):
                left = min(3, 31 - s)
                vm.wait(("x", s), f"lgkmcnt({2*left})")
                c = "0" if s == 0 else vr(gC, 16)
                a(f"v_mfma_f32_32x32x16_bf16 {vr(gC,16)}, {vr(gA+4*(s%4),4)}, {vr(gX+4*s,4)}, {c}")
                if s + 4 < 32:
                    self.tr_pair(gA + 4 * (s % 4), self.gTQ, 1024 * (s + 4), 256)
                if s == o.r0at:
                    self.ring_fill(vm, 0, 1)
        if not o.gtrace and not o.gs:
            self.stamp(5)
        a(f"s_lshl_b32 s{sT0}, s{sW}, 11\ns_add_u32 s{sT0}, s{sT0}, {QX}")
        a(f"v_add_u32 v18, s{sT0}, v2")
        a("s_nop 8")
        for i in range(8):
            a(f"v_pk_mul_f32 {vr(gC+2*i,2)}, {vr(gC+2*i,2)}, s[{sQS}:{sQS+1}]")
        for i in range(8):
            a(f"v_cvt_pk_bf16_f32 v{gP+i}, v{gC+2*i}, v{gC+2*i+1}")
        a(f"ds_write_b128 v18, {vr(gP,4)}")
        a(f"ds_write_b128 v18, {vr(gP+4,4)} offset:1024")
        a(f"v_mul_f32 v{gE}, v{gC}, v{gC}\nv_mul_f32 v{gE+1}, v{gC+8}, v{gC+8}")
        for i in range(1, 8):
            a(f"v_fmac_f32 v{gE}, v{gC+i}, v{gC+i}\nv_fmac_f32 v{gE+1}, v{gC+8+i}, v{gC+8+i}")
        a("s_nop 1")
        a(f"v_permlane32_swap_b32 v{gE}, v{gE+1}")
        a(f"v_add_f32 v{gE}, v{gE}, v{gE+1}")
        a(f"v_and_b32 v{gE}, 0x7fffffff, v{gE}")
        self.reduce64("v_max_u32", gE, gE + 1)
        a("s_waitcnt lgkmcnt(0)")
        a(f"ds_write_b32 v{MY}, v{gE} offset:{L_QMAX}")
        self.stamp(6)
        if o.only == "A":
            a(f"v_mov_b32 v{TMP}, 18\nds_write_b32 v{MY}, v{TMP}\ns_waitcnt vmcnt(0) lgkmcnt(0)")
            self.stamp_flush()
            a("s_endpgm")
            return
        if o.ring01 == "apub":
            self.spin_lds(FLG, TMP, f"v_cmp_gt_u32 vcc, 1, v{TMP}", off=L_R0)
        elif o.astart:
            self.spin_lds(MY, TMP, f"v_cmp_gt_u32 vcc, 1, v{TMP}", sleep=1, off=L_ASTART)
        if o.direct and o.ringat != "stg":
            self.spin_lds(FLG, TMP, f"v_cmp_gt_u32 vcc, 1, v{TMP}", off=L_STG)
        if not (o.direct and o.ringat == "stg"):
            self.ring_fill(vm, {"pub": 2, "afterx": 1, "none": 1 if (o.r0at >= 0 or o.xmid >= 0) else 0, "apub": o.fill}[o.ring01], o.fill)
        LA = 4
        lg = Lg(a)
        items = []
        for b in range(16):
            for ks in range(4):
                for mt in range(4 if b < 8 else 3):
                    items.append((len(items), b, ks, mt))
        def mf(it):
            (n, b, ks, mt) = it
            kk = 4 * (b & 7) + ks
            c = "0" if kk == 0 else vr(gC + 16 * mt, 16)
            if "nomfma" in o.hack and kk > 0:
                return
            hi = o.boost and n % o.boost == o.boost - 1
            if hi:
                a(f"s_setprio {o.prioGhi}")
            a(f"v_mfma_f32_32x32x16_bf16 {vr(gC+16*mt,16)}, {vr(gA+4*(n%LA),4)}, {vr(gX+4*kk,4)}, {c}")
            if hi:
                a(f"s_setprio {self.curp}")
        def rd(it):
            (n, b, ks, mt) = it
            if "nolds" in o.hack and n >= LA:
                return
            self.tr_pair(gA + 4 * (n % LA), gT + mt, (b & 3) * 16384 + ks * 4096, 512)
            lg.issue(("r", n)); lg.issue(("r", n))
        def signal():
            self.jitter()
            a(f"s_mov_b64 exec, 1\nds_add_u32 v{MY}, v{ONE}\ns_mov_b64 exec, -1"); lg.issue("sig")
        def peek():
            a(f"ds_read_b32 v{TMP}, v{FLG}"); lg.issue("peek")
        def check(target):
            waitcnt(a, lg=lg, ltag="peek")
            a(f"s_setprio {o.prioGhi}")
            self.spin_lds(FLG, TMP, f"v_cmp_gt_u32 vcc, {target}, v{TMP}", peeked=True)
            a(f"s_setprio {self.curp}")
            self.jitter()
        self.curp = o.prioGhi if o.hiup > 0 else o.prioG
        if o.direct and o.dlate:
            self.g_late_d(redo=True)
        vm.wait(("ring", 0))
        if o.ring01 == "apub" and o.astart:
            self.spin_lds(MY, TMP, f"v_cmp_gt_u32 vcc, 1, v{TMP}", sleep=1, off=L_ASTART)
        if o.fill < 3:
            self.ring_fill(vm, o.fill, 3)
        signal(); peek(); check(1)
        if not o.batch:
            for it in items[:LA]:
                rd(it)
        extras = {}
        def at(n, f):
            extras.setdefault(n, []).append(f)
        first = {b: min(n for (n, bb, _, _) in items if bb == b) for b in range(16)}
        def flag_h0():
            assert vm.need(("h", 3)) is None
            self.flag_store(self.vEP, 1, self.vZ, f"s{sFH}"); vm.issue("fl")
        def peek_h(tag):
            a(f"s_mov_b32 s{sT3}, {FH}")
            self.peek_global(self.dF, f"s{sT3}", self.vPK, 2, vm, tag, 8)
        def check_h(tag, word):
            a(f"s_setprio {o.prioGhi}")
            self.poll_global(self.dF, f"s{sT3}", self.vPK, 2, vm, lanes=8, word=word, first_issued=tag)
            a(f"s_setprio {self.curp}")
        self.peek_h, self.check_h = peek_h, check_h
        for b in range(16):
            f0 = first[b]
            if b < 15:
                at(f0 + 1, lambda b=b: (vm.wait(("ring", b + 1)), signal()))
                at(f0 + 2, peek)
                at(f0 + 5, lambda b=b: check(b + 2))
            if (0 if o.fill < 4 else 1) <= b <= 12 and "nodma" not in o.hack:
                for k, part in enumerate(self.ring_dma_parts(b + 3, vm)):
                    at(f0 + 6 + k, part)
            if b == 10:
                at(f0 + 3, flag_h0)
            if b == 12:
                at(f0 + 10, lambda: peek_h("pk0"))
            LD = o.LD
            if b == 13:
                at(f0 + 11, lambda: check_h("pk0", 0))
            if b == 14:
                if not o.w2pre:
                    for k in range(min(LD, 4)):
                        at(f0 + 3 + 2 * k + (k > 0), lambda n=k: (self.kstep_index(n), self.w2_dma(n, vm)))
                at(f0 + 11, lambda: self.resid_load(vm))
            if b == 15 and not o.w2pre:
                for k in range(4, LD):
                    at(f0 + k - 3, lambda n=k: (self.kstep_index(n), self.w2_dma(n, vm)))
            nh = o.hpre or LD
            if b == 14 and nh > 4:
                for k in range(nh - 4):
                    at(f0 + 1 + 2 * k, lambda n=k: (self.kstep_index(n), self.ldB(n, vm)))
            if b == 15:
                for k in range(max(0, nh - 4), nh):
                    at(f0 + 2 * (k - max(0, nh - 4)) + 2, lambda n=k: (self.kstep_index(n), self.ldB(n, vm)))
        self.w2_done = 0
        pre8 = 0
        if o.w2pre:
            for spec in str(o.w2pre).split("+"):
                sb, cnt = map(int, spec.split("x"))
                for k in range(cnt):
                    n = self.w2_done; self.w2_done += 1
                    if sb == 8:
                        pre8 += 1
                    else:
                        at(first[sb] + (10, 11, 0, 3)[k // 1 % 4] if cnt <= 4 else first[sb] + k, lambda n=n: (self.kstep_index(n), self.w2_dma(n, vm)))
        n_pre8_first = self.w2_done - sum(int(x.split("x")[1]) for x in str(o.w2pre).split("+") if x and int(x.split("x")[0]) >= 8) if o.w2pre else 0
        a(f"s_setprio {self.curp}")
        if o.batch:
            BUF = (gA, 16)
            steps = [(b, ks) for b in range(16) for ks in range(4)]
            def nm_of(b): return 4 if b < 8 else 3
            def rdk(q):
                b, ks = steps[q]
                for mt in range(nm_of(b)):
                    if mt == nm_of(b) - 1 and len(lg.q) + 2 > 15:
                        n_keep = 13
                        a(f"s_waitcnt lgkmcnt({n_keep})"); lg.q = lg.q[len(lg.q) - n_keep:]
                    self.tr_pair(BUF[q & 1] + 4 * mt, gT + mt, (b & 3) * 16384 + ks * 4096, 512)
                    lg.issue(("k", q)); lg.issue(("k", q))
            rdk(0); rdk(1)
            for q, (b, ks) in enumerate(steps):
                if ks == 0:
                    if b == o.hiup and b > 0:
                        self.curp = o.prioG
                        a(f"s_setprio {self.curp}")
                    self.trv = 28
                    self.trace_pt(vm, b)
                    if o.gtrace and b in (1, 4, 8, 12):
                        self.stamp({1: 1, 4: 2, 8: 3, 12: 5}[b])
                if q == 32:
                    a(f"s_setprio {o.prioGhi}")
                    for k in range(pre8):
                        self.kstep_index(n_pre8_first + k)
                        self.w2_dma(n_pre8_first + k, vm)
                    a("s_nop 7")
                    self.silu_store(0, 4, vm)
                    a(f"s_setprio {self.curp}")
                    rdk(33)
                    if o.gtrace:
                        self.stamp(4)
                waitcnt(a, lg=lg, ltag=("k", q))
                kk = 4 * (b & 7) + ks
                for mt in range(nm_of(b)):
                    c = "0" if kk == 0 else vr(gC + 16 * mt, 16)
                    a(f"v_mfma_f32_32x32x16_bf16 {vr(gC+16*mt,16)}, {vr(BUF[q&1]+4*mt,4)}, {vr(gX+4*kk,4)}, {c}")
                nb = nm_of(b)
                lo, hi = first[b] + ks * nb, first[b] + (ks + 1) * nb
                late = []
                for n in range(lo, hi):
                    for f in extras.get(n, []):
                        late.append(f)
                if ks == 2 and b < 15:
                    pass
                if q + 2 < len(steps) and q + 2 != 33:
                    rdk(q + 2)
                for f in late:
                    f()
        else:
            for it in items:
                n, b = it[0], it[1]
                if n == first[b] and b == o.hiup and b > 0:
                    self.curp = o.prioG
                    a(f"s_setprio {self.curp}")
                if n == first[b]:
                    self.trv = 28
                    self.trace_pt(vm, b)
                if o.gs and n == first[b] and o.gs <= b < o.gs + 5:
                    self.stamp(b - o.gs + 1)
                if o.gtrace and n == first[b] and b in (1, 4, 8, 12):
                    self.stamp({1: 1, 4: 2, 8: 3, 12: 5}[b])
                if n == first[8]:
                    a(f"s_setprio {o.prioGhi}")
                    for k in range(pre8):
                        self.kstep_index(n_pre8_first + k)
                        self.w2_dma(n_pre8_first + k, vm)
                    a("s_nop 7")
                    self.silu_store(0, 4, vm)
                    a(f"s_setprio {self.curp}")
                    if o.gtrace:
                        self.stamp(4)
                waitcnt(a, lg=lg, ltag=("r", n))
                mf(it)
                if n + LA < len(items):
                    rd(items[n + LA])
                for f in extras.get(n, []):
                    f()
        signal()
        a(f"s_setprio {o.prioGhi}")
        a("s_nop 7\ns_nop 1")
        self.silu_store(4, 3, vm)
        self.stamp(7)
        self.down(vm)

    def q_direct(self, vm):
        a, o = self.a, self.o
        gA, gC, gX = self.gA, self.gC, self.gX
        TMP, FLG = self.gTMP, self.gFL
        if o.ringat == "stg":
            self.spin_lds(FLG, TMP, f"v_cmp_gt_u32 vcc, 1, v{TMP}", off=L_STG)
            self.ring_fill(vm, 0, o.fill)
        self.stamp(3)
        def norm(s):
            for i in range(4):
                r, t = gX + 4 * s + i, 16 + 2 * i + 8 * (s & 1)
                a(f"v_lshlrev_b32 v{t}, 16, v{r}\nv_and_b32 v{t+1}, s{sMASK}, v{r}")
            for i in range(4):
                t = 16 + 2 * i + 8 * (s & 1)
                a(f"v_pk_fma_f32 {vr(t,2)}, {vr(t,2)}, v[32:33], v[34:35] op_sel_hi:[1,0,0]")
            for i in range(4):
                r, t = gX + 4 * s + i, 16 + 2 * i + 8 * (s & 1)
                a(f"v_cvt_pk_bf16_f32 v{r}, v{t}, v{t+1}")
        for s in range(4):
            norm(s)
        a(f"v_and_b32 v36, 1, v1\nv_lshlrev_b32 v36, 2, v36\nv_add_u32 v36, {LFL+L_WQF}, v36")
        self.spin_lds(36, TMP, f"v_cmp_gt_u32 vcc, 1, v{TMP}")
        self.stamp(4)
        for s in range(4):
            self.tr_pair(gA + 4 * s, self.gTQ, 1024 * s, 256)
        for s in range(32):
            if o.gate_at == s:
                a(f"ds_write_b32 v{self.gMY}, v{self.gONE} offset:{L_GATE}")
            if s + 4 < 32:
                norm(s + 4)
            left = min(3, 31 - s)
            a(f"s_waitcnt lgkmcnt({0 if o.gate_at == s else 2*left})")
            c = "0" if s == 0 else vr(gC, 16)
            a(f"v_mfma_f32_32x32x16_bf16 {vr(gC,16)}, {vr(gA+4*(s%4),4)}, {vr(gX+4*s,4)}, {c}")
            if s + 4 < 32:
                self.tr_pair(gA + 4 * (s % 4), self.gTQ, 1024 * (s + 4), 256)

    def silu_store(self, mt0, nm, vm):
        a = self.a
        gC, gE, gP = self.gC, self.gE, self.gP
        def op2(op, d, x, y):
            if self.o.nopk:
                for i in range(8):
                    if isinstance(y, tuple):
                        a(f"v_{op}_f32 v{d+i}, s{y[1]}, v{x+i}")
                    else:
                        a(f"v_{op}_f32 v{d+i}, v{x+i}, v{y+i}")
            else:
                for i in range(4):
                    yy = f"s[{y[1]}:{y[1]+1}]" if isinstance(y, tuple) else vr(y + 2 * i, 2)
                    a(f"v_pk_{op}_f32 {vr(d+2*i,2)}, {vr(x+2*i,2)}, {yy}")
        for m in range(nm):
            G, U, E, P = gC + 16 * m, gC + 16 * m + 8, gE, gP + 4 * (m & 1)
            op2("mul", E, G, ("s", sNL2))
            for i in range(8):
                a(f"v_exp_f32 v{E+i}, v{E+i}")
            op2("mul", G, G, U)
            op2("add", E, E, ("s", sONE))
            for i in range(8):
                a(f"v_rcp_f32 v{E+i}, v{E+i}")
            if m == 0 and mt0:
                a(f"s_add_u32 s{sHS}, s{sHS}, {1024*mt0}")
            else:
                a("s_nop 0")
            op2("mul", G, G, E)
            for i in range(4):
                a(f"v_cvt_pk_bf16_f32 v{P+i}, v{G+2*i}, v{G+2*i+1}")
            a(f"buffer_store_dwordx4 {vr(P,4)}, v2, {srd(R_WS)}, s{sHS} offen offset:{1024*m} sc1")
            vm.issue(("h", mt0 + m))
            if self.o.dup & 2:
                a(f"buffer_store_dwordx4 {vr(P,4)}, v2, {srd(R_WS)}, s{sHS} offen offset:{1024*m} {self.o.dupf}")
                vm.issue(("h", mt0 + m))

    def red_addr(self):
        a = self.a
        a(f"v_add_u32 v16, s{sRB}, v2")
        for u in range(1, 4):
            a(f"s_xor_b32 s{sT0}, s{sW}, {u}\ns_lshl_b32 s{sT0}, s{sT0}, 14\ns_add_u32 s{sT0}, s{sT0}, {RB0 + (u-1)*4096}")
            a(f"v_add_u32 v{16+u}, s{sT0}, v2")
        a(f"v_mov_b32 v{self.gTMP}, 18")

    def down(self, vm):
        a, o = self.a, self.o
        gA, gC, gP, dT, dH = self.gA, self.gC, self.gP, self.dT, self.dH
        def rdA(n):
            buf = gA + 8 * (n & 1)
            self.tr_pair(buf, dT, (n & 7) * 2048, 1024)
            self.tr_pair(buf + 4, dT + 1, (n & 7) * 2048, 1024)
        LD = o.LD
        early_gate = 2 <= o.n0 <= 16 - LD
        assert o.n0 < 0 or o.n0 >= 2
        nxt = {"w": self.w2_done if o.w2pre else LD, "b": o.hpre or LD}
        def fill(wmax, bmax):
            while nxt["w"] <= wmax or nxt["b"] <= bmax:
                dw, db = nxt["w"] <= wmax, nxt["b"] <= bmax
                m = min(nxt["w"] if dw else 99, nxt["b"] if db else 99)
                self.kstep_index(m)
                if dw and nxt["w"] == m:
                    self.w2_dma(m, vm); nxt["w"] += 1
                if db and nxt["b"] == m:
                    self.ldB(m, vm); nxt["b"] += 1
        if o.fastred:
            self.red_addr()
            a(f"v_lshrrev_b32 v20, 5, v1\nv_lshl_add_u32 v20, v20, 3, v{self.dXA}\nv_mov_b32 v21, 18")
        vm.wait("xres")
        rdA(0)
        for i in range(8):
            a(f"v_lshlrev_b32 v{gC+2*i}, 16, v{self.dXR+i}")
            a(f"v_and_b32 v{gC+2*i+1}, s{sMASK}, v{self.dXR+i}")
        self.stamp(8)
        self.curp = o.prioGhi if o.hidown > 0 else o.prioG
        a(f"s_setprio {self.curp}")
        def step(n, nP):
            if n == o.hidown and n > 0:
                self.curp = o.prioG
                a(f"s_setprio {self.curp}")
            self.trv = 28
            self.trace_pt(vm, 17 + n)
            if n % 3 == 0:
                self.jitter()
            if o.dtrace and n in (4, 8, 13, 16, 22):
                self.a(f"s_memrealtime s[{sTS+(1,2,3,4,5)[(4,8,13,16,22).index(n)]-((sTS+(1,2,3,4,5)[(4,8,13,16,22).index(n)])&1)}:{sTS+(1,2,3,4,5)[(4,8,13,16,22).index(n)]-((sTS+(1,2,3,4,5)[(4,8,13,16,22).index(n)])&1)+1}]" if False else "s_nop 0")
                self.stamp({4: 1, 8: 2, 13: 3, 16: 4, 22: 5}[n])
            if n == nP - 3 and nP < 28:
                a(f"s_mov_b32 s{sT3}, {FO}")
                self.peek_global(self.dF, f"s{sT3}", self.vPK, 1, vm, "pko", 8)
            if n == 28 and nP < 28:
                self.stamp(9)
            if n == nP:
                a(f"s_setprio {o.prioGhi}")
                if nP == 28:
                    self.stamp(9)
                    a(f"s_mov_b32 s{sT3}, {FO}")
                    self.poll_global(self.dF, f"s{sT3}", self.vPK, 1, vm, lanes=8)
                else:
                    assert nxt["b"] > 27 and nP >= 20
                    self.poll_global(self.dF, f"s{sT3}", self.vPK, 1, vm, lanes=8, first_issued="pko")
                self.stamp(10)
                for m in range(28, 36):
                    self.kstep_index(m)
                    self.ldB(m, vm)
            if n == o.n0:
                if early_gate:
                    fill(min(n + 7, 35), min(n + 15, 15))
                    a(f"s_mov_b32 s{sT3}, {FH}\ns_setprio {o.prioGhi}")
                    self.poll_global(self.dF, f"s{sT3}", self.vPK, 2, vm, lanes=8, word=1, sleep=2)
                fill(min(n + 7, 35), min(n + 15, 27))
                a(f"s_setprio {o.prioGhi}")
                self.spin_lds(self.gMY, self.gTMP, f"v_cmp_gt_u32 vcc, 1, v{self.gTMP}", sleep=2, off=L_ADONE)
            if n + 1 < 36:
                vm.wait(("w2", n + 1))
                rdA(n + 1)
                vm.wait(("b", n), "lgkmcnt(4)")
            else:
                vm.wait(("b", n), "lgkmcnt(0)")
            buf = gA + 8 * (n & 1)
            for u in ((1, 3, 2, 0) if (o.fastred and n == 35) else (0, 1, 3, 2)):
                ap, bp = u & 1, u >> 1
                c = "0" if (n == 0 and u) else vr(gC + 16 * u, 16)
                ui = (0, 1, 3, 2).index(u)
                if o.boostd and n < 28 and ui == 4 - o.boostd:
                    a(f"s_setprio {o.prioGhi}")
                a(f"v_mfma_f32_32x32x16_bf16 {vr(gC+16*u,16)}, {vr(buf+4*ap,4)}, {vr(dH+8*(n&15)+4*bp,4)}, {c}")
                if o.boostd and n < 28 and ui == 3:
                    a(f"s_setprio {self.curp}")
            if n == 1:
                vm.wait(("h", 6))
                self.flag_store(self.vEP, 1, self.vZ, f"s{sFH}", off=4); vm.issue("fl")
            pk1 = o.pk1 if o.deep >= 0 else 16 - LD - 3
            if n == pk1 and not early_gate:
                self.peek_h("pk1")
            if n == pk1 + 3 and not early_gate:
                self.check_h("pk1", 1)
            if o.n0 >= 0 and n >= o.n0:
                fill(min(n + 8, 35), min(n + 16, 27))
            elif o.deep >= 0 and n >= o.deep:
                bcap = 27 if n >= pk1 + 3 else 15
                fill(min(n + 8, 35, nxt["w"] - 1 + o.dstep), min(n + 16, bcap, nxt["b"] - 1 + o.dstep))
            elif o.LDW == 8:
                fill(min(n + 8, 35), min(n + LD, 27))
            else:
                fill(min(n + (o.LDW or LD), 27), min(n + LD, 27))
                if 20 <= n < 28:
                    fill(n + 8 if nxt["w"] >= 28 else -1, -1)
        if not o.nE:
            for n in range(36):
                step(n, o.nP)
        else:
            import copy
            for n in range(o.nE):
                if n == o.nE - 3:
                    a(f"s_mov_b32 s{sT3}, {FO}")
                    self.peek_global(self.dF, f"s{sT3}", self.vPK, 1, vm, "pko", 8)
                step(n, 99)
            assert nxt["b"] > 27
            Ll, Lj = self.lab("olate"), self.lab("ojoin")
            vm.wait("pko")
            a(f"s_setprio {o.prioGhi}\ns_mov_b64 exec, 0xff\nv_cmp_ne_u32 vcc, s{sE}, v{self.vPK}\ns_mov_b64 exec, -1\ns_setprio {self.curp}")
            a(f"s_cbranch_vccnz {Ll}")
            q0, nx0, cp0 = list(vm.q), dict(nxt), self.curp
            self.stamp(10)
            for m in range(28, 36):
                self.kstep_index(m)
                self.ldB(m, vm)
            for n in range(o.nE, 36):
                if n == 28:
                    self.stamp(9)
                step(n, 99)
            a(f"s_branch {Lj}")
            a(f"{Ll}:")
            vm.q = q0; nxt.update(nx0); self.curp = cp0
            for n in range(o.nE, 36):
                step(n, 28)
            a(f"{Lj}:")
        self.stamp(11)
        if not o.fastred:
            self.red_addr()
            a("s_nop 1")
        else:
            a("s_nop 7\ns_nop 0")
        for u in ((1, 3, 2) if o.fastred else (1, 2, 3)):
            for q in range(4):
                a(f"ds_write_b128 v16, {vr(gC+16*u+4*q,4)} offset:{(u-1)*4096+q*1024}")
        if not o.fastred:
            a(f"v_lshrrev_b32 v20, 5, v1\nv_lshl_add_u32 v20, v20, 3, v{self.dXA}")
        a("s_waitcnt lgkmcnt(0)")
        a(f"ds_write_b32 v{self.gMY}, v{21 if o.fastred else self.gTMP}")
        self.spin_lds(self.gFL, self.gTMP, f"v_cmp_gt_u32 vcc, 18, v{self.gTMP}")
        for u in range(1, 4):
            for q in range(4):
                a(f"ds_read_b128 {vr(gC+16*u+4*q,4)}, v{16+u} offset:{q*1024}")
        for u in range(1, 4):
            a(f"s_waitcnt lgkmcnt({4*(3-u)})")
            for i in range(8):
                a(f"v_pk_add_f32 {vr(gC+2*i,2)}, {vr(gC+2*i,2)}, {vr(gC+16*u+2*i,2)}")
        for i in range(8):
            a(f"v_cvt_pk_bf16_f32 v{gP+i}, v{gC+2*i}, v{gC+2*i+1}")
        a("s_nop 0")
        for k in (0, 4):
            a(f"v_permlane32_swap_b32 v{gP+k}, v{gP+k+2}\nv_permlane32_swap_b32 v{gP+k+1}, v{gP+k+3}")
        a(f"buffer_store_dwordx4 {vr(gP,4)}, v20, {srd(R_OUT)}, s{sOUT} offen {o.ost}")
        a(f"buffer_store_dwordx4 {vr(gP+4,4)}, v20, {srd(R_OUT)}, s{sOUT} offen offset:32 {o.ost}")
        self.stamp(12)
        if o.ts:
            a("s_waitcnt vmcnt(0)")
            self.stamp(13)
        self.stamp_flush()
        a("s_endpgm")

    def build(self):
        a = self.a
        self.prologue()
        self.a_main()
        self.g_early()
        self.g_main()
        self.a_slow()
        a("L_end:")
        a("s_endpgm")
        a("L_code_end:")
        return a


HEADER = """; out = x + MQA(LN(x)) + SwiGLU(LN(x)), S=2048 D=512 H=32 Dh=16 F=1792, one persistent launch.
;
;  phase 0  every workgroup normalises 8 rows, projects them to K and V and publishes xn, K, V in MFMA
;           LDS ring with transposing reads), SwiGLU, publish h; then a 64x64 output tile: h @ w2 + o @ wo + x.
;  hand-offs between workgroups: sc1 stores, vmcnt(0), then a flag word equal to this launch's epoch (a hash of the
;  slots: workgroup ids are mapped one-to-one to work slots with the help of the die ids nine workgroups publish;
; @launch grid=(256,1,1) block=(512,1,1) lds={lds}
.amdgcn_target "amdgcn-amd-amdhsa--gfx950"
.text
.globl {name}
.p2align 8
.type {name},@function
{name}:
"""
FOOTER = """.section .rodata,"a"
.p2align 6
.amdhsa_kernel {name}
  .amdhsa_next_free_vgpr 256
  .amdhsa_next_free_sgpr 102
  .amdhsa_accum_offset 256
  .amdhsa_group_segment_fixed_size 0
  .amdhsa_kernarg_size 96
  .amdhsa_user_sgpr_count 2
  .amdhsa_user_sgpr_kernarg_segment_ptr 1
  .amdhsa_system_sgpr_workgroup_id_x 1
.end_amdhsa_kernel
"""

def generate(check=True, **kw):
    g = Gen(**kw)
    a = g.build()
    if check:
        errs = check_hazards(a.lines) + check_waits(a.lines)
        for e in errs[:6]:
            print(e, file=sys.stderr)
        if errs:
            print(f"{len(errs)} problems", file=sys.stderr)
    return HEADER.format(name=NAME, lds=LDS_SIZE) + a.text() + FOOTER.format(name=NAME)

if __name__ == "__main__":
    out = "parallel_sum__grouped_kv_mqa__glu_gated_swiglu__prompt.s"
    kw = {}
    args = sys.argv[1:]
    i = 0
    while i < len(args):
        x = args[i]
        if x == "-o":
            out = args[i + 1]; i += 2
        elif "=" in x:
            k, v = x.split("=", 1)
            try:
                v = int(v)
            except ValueError:
                pass
            kw[k] = v; i += 1
        else:
            kw[x.lstrip("-")] = True; i += 1
    txt = generate(**kw)
    open(out, "w").write(txt)
    print("wrote", out, len(txt), "bytes", kw)
```

```python
import sys, struct, argparse
from asmlib import Asm, Vm, Lg, waitcnt, check_hazards, check_waits

NAME = "parallel_sum__grouped_kv_mqa__glu_gated_swiglu__prompt_kernel"

def f2u(x):
    return struct.unpack("<I", struct.pack("<f", x))[0]

FL = 0x0
F0 = 0x1000
FH = 0x10000
FO = 0x30000
FX = 0x50000
TS = 0x60000
XN = 0x100000
KF = 0x300000
VF = 0x310000
OF = 0x400000
HF = 0x600000
WS_SIZE = 0x1000000
RING = 0
WQI = 65536
WKV = 98304
XROW = 131072
PITCH = 1040
QX = 140288
LFL = 148480
L_GCNT, L_QMAX, L_KMAX, L_MFL, L_WQF, L_VFL, L_PUB, L_GATE, L_ADONE, L_ASTART, L_ROW, L_STG, L_R0 = 0, 16, 32, 48, 64, 80, 88, 96, 112, 128, 144, 160, 176
LDS_SIZE = 163840
RB0 = 65536

R_X, R_WS, R_WQ, R_WK, R_WV, R_W1, R_W3, R_W2, R_WO, R_OUT = [4 * i + 4 for i in range(10)]
sW, sG, sJ, sP, sE = 44, 45, 46, 47, 48
sMASK = 49
sT0, sT1, sT2, sT3, sT4, sT5 = 50, 51, 52, 53, 54, 55
sCNT = 56
sX8, sI = 57, 58
sROT = 59
sXM = 60
sNL2 = 62
sONE = 64
sQS = 66
sBASE, sW4096 = 68, 69
sH0, sH1, sO0, sO1 = 70, 71, 72, 73
sW2, sWO, sRB, sOUT = 74, 75, 76, 77
sK, sWA = 78, 79
sPC = 80
sTS = 84
sPCX = 98
sIDX, sKB, sFH = 3, 100, 101
sRX, sRY, sNN, sKS = 0, 1, 2, 80
sHS, sXB, sFXA = 81, 82, 83

def srd(r):
    return f"s[{r}:{r+3}]"
def vr(a, n):
    return f"v[{a}:{a+n-1}]" if n > 1 else f"v{a}"

LOG2E = 1.4426950408889634
THRESH2 = 60.0 * 60.0
SPIN_G = 4000
SPIN_L = 400000


class Gen:
    def __init__(self, **o):
        d = dict(ts=False, slow=False, prioA=1, prioG=0, prioGhi=2, code_pf=1, rotup=1, rot=1, n0=-1, asleep=4,
                 xnt="nt", wq_at="pub", ring01="none", gtrace=False, only="", dbg=False, amap=2, lnfast=1, peel=1, kvlate=0, astart=1, atouch=0, xoff=1, trace=0, LD=3, fill=1, p0=13, t0=0, t1=1, tx=1, tnt='', vpos=2, kpos=1, hiup=0, hidown=0, probe=-1, pw=0, pm=20, ost='', direct=0, ringat='stg', sdepth=4, aprio0=3, wqw=0, gate_at=0, dlate=1, gprio0=1, hack='', nxor=0, txor=0, tk=1, pfshare=32, vt=4, deep=-1, pk1=4, skiplast=0, dstep=2, w2pre='8x4+12x2+13x2', hpre=0, LDW=8, dtrace=0, batch=0, nP=28, fastred=1, mprio=0, lastprio=0, nE=0, twq=0, gs=0, dup=0, dupf='')
        d.update(o)
        if d["direct"]:
            for k, v in dict(amap=2, kvlate=0, astart=0).items():
                if k not in o:
                    d[k] = v
        self.o = type("O", (), d)
        self.a = Asm()
        self.uid = 0

    def lab(self, s):
        self.uid += 1
        return f"L_{s}_{self.uid}"

    def stamp(self, i):
        if self.o.ts:
            self.a(f"s_memrealtime s[{sPCX}:{sPCX+1}]\ns_waitcnt lgkmcnt(0)\ns_mov_b32 s{sTS+i}, s{sPCX}")

    def trace_pt(self, vm, idx, dyn=None):
        if not self.o.trace or (vm is not None and self.o.trace == 2):
            return
        a = self.a
        a(f"s_memrealtime s[{sPCX}:{sPCX+1}]\ns_memtime s[{sTS+10}:{sTS+11}]\ns_waitcnt lgkmcnt(0)")
        a(f"s_lshl3_add_u32 s{sTS+12}, s{sP}, s{sW}\ns_lshl_b32 s{sTS+12}, s{sTS+12}, 6\ns_add_u32 s{sTS+12}, s{sTS+12}, {idx}")
        if dyn is not None:
            a(f"s_add_u32 s{sTS+12}, s{sTS+12}, s{dyn}")
        a(f"s_lshl_b32 s{sTS+12}, s{sTS+12}, 3\ns_add_u32 s{sTS+12}, s{sTS+12}, {0xE00000}")
        a(f"s_mov_b64 exec, 1\nv_mov_b32 v{self.trv}, s{sPCX}\nv_mov_b32 v{self.trv+1}, s{sTS+10}\nv_mov_b32 v{self.trv+2}, 0")
        a(f"buffer_store_dwordx2 v[{self.trv}:{self.trv+1}], v{self.trv+2}, {srd(R_WS)}, s{sTS+12} offen\ns_mov_b64 exec, -1")
        if vm is not None:
            vm.issue("trace")

    def stamp_flush(self):
        if not self.o.ts:
            return
        a = self.a
        if self.o.probe >= 0:
            L, Lx = self.lab("probe"), self.lab("probex")
            a(f"s_lshl3_add_u32 s{sT0}, s{sP}, s{sW}\ns_cmp_lg_u32 s{sT0}, {100*8 + self.o.pw}\ns_cbranch_scc1 {Lx}")
            a(f"s_sub_u32 s{sT1}, s{sTS+self.o.probe}, s{sTS}\ns_mul_i32 s{sT1}, s{sT1}, {self.o.pm}")
            a(f"s_memrealtime s[{sPCX}:{sPCX+1}]\ns_waitcnt lgkmcnt(0)\ns_mov_b32 s{sT2}, s{sPCX}")
            a(f"{L}:\ns_memrealtime s[{sPCX}:{sPCX+1}]\ns_waitcnt lgkmcnt(0)\ns_sub_u32 s{sT3}, s{sPCX}, s{sT2}\ns_cmp_lt_u32 s{sT3}, s{sT1}\ns_cbranch_scc1 {L}")
            a(f"{Lx}:")
            return
        a(f"s_lshl_b32 s{sT0}, s{sP}, 3\ns_add_u32 s{sT0}, s{sT0}, s{sW}\ns_lshl_b32 s{sT0}, s{sT0}, 6\ns_add_u32 s{sT0}, s{sT0}, {TS}")
        a("s_mov_b64 exec, 1")
        a("v_mov_b32 v2, 0")
        for i in range(16):
            a(f"v_mov_b32 v3, s{sTS+i}")
            a(f"buffer_store_dword v3, v2, {srd(R_WS)}, s{sT0} offen offset:{4*i}")
        a("s_waitcnt vmcnt(0)")

    def reduce64(self, op, v, t):
        a = self.a
        for ctl in ("quad_perm:[1,0,3,2]", "quad_perm:[2,3,0,1]", "row_half_mirror", "row_mirror"):
            a("s_nop 1")
            a(f"{op}_dpp v{v}, v{v}, v{v} {ctl} row_mask:0xf bank_mask:0xf")
        for sw in ("v_permlane16_swap_b32", "v_permlane32_swap_b32"):
            a(f"v_mov_b32 v{t}, v{v}")
            a("s_nop 1")
            a(f"{sw} v{v}, v{t}")
            a(f"{op} v{v}, v{v}, v{t}")

    def reduce64x2(self, v0, t0, v1, t1):
        a = self.a
        a("s_nop 1")
        for ctl in ("quad_perm:[1,0,3,2]", "quad_perm:[2,3,0,1]", "row_half_mirror", "row_mirror"):
            a(f"v_add_f32_dpp v{v0}, v{v0}, v{v0} {ctl} row_mask:0xf bank_mask:0xf")
            a(f"v_add_f32_dpp v{v1}, v{v1}, v{v1} {ctl} row_mask:0xf bank_mask:0xf")
            a("s_nop 0")
        for sw in ("v_permlane16_swap_b32", "v_permlane32_swap_b32"):
            a(f"v_mov_b32 v{t0}, v{v0}\nv_mov_b32 v{t1}, v{v1}\ns_nop 0")
            a(f"{sw} v{v0}, v{t0}\n{sw} v{v1}, v{t1}")
            a(f"v_add_f32 v{v0}, v{v0}, v{t0}\nv_add_f32 v{v1}, v{v1}, v{t1}")

    def poll_global(self, vaddr, soff, vdst, ndw, vm, lanes=64, sleep=0, word=0, first_issued=None):
        a = self.a
        L, Lo, Lc = self.lab("poll"), self.lab("pollx"), self.lab("pollc")
        ld = "buffer_load_dword" if ndw == 1 else "buffer_load_dwordx2"
        if first_issued is not None:
            vm.wait(first_issued)
        a(f"s_mov_b32 s{sCNT}, 0")
        if lanes < 64:
            a(f"s_mov_b64 exec, {(1 << lanes) - 1:#x}")
        if first_issued is not None:
            a(f"v_cmp_ne_u32 vcc, s{sE}, v{vdst+word}")
            a(f"s_cbranch_vccz {Lo}")
        elif sleep:
            a(f"s_branch {Lc}")
        a(f"{L}:")
        if sleep:
            a(f"s_sleep {sleep}")
            a(f"{Lc}:")
        a(f"{ld} {vr(vdst, ndw)}, v{vaddr}, {srd(R_WS)}, {soff} offen sc1")
        a(f"s_add_u32 s{sCNT}, s{sCNT}, 1")
        a("s_waitcnt vmcnt(0)")
        a(f"v_cmp_ne_u32 vcc, s{sE}, v{vdst+word}")
        a(f"s_cmp_gt_u32 s{sCNT}, {SPIN_G}")
        a(f"s_cbranch_scc1 {Lo}")
        a(f"s_cbranch_vccnz {L}")
        a(f"{Lo}:")
        if lanes < 64:
            a("s_mov_b64 exec, -1")
        if first_issued is None:
            vm.q = []

    def peek_global(self, vaddr, soff, vdst, ndw, vm, tag, lanes):
        a = self.a
        ld = "buffer_load_dword" if ndw == 1 else "buffer_load_dwordx2"
        a(f"s_mov_b64 exec, {(1 << lanes) - 1:#x}")
        a(f"{ld} {vr(vdst, ndw)}, v{vaddr}, {srd(R_WS)}, {soff} offen sc1")
        a("s_mov_b64 exec, -1")
        vm.issue(tag)

    def spin_lds(self, vaddr, vdst, cmp, sleep=0, off=0, peeked=False):
        a = self.a
        L, Lo = self.lab("spin"), self.lab("spinx")
        o = f" offset:{off}" if off else ""
        a(f"s_mov_b32 s{sCNT}, 0")
        if peeked:
            a(cmp)
            a(f"s_cbranch_vccz {Lo}")
        a(f"{L}:")
        if sleep:
            a(f"s_sleep {sleep}")
        a(f"ds_read_b32 v{vdst}, v{vaddr}{o}")
        a(f"s_add_u32 s{sCNT}, s{sCNT}, 1")
        a("s_waitcnt lgkmcnt(0)")
        a(cmp)
        a(f"s_cmp_gt_u32 s{sCNT}, {SPIN_L}")
        a(f"s_cbranch_scc1 {Lo}")
        a(f"s_cbranch_vccnz {L}")
        a(f"{Lo}:")

    def flag_store(self, vdata, ndw, vzero, soff, off=0):
        a = self.a
        st = "buffer_store_dword" if ndw == 1 else "buffer_store_dwordx2"
        o = f" offset:{off}" if off else ""
        a("s_mov_b64 exec, 1")
        a(f"{st} {vr(vdata, ndw)}, v{vzero}, {srd(R_WS)}, {soff} offen{o} sc1")
        a("s_mov_b64 exec, -1")

    def prologue(self):
        a, o = self.a, self.o
        a("s_cmp_ge_u32 s2, 256")
        a("s_cbranch_scc1 L_end")
        if o.ts:
            a(f"s_memrealtime s[{sPCX}:{sPCX+1}]")
        for r, off in ((R_X, 0), (R_WK, 16), (R_WV, 24), (R_WS, 88), (R_WQ, 8), (R_W1, 48), (R_W3, 56), (R_W2, 64), (R_WO, 32), (R_OUT, 72)):
            a(f"s_load_dwordx2 s[{r}:{r+1}], s[0:1], {off}")
        a(f"s_getpc_b64 s[{sPC}:{sPC+1}]")
        a("L_pc:")
        a("v_lshrrev_b32 v3, 6, v0")
        a("v_and_b32 v1, 63, v0")
        a(f"v_readfirstlane_b32 s{sW}, v3")
        a("v_lshlrev_b32 v2, 4, v1")
        a(f"s_and_b32 s{sX8}, s2, 7\ns_lshr_b32 s{sI}, s2, 3")
        if o.amap == 8:
            a(f"s_and_b32 s{sT0}, s{sX8}, 1\ns_and_b32 s{sT1}, s{sI}, 7\ns_lshl3_add_u32 s{sG}, s{sT0}, s{sT1}")
            a(f"s_lshr_b32 s{sT0}, s{sX8}, 1\ns_lshr_b32 s{sT1}, s{sI}, 3\ns_lshl2_add_u32 s{sJ}, s{sT0}, s{sT1}")
        elif o.amap == 4:
            a(f"s_and_b32 s{sT0}, s{sX8}, 3\ns_and_b32 s{sT1}, s{sI}, 3\ns_lshl2_add_u32 s{sG}, s{sT0}, s{sT1}")
            a(f"s_lshr_b32 s{sT0}, s{sX8}, 2\ns_lshr_b32 s{sT1}, s{sI}, 2\ns_lshl3_add_u32 s{sJ}, s{sT0}, s{sT1}")
        else:
            a(f"s_lshr_b32 s{sT1}, s{sI}, 4\ns_lshl1_add_u32 s{sG}, s{sX8}, s{sT1}\ns_and_b32 s{sJ}, s{sI}, 15")
        a(f"s_lshl4_add_u32 s{sP}, s{sG}, s{sJ}")
        for r, size in ((R_X, 2097152), (R_WK, 16384), (R_WV, 16384), (R_WS, WS_SIZE), (R_WQ, 524288), (R_W1, 1835008),
                        (R_W3, 1835008), (R_W2, 1835008), (R_WO, 524288), (R_OUT, 2097152)):
            a(f"s_mov_b32 s{r+2}, {size}\ns_mov_b32 s{r+3}, 0x20000")
        a(f"s_lshl3_add_u32 s{sT0}, s{sP}, s{sW}\ns_lshl_b32 s{sT0}, s{sT0}, 10")
        a(f"s_mov_b32 s{sMASK}, 0xffff0000")
        a("s_waitcnt lgkmcnt(0)")
        if o.ts:
            a(f"s_mov_b32 s{sTS}, s{sPCX}")
            for i in range(1, 14):
                a(f"s_mov_b32 s{sTS+i}, 0")
        if o.direct:
            return self.prologue_direct()
        a(f"buffer_load_dwordx4 v[64:67], v2, {srd(R_X)}, s{sT0} offen {o.xnt}")
        a(f"s_load_dword s{sE}, s[{R_WS}:{R_WS+1}], {FL}")
        for r in (3, 4, 5, 6, 7, 8, 9, 17):
            a(f"v_mov_b32 v{r}, 0")
        a(f"s_cmp_lt_u32 s{sW}, 4")
        a("s_cbranch_scc1 L_g_early")
        self.a_early()
        a("L_ln:")
        self.stamp(1)
        self.layernorm()
        a(f"s_cmp_lt_u32 s{sW}, 4")
        a("s_cbranch_scc1 L_g_bar1")
        a("s_waitcnt vmcnt(0)")
        a("s_barrier")
        self.stamp(2)
        a(f"s_cmp_ge_u32 s{sW}, 6")
        a("s_cbranch_scc1 L_xn_store")
        self.kv_proj()
        if o.ring01 == "apub":
            self.a_ring0()
        a("L_xn_store:")
        self.xn_store()

    def prologue_direct(self):
        a, o = self.a, self.o
        for r in (3, 4, 5, 6, 7, 8, 9, 17):
            a(f"v_mov_b32 v{r}, 0")
        a(f"s_cmp_lt_u32 s{sW}, 4")
        a("s_cbranch_scc1 L_g_early")
        a(f"s_setprio {o.aprio0}")
        a(f"s_sub_u32 s{sWA}, s{sW}, 4\ns_lshl2_add_u32 s{sT0}, s{sP}, s{sWA}\ns_lshl_b32 s{sT0}, s{sT0}, 11")
        a(f"buffer_load_dwordx4 v[64:67], v2, {srd(R_X)}, s{sT0} offen")
        a(f"buffer_load_dwordx4 v[96:99], v2, {srd(R_X)}, s{sT0} offen offset:1024")
        a(f"s_load_dword s{sE}, s[{R_WS}:{R_WS+1}], {FL}")
        self.a_early()
        self.stamp(1)
        self.layernorm2()
        a("v_mov_b32 v10, 1")
        a(f"s_lshl_b32 s{sT0}, s{sWA}, 2\ns_add_u32 s{sT0}, s{sT0}, {LFL}\nv_mov_b32 v11, s{sT0}")
        a(f"v_and_b32 v12, 3, v1\nv_lshlrev_b32 v12, 2, v12\nv_add_u32 v12, {LFL+L_ROW}, v12")
        a("s_waitcnt vmcnt(0) lgkmcnt(0)")
        a(f"ds_write_b32 v11, v10 offset:{L_ROW}")
        a(f"s_cmp_ge_u32 s{sW}, 6")
        a("s_cbranch_scc1 L_xn_store")
        self.spin_lds(12, 13, "v_cmp_gt_u32 vcc, 1, v13")
        self.stamp(2)
        self.kv_proj()
        a("L_xn_store:")
        self.wq_by_a()

    def wq_by_a(self):
        a, o = self.a, self.o
        a(f"v_mov_b32 v10, 1\ns_lshl_b32 s{sT0}, s{sWA}, 2\ns_add_u32 s{sT0}, s{sT0}, {LFL}\nv_mov_b32 v11, s{sT0}")
        if o.wqw:
            a(f"v_mov_b32 v12, {LFL+L_VFL}")
            self.spin_lds(12, 13, "v_cmp_gt_u32 vcc, 1, v13", sleep=1)
        a("v_lshrrev_b32 v18, 2, v1\nv_lshlrev_b32 v18, 10, v18\nv_and_b32 v19, 3, v1\nv_lshl_add_u32 v17, v19, 4, v18")
        a(f"s_lshl_b32 s{sT4}, s{sJ}, 6\ns_and_b32 s{sT2}, s{sWA}, 1\ns_lshl_b32 s{sT1}, s{sT2}, 14\ns_add_u32 m0, s{sT1}, {WQI}")
        self.rot_expr(sT5)
        for n in range(16):
            if n:
                a("s_add_u32 m0, m0, 1024")
            if n & 3 == 0:
                a(f"s_lshl2_add_u32 s{sT0}, s{sT2}, s{sT5}\ns_add_u32 s{sT0}, s{sT0}, {n>>2}\ns_and_b32 s{sT0}, s{sT0}, 7\ns_lshl_b32 s{sT0}, s{sT0}, 16\ns_add_u32 s{sT0}, s{sT0}, s{sT4}")
            else:
                a(f"s_add_u32 s{sT0}, s{sT0}, 16384")
            a(f"buffer_load_dwordx4 v17, {srd(R_WQ)}, s{sT0} offen lds")
        a("s_waitcnt vmcnt(0)")
        if o.direct:
            self.stamp(3)
        a(f"ds_write_b32 v11, v10 offset:{L_WQF - 8}")

    def rot_expr(self, sd):
        a, o = self.a, self.o
        if not o.rotup:
            a(f"s_mov_b32 s{sd}, 0")
        elif o.direct:
            a(f"s_add_u32 s{sd}, s{sJ}, s{sG}\ns_and_b32 s{sd}, s{sd}, {o.rotup}")
        else:
            a(f"s_lshl1_add_u32 s{sd}, s{sJ}, s{sG}\ns_and_b32 s{sd}, s{sd}, {o.rotup}")

    def layernorm2(self):
        import re
        saved = self.a
        streams = []
        for k in range(2):
            t = Asm()
            self.a = t
            self.layernorm(row=k)
            streams.append(t.lines)
        self.a = saved
        l0, l1 = streams
        def shift(ln):
            return re.sub(r"\bv(\d+)\b|\[(\d+):(\d+)\]", lambda m: (f"v{int(m.group(1))+32}" if int(m.group(1)) >= 64 else m.group(0)) if m.group(1)
                          else (f"[{int(m.group(2))+32}:{int(m.group(3))+32}]" if int(m.group(2)) >= 64 else m.group(0)), ln)
        assert len(l0) == len(l1)
        for x, y in zip(l0, l1):
            if x.startswith("s_nop"):
                n = int(x.split()[1])
                if n >= 1 and False:
                    saved(x)
                saved("s_nop 0") if n >= 1 else None
                continue
            saved(x)
            saved(shift(y) if y.startswith(("v_", "ds_")) else y)
        saved("s_waitcnt lgkmcnt(0)")
        saved(f"s_mul_i32 s{sE}, s{sE}, 0x9E3779B1\ns_add_u32 s{sE}, s{sE}, 0x7F4A7C15")

    def layernorm(self, row=None):
        a = self.a
        X, F, D = 64, 68, 76
        sT0, sT1 = (50, 51) if not row else (52, 53)
        if row is None:
            rowaddr = f"s_mul_i32 s{sT0}, s{sW}, {PITCH}\ns_add_u32 s{sT0}, s{sT0}, {XROW}"
        else:
            rowaddr = f"s_mul_i32 s{sT0}, s{sWA}, {2*PITCH}\ns_add_u32 s{sT0}, s{sT0}, {XROW + row*PITCH}"
        for i in range(4):
            a(f"v_lshlrev_b32 v{F+2*i}, 16, v{X+i}")
            a(f"v_and_b32 v{F+2*i+1}, s{sMASK}, v{X+i}")
        if self.o.lnfast:
            a(f"v_readfirstlane_b32 s{sT1}, v{F}")
            a(rowaddr)
            for i in range(8):
                a(f"v_subrev_f32 v{D+i}, s{sT1}, v{F+i}")
            a(f"v_add_f32 v84, v{D}, v{D+1}\nv_mul_f32 v85, v{D}, v{D}\nv_add_f32 v86, v{D+2}, v{D+3}\nv_mul_f32 v87, v{D+1}, v{D+1}")
            a(f"v_add_f32 v88, v{D+4}, v{D+5}\nv_add_f32 v89, v{D+6}, v{D+7}")
            for i in range(2, 8):
                a(f"v_fmac_f32 v{85+2*(i&1)}, v{D+i}, v{D+i}")
            a("v_add_f32 v84, v84, v86\nv_add_f32 v88, v88, v89\nv_add_f32 v85, v85, v87\nv_add_f32 v84, v84, v88")
            self.reduce64x2(84, 86, 85, 87)
            a(f"v_mul_f32 v84, {f2u(1/512):#x}, v84\nv_mul_f32 v85, {f2u(1/512):#x}, v85")
            a("v_fma_f32 v85, -v84, v84, v85")
            a(f"v_add_f32 v84, s{sT1}, v84")
            a("v_max_f32 v85, 0, v85")
        else:
            a(rowaddr)
            a(f"v_add_f32 v84, v{F}, v{F+1}\nv_add_f32 v85, v{F+2}, v{F+3}\nv_add_f32 v86, v{F+4}, v{F+5}\nv_add_f32 v87, v{F+6}, v{F+7}")
            a("v_add_f32 v84, v84, v85\nv_add_f32 v86, v86, v87\nv_add_f32 v84, v84, v86")
            self.reduce64("v_add_f32", 84, 85)
            a(f"v_mul_f32 v84, {f2u(1/512):#x}, v84")
            for i in range(8):
                a(f"v_sub_f32 v{D+i}, v{F+i}, v84")
            a(f"v_mul_f32 v85, v{D}, v{D}\nv_mul_f32 v86, v{D+1}, v{D+1}")
            for i in range(2, 8):
                a(f"v_fmac_f32 v{85+(i&1)}, v{D+i}, v{D+i}")
            a("v_add_f32 v85, v85, v86")
            self.reduce64("v_add_f32", 85, 86)
            a(f"v_mul_f32 v85, {f2u(1/512):#x}, v85")
        a("v_cvt_pk_bf16_f32 v86, v84, v85")
        a(f"v_and_b32 v87, s{sMASK}, v86")
        a("v_lshlrev_b32 v86, 16, v86")
        a(f"v_add_f32 v87, {f2u(1e-5):#x}, v87")
        for i in range(2):
            a(f"v_sub_f32 v{F+i}, v{F+i}, v86")
        a("v_cvt_pk_bf16_f32 v87, v87, v87")
        a(f"v_sub_f32 v{F+2}, v{F+2}, v86")
        a("v_lshlrev_b32 v87, 16, v87")
        a(f"v_sub_f32 v{F+3}, v{F+3}, v86")
        a("v_sqrt_f32 v87, v87")
        for i in range(4, 8):
            a(f"v_sub_f32 v{F+i}, v{F+i}, v86")
        a("v_cvt_pk_bf16_f32 v87, v87, v87")
        for i in range(2):
            a(f"v_cvt_pk_bf16_f32 v{X+i}, v{F+2*i}, v{F+2*i+1}")
        a("v_lshlrev_b32 v87, 16, v87")
        a(f"v_cvt_pk_bf16_f32 v{X+2}, v{F+4}, v{F+5}")
        a("v_rcp_f32 v87, v87")
        a(f"v_cvt_pk_bf16_f32 v{X+3}, v{F+6}, v{F+7}")
        for i in range(4):
            a(f"v_lshlrev_b32 v{F+2*i}, 16, v{X+i}")
            a(f"v_and_b32 v{F+2*i+1}, s{sMASK}, v{X+i}")
        for i in range(8):
            a(f"v_mul_f32 v{F+i}, v{F+i}, v87")
        a(f"v_add_u32 v88, s{sT0}, v2")
        for i in range(4):
            a(f"v_cvt_pk_bf16_f32 v{X+i}, v{F+2*i}, v{F+2*i+1}")
        a("ds_write_b128 v88, v[64:67]")
        if row is not None:
            return
        a("s_waitcnt lgkmcnt(0)")
        a(f"s_mul_i32 s{sE}, s{sE}, 0x9E3779B1\ns_add_u32 s{sE}, s{sE}, 0x7F4A7C15")

    def kv_proj(self):
        a = self.a
        NB = 5
        def rd(s):
            b = 64 + 8 * (s % NB)
            a(f"ds_read_b128 {vr(b,4)}, v3 offset:{64*s}")
            a(f"ds_read_b64_tr_b16 {vr(b+4,2)}, v4 offset:{1024*s}")
            a(f"ds_read_b64_tr_b16 {vr(b+6,2)}, v4 offset:{1024*s+128}")
        for s in range(NB):
            rd(s)
        a(f"s_cmp_eq_u32 s{sW}, 5")
        a("s_cbranch_scc1 L_vproj")
        for var in ("K", "V"):
            if var == "V":
                a("L_vproj:")
            for s in range(16):
                left = min(NB - 1, 15 - s)
                a(f"s_waitcnt lgkmcnt({3*left})")
                b = 64 + 8 * (s % NB)
                X, Wf = vr(b, 4), vr(b + 4, 4)
                c = "0" if s == 0 else "v[112:115]"
                if var == "K":
                    a(f"v_mfma_f32_16x16x32_bf16 v[112:115], {Wf}, {X}, {c}")
                else:
                    a(f"v_mfma_f32_16x16x32_bf16 v[112:115], {X}, {Wf}, {c}")
                if s + NB < 16:
                    rd(s + NB)
            a(f"s_lshr_b32 s{sT0}, s{sP}, 2\ns_lshl_b32 s{sT0}, s{sT0}, 10\ns_and_b32 s{sT1}, s{sJ}, 3")
            if var == "K":
                a(f"s_lshl_b32 s{sT1}, s{sT1}, 7\ns_add_u32 s{sT0}, s{sT0}, s{sT1}\ns_add_u32 s{sT0}, s{sT0}, {KF}")
                a(f"s_mov_b32 s{sT2}, 0x00ff00ff\ns_mov_b32 s{sT3}, 0x00ff00ff")
                a("s_nop 0")
                a("v_cvt_pk_bf16_f32 v8, v112, v113\nv_cvt_pk_bf16_f32 v9, v114, v115")
                a(f"s_mov_b64 exec, s[{sT2}:{sT3}]")
                a(f"buffer_store_dwordx2 v[8:9], v5, {srd(R_WS)}, s{sT0} offen sc1")
                a("s_mov_b64 exec, -1")
                a("v_mul_f32 v11, v112, v112\nv_fmac_f32 v11, v113, v113\nv_fmac_f32 v11, v114, v114\nv_fmac_f32 v11, v115, v115")
                for sw in ("v_permlane16_swap_b32", "v_permlane32_swap_b32"):
                    a(f"v_mov_b32 v12, v11\ns_nop 1\n{sw} v11, v12\nv_add_f32 v11, v11, v12")
                a("v_and_b32 v11, 0x7fffffff, v11")
                for ctl in ("quad_perm:[1,0,3,2]", "quad_perm:[2,3,0,1]", "row_half_mirror"):
                    a(f"s_nop 1\nv_max_u32_dpp v11, v11, v11 {ctl} row_mask:0xf bank_mask:0xf")
                a(f"s_lshl_b32 s{sT0}, s{sP}, 7\ns_add_u32 s{sT0}, s{sT0}, {F0}")
                a(f"v_mov_b32 v10, s{sE}\nv_mov_b32 v13, 0")
                self.spin_lds(7, 12, "v_cmp_gt_u32 vcc, 1, v12")
                a("s_waitcnt vmcnt(0)")
                self.stamp(3)
                self.flag_store(10, 2, 13, f"s{sT0}")
                a("s_branch L_a_ring0" if self.o.ring01 == "apub" else "s_branch L_a_main")
            else:
                a(f"s_lshl_b32 s{sT1}, s{sT1}, 8\ns_add_u32 s{sT0}, s{sT0}, s{sT1}\ns_add_u32 s{sT0}, s{sT0}, {VF}")
                a("s_nop 2")
                a("v_cvt_pk_bf16_f32 v8, v112, v113\nv_cvt_pk_bf16_f32 v9, v114, v115")
                a("s_mov_b32 exec_hi, 0")
                a(f"buffer_store_dwordx2 v[8:9], v6, {srd(R_WS)}, s{sT0} offen sc1")
                a("s_mov_b64 exec, -1")
                a("v_mov_b32 v8, 1")
                a("s_waitcnt vmcnt(0)")
                self.stamp(3)
                a("ds_write_b32 v7, v8")
                a("s_branch L_a_ring0" if self.o.ring01 == "apub" else "s_branch L_a_main")

    def a_ring0(self):
        a, o = self.a, self.o
        a("L_a_ring0:")
        a("v_bfe_u32 v20, v1, 1, 2\nv_bfe_u32 v21, v1, 4, 1\nv_xor_b32 v20, v20, v21")
        a("v_lshrrev_b32 v22, 3, v1\nv_mul_u32_u24 v23, 3584, v22\nv_and_b32 v24, 1, v1\nv_lshl_add_u32 v23, v24, 4, v23")
        a("v_lshl_add_u32 v18, v20, 5, v23\nv_xor_b32 v24, 2, v20\nv_lshl_add_u32 v19, v24, 5, v23")
        self.rot_expr(sT5)
        a(f"s_mul_i32 s{sT2}, s{sJ}, 224\ns_mul_i32 s{sT3}, s{sWA}, {32*3584}\ns_add_u32 s{sT2}, s{sT2}, s{sT3}\ns_lshl_b32 s{sT4}, s{sWA}, 13")
        for b in range(o.fill):
            a(f"s_add_u32 s{sT0}, s{sT5}, {b}\ns_and_b32 s{sT0}, s{sT0}, 7\ns_mul_i32 s{sT0}, s{sT0}, {64*3584}\ns_add_u32 s{sT0}, s{sT0}, s{sT2}")
            for u in range(2):
                a(f"s_add_u32 m0, s{sT4}, {b*16384 + u*4096}")
                a(f"s_add_u32 s{sT1}, s{sT0}, {8*3584 - 1024}")
                a(f"buffer_load_dwordx4 v18, {srd(R_W1)}, s{sT0} offen lds")
                a(f"buffer_load_dwordx4 v18, {srd(R_W1)}, s{sT1} offen offset:1024 lds")
                a("s_add_u32 m0, m0, 2048\ns_nop 0")
                a(f"buffer_load_dwordx4 v19, {srd(R_W3)}, s{sT0} offen lds")
                a(f"buffer_load_dwordx4 v19, {srd(R_W3)}, s{sT1} offen offset:1024 lds")
                if u == 0:
                    a(f"s_add_u32 s{sT0}, s{sT0}, {16*3584}")
        a("s_branch L_a_main")

    def xn_store(self):
        a = self.a
        for n in range(4):
            a(f"ds_read_b128 {vr(64+4*n,4)}, v8 offset:{128*n}")
        a(f"s_sub_u32 s{sT1}, s{sW}, 6\ns_lshr_b32 s{sT0}, s{sP}, 2\ns_lshl_b32 s{sT0}, s{sT0}, 15\ns_lshl_b32 s{sT2}, s{sT1}, 14\ns_add_u32 s{sT0}, s{sT0}, s{sT2}")
        a(f"s_and_b32 s{sT2}, s{sJ}, 3\ns_lshl_b32 s{sT2}, s{sT2}, 7\ns_add_u32 s{sT0}, s{sT0}, s{sT2}\ns_add_u32 s{sT0}, s{sT0}, {XN}")
        for n in range(4):
            a(f"s_waitcnt lgkmcnt({3-n})")
            a(f"buffer_store_dwordx4 {vr(64+4*n,4)}, v9, {srd(R_WS)}, s{sT0} offen sc1")
            if self.o.dup & 1:
                a(f"buffer_store_dwordx4 {vr(64+4*n,4)}, v9, {srd(R_WS)}, s{sT0} offen {self.o.dupf}")
            if n < 3:
                a(f"s_add_u32 s{sT0}, s{sT0}, 4096")
        a(f"s_lshl1_add_u32 s{sT0}, s{sP}, s{sT1}\ns_lshl_b32 s{sT0}, s{sT0}, 7\ns_add_u32 s{sT0}, s{sT0}, {FX}")
        a(f"s_lshl_b32 s{sT1}, s{sT1}, 2\ns_add_u32 s{sT1}, s{sT1}, {LFL+L_PUB}")
        a(f"v_mov_b32 v4, s{sE}\nv_mov_b32 v3, 0\nv_mov_b32 v5, s{sT1}\nv_mov_b32 v6, 1")
        a("s_waitcnt vmcnt(0)")
        self.stamp(3)
        self.flag_store(4, 1, 3, f"s{sT0}")
        a("ds_write_b32 v5, v6")
        if self.o.wq_at == "pub":
            self.wq_by_a()

    aK = (28, 40, 52)
    aV = (32, 44, 56)
    aIDX, aOV = 27, 26
    aS = (64, 80)
    aQ = 96
    aO = 128
    aWR, aWL, aRR, aRL, aGF, aMF = 20, 23, 18, 19, 16, 17

    def a_early(self):
        a = self.a
        aV, aO = self.aV, self.aO
        if not self.o.direct:
            a(f"s_sub_u32 s{sWA}, s{sW}, 4")
        a(f"s_lshl_b32 s{sT0}, s{sWA}, 12")
        a(f"s_add_u32 m0, s{sT0}, {WKV}")
        a("s_nop 0")
        for n in range(4):
            a(f"buffer_load_dwordx4 v2, {srd(R_WK)}, s{sT0} offen offset:{1024*n} lds")
        a(f"s_add_u32 m0, s{sT0}, {WKV+16384}")
        a("s_nop 0")
        for n in range(4):
            a(f"buffer_load_dwordx4 v2, {srd(R_WV)}, s{sT0} offen offset:{1024*n} lds")
        a("v_add_u32 v11, -4, v1\nv_cmp_gt_u32 vcc, 8, v11")
        a(f"v_lshlrev_b32 v10, 2, v1\nv_add_u32 v10, {LFL}, v10")
        a("v_cndmask_b32 v11, 0, -1, vcc")
        a("ds_write_b32 v10, v11")
        a("v_and_b32 v3, 7, v1\nv_lshrrev_b32 v10, 4, v1")
        a(f"v_mul_u32_u24 v11, {PITCH}, v3\nv_lshl_add_u32 v12, v10, 4, v11")
        a("v_and_b32 v13, 15, v1\nv_lshlrev_b32 v4, 3, v13\nv_lshl_add_u32 v4, v10, 8, v4")
        a(f"s_lshl_b32 s{sT0}, s{sWA}, 14\ns_add_u32 s{sT0}, s{sT0}, {WKV}\nv_add_u32 v4, s{sT0}, v4")
        a("v_lshlrev_b32 v13, 4, v13\nv_lshl_add_u32 v6, v10, 3, v13")
        a("v_bfe_u32 v14, v1, 4, 1\nv_lshl_add_u32 v5, v14, 9, v13\nv_lshrrev_b32 v14, 5, v1\nv_lshl_add_u32 v5, v14, 3, v5")
        a(f"v_mov_b32 v7, {LFL+L_VFL}")
        a("v_lshrrev_b32 v10, 3, v1\nv_lshl_add_u32 v8, v10, 4, v11")
        a(f"s_and_b32 s{sT1}, s{sWA}, 1\ns_lshl_b32 s{sT1}, s{sT1}, 9\ns_add_u32 s{sT1}, s{sT1}, {XROW}\nv_add_u32 v8, s{sT1}, v8")
        a("v_lshlrev_b32 v9, 4, v3\nv_and_b32 v14, 1, v10\nv_lshl_add_u32 v9, v14, 9, v9\nv_lshrrev_b32 v10, 1, v10\nv_lshl_add_u32 v9, v10, 10, v9")
        a(f"v_add_u32 v3, {XROW}, v12")
        if self.o.direct:
            a("s_waitcnt lgkmcnt(0)")
            a("s_barrier")
        a("s_waitcnt vmcnt(8)")

    def a_late(self):
        a = self.a
        aV, aO = self.aV, self.aO
        a("v_and_b32 v10, 31, v1\nv_cmp_eq_u32 vcc, 16, v10\nv_mov_b32 v11, 0x3f803f80")
        a(f"v_mov_b32 v{self.aIDX}, 0xdddddddd")
        a("v_cndmask_b32 v11, 0, v11, vcc")
        for b in aV:
            for r in range(b, b + 8):
                a(f"v_mov_b32 v{r}, v11")
        a(f"v_and_b32 v10, 15, v1\nv_lshlrev_b32 v10, 4, v10\nv_lshrrev_b32 v11, 5, v1\nv_lshl_add_u32 v10, v11, 8, v10\nv_add_u32 v{self.aOV}, {VF-KF}, v10")
        a("v_lshlrev_b32 v10, 2, v1")
        for dt in range(1, 4):
            a(f"s_add_u32 s{sT0}, s{sWA}, {dt}\ns_and_b32 s{sT0}, s{sT0}, 3\ns_mul_i32 s{sT0}, s{sT0}, 13824\ns_add_u32 s{sT0}, s{sT0}, {RING + (dt-1)*4608}")
            a(f"v_add_u32 v{self.aWR+dt-1}, s{sT0}, v2\nv_add_u32 v{self.aWL+dt-1}, s{sT0}, v10")
        a(f"s_mul_i32 s{sT0}, s{sWA}, 13824")
        a(f"v_add_u32 v{self.aRR}, s{sT0}, v2\nv_add_u32 v{self.aRL}, s{sT0}, v10")
        a(f"v_and_b32 v10, 3, v1\nv_lshlrev_b32 v10, 2, v10\nv_add_u32 v{self.aGF}, {LFL}, v10")
        a(f"s_lshl_b32 s{sT0}, s{sWA}, 2\ns_add_u32 s{sT0}, s{sT0}, {LFL}\nv_mov_b32 v{self.aMF}, s{sT0}")
        for r in range(aO, aO + 128):
            a(f"v_mov_b32 v{r}, 0")
        a(f"s_mov_b32 s{sXM}, 0xffff\ns_mov_b32 s{sXM+1}, 0xffff")
        a(f"s_lshl_b32 s{sKB}, s{sWA}, 14\ns_add_u32 s{sKB}, s{sKB}, {KF}")
        if self.o.rot and self.o.xoff:
            a(f"s_lshl1_add_u32 s{sIDX}, s{sX8}, s{sI}\ns_and_b32 s{sIDX}, s{sIDX}, 15")
        elif self.o.rot:
            a(f"s_and_b32 s{sIDX}, s{sI}, 15")
        else:
            a(f"s_mov_b32 s{sIDX}, 0")
        a(f"s_lshl_b32 s{sK}, s{sIDX}, 10\ns_add_u32 s{sK}, s{sK}, s{sKB}")

    def k_step(self):
        return [f"s_add_u32 s{sIDX}, s{sIDX}, 1", f"s_and_b32 s{sIDX}, s{sIDX}, 15", f"s_lshl_b32 s{sK}, s{sIDX}, 10", f"s_add_u32 s{sK}, s{sK}, s{sKB}"]
    def ld_k(self, buf):
        return f"buffer_load_dwordx4 {vr(self.aK[buf],4)}, v2, {srd(R_WS)}, s{sK} offen sc1"
    def ld_v(self, buf):
        return "\n".join([f"s_mov_b64 exec, s[{sXM}:{sXM+1}]",
                          f"buffer_load_dwordx4 {vr(self.aV[buf],4)}, v{self.aOV}, {srd(R_WS)}, s{sK} offen sc1",
                          f"buffer_load_dwordx4 {vr(self.aV[buf]+4,4)}, v{self.aOV}, {srd(R_WS)}, s{sK} offen offset:512 sc1",
                          "s_mov_b64 exec, -1"])

    def ld_v1(self, buf, u):
        return "\n".join([f"s_mov_b64 exec, s[{sXM}:{sXM+1}]",
                          f"buffer_load_dwordx4 {vr(self.aV[buf]+4*u,4)}, v{self.aOV}, {srd(R_WS)}, s{sK} offen offset:{512*u} sc1",
                          "s_mov_b64 exec, -1"])

    def tile(self, seq, t, kb, prev, nxt_tile, ex):
        a = self.a
        aK, aV, aS, aQ, aO = self.aK, self.aV, self.aS, self.aQ, self.aO
        cur, nxt = aS[seq & 1], aS[(seq + 1) & 1]
        for i in range(16):
            a(f"v_exp_f32 v{cur+i}, v{cur+i}" if "noexp" not in self.o.hack else f"v_mov_b32 v{cur+i}, v{cur+i}\ns_nop 0")
            if i == 1 and "nopv" not in self.o.hack:
                a(f"v_smfmac_f32_32x32x32_bf16 {vr(aO+16*prev[0],16)}, {vr(aV[prev[1]]+4,4)}, {vr(nxt+8,8)}, v{self.aIDX}")
                if "postpv1" in ex:
                    a(ex["postpv1"])
            if i == 4 and nxt_tile is not None:
                if "preqk" in ex:
                    a(ex["preqk"])
                a(f"v_mfma_f32_32x32x16_bf16 {vr(nxt,16)}, {vr(aK[nxt_tile[1]],4)}, {vr(aQ+4*nxt_tile[0],4)}, 0")
                if "postqk" in ex:
                    a(ex["postqk"])
            if i == self.o.p0 and "nopv" not in self.o.hack:
                a(f"v_smfmac_f32_32x32x32_bf16 {vr(aO+16*t,16)}, {vr(aV[kb],4)}, {vr(cur,8)}, v{self.aIDX}")
            if i in ex:
                a(ex[i])

    def merge_writes(self, slot):
        dt, hd = slot >> 1, slot & 1
        O = self.aO + 16 * slot
        return [f"ds_write_b128 v{self.aWR+dt-1}, {vr(O,4)} offset:{hd*2304}",
                f"ds_write_b128 v{self.aWR+dt-1}, {vr(O+4,4)} offset:{hd*2304+1024}",
                f"ds_write_b32 v{self.aWL+dt-1}, v{O+8} offset:{hd*2304+2048}"]

    def a_main(self):
        a, o = self.a, self.o
        vm = Vm(a)
        aK, aV, aS, aQ, aO = self.aK, self.aV, self.aS, self.aQ, self.aO
        a("L_a_main:")
        if o.direct:
            a("s_setprio 0")
        self.a_late()
        for r in range(aS[1] + 8, aS[1] + 16):
            a(f"v_mov_b32 v{r}, 0")
        for t in range(8):
            a(f"s_lshl1_add_u32 s{sT0}, s{sWA}, {t}\ns_and_b32 s{sT0}, s{sT0}, 7\ns_lshl_b32 s{sT0}, s{sT0}, 10\ns_add_u32 s{sT0}, s{sT0}, {QX}")
            a(f"v_add_u32 v{64+t}, s{sT0}, v2")
        if o.atouch:
            self.slot_touch_addr(13, 1)
            if not o.t1:
                a("v_mov_b32 v13, 0x40000000")
            a(f"s_bitcmp1_b32 s{sW}, 1\ns_cselect_b32 s68, s{R_W3}, s{R_W1}\ns_cselect_b32 s69, s{R_W3+1}, s{R_W1+1}\ns_mov_b32 s70, 1835008\ns_mov_b32 s71, 0x20000")
            a(f"s_and_b32 s{sT0}, s{sI}, 3\ns_lshl2_add_u32 s{sT0}, s{sX8}, s{sT0}\ns_lshl_b32 s{sT0}, s{sT0}, 16\ns_lshr_b32 s{sT1}, s{sI}, 2\ns_lshl_b32 s{sT1}, s{sT1}, 7\ns_add_u32 s72, s{sT0}, s{sT1}")
            a(f"s_cmp_eq_u32 s{sWA}, {0 if o.tx else 99}\ns_cselect_b32 s72, s72, 0x40000000\nv_lshlrev_b32 v12, 10, v1")
        a(f"v_lshlrev_b32 v3, 7, v1\ns_lshl_b32 s{sT2}, s{sWA}, 13\ns_add_u32 s{sT2}, s{sT2}, {F0}")
        a(f"v_and_b32 v7, 7, v1\nv_lshlrev_b32 v7, 2, v7\nv_add_u32 v7, {LFL+L_QMAX}, v7")
        if o.ring01 == "apub":
            a("v_mov_b32 v9, 1\ns_waitcnt vmcnt(0)")
            a(f"ds_write_b32 v{self.aMF}, v9 offset:{L_R0}")
        if o.kvlate:
            self.spin_lds(self.aMF, 8, "v_cmp_eq_u32 vcc, -1, v8", sleep=1, off=L_QMAX)
        else:
            self.spin_lds(self.aMF, 8, "v_cmp_gt_u32 vcc, 1, v8", sleep=1, off=L_GATE)
        if o.direct:
            a(f"s_setprio {o.aprio0}")
        self.poll_global(3, f"s{sT2}", 4, 2, vm, sleep=o.asleep)
        self.stamp(4)
        for b in range(3):
            a(self.ld_k(b))
            if b < 2:
                a(self.ld_v(b))
                a("\n".join(self.k_step()))
        self.reduce64("v_max_u32", 5, 6)
        a(f"ds_write_b32 v{self.aMF}, v5 offset:{L_KMAX}")
        self.spin_lds(7, 8, "v_cmp_eq_u32 vcc, -1, v8")
        self.stamp(5)
        for t in range(8):
            a(f"ds_read_b128 {vr(aQ+4*t,4)}, v{64+t}")
        Lne = self.lab("noep")
        a(f"s_or_b32 s{sT0}, s{sP}, s{sWA}\ns_cmp_lg_u32 s{sT0}, 0\ns_cbranch_scc1 {Lne}")
        a(f"v_mov_b32 v9, s{sE}\nv_mov_b32 v3, 0\ns_mov_b32 s{sT0}, {FL}")
        self.flag_store(9, 1, 3, f"s{sT0}")
        a(f"{Lne}:")
        for ctl in ("quad_perm:[1,0,3,2]", "quad_perm:[2,3,0,1]"):
            a(f"s_nop 1\nv_max_u32_dpp v8, v8, v8 {ctl} row_mask:0xf bank_mask:0xf")
        a("s_nop 1\nv_mov_b32_dpp v9, v8 row_half_mirror row_mask:0xf bank_mask:0xf")
        a("v_mul_f32 v8, v8, v9")
        a(f"v_cmp_nge_f32 vcc, {f2u(THRESH2):#x}, v8")
        a("s_branch L_a_slow" if o.slow else "s_cbranch_vccnz L_a_slow")
        a(f"s_setprio {o.prioA}")
        a("v_mov_b32 v9, 1")
        a(f"ds_write_b32 v{self.aMF}, v9 offset:{L_ASTART}")
        a("s_waitcnt vmcnt(4) lgkmcnt(0)")
        if o.only == "G":
            a("s_branch L_a_merge_full")
        a(f"v_mfma_f32_32x32x16_bf16 {vr(aS[0],16)}, {vr(aK[0],4)}, {vr(aQ,4)}, 0")
        a(f"s_mov_b32 s{sCNT}, {4 if o.skiplast else 5}")
        if o.atouch:
            a(f"s_lshl2_add_u32 s{sT4}, s{sI}, s{sWA}\ns_lshl_b32 s{sT5}, s{sT4}, 12\ns_mul_i32 s{sT4}, s{sT4}, 14336\ns_mov_b32 s{sT3}, 0x40000000")
            a("v_lshlrev_b32 v15, 7, v1")
        a("s_nop 7\ns_nop 2")
        self.stamp(6)
        if o.ts:
            a(f"s_memtime s[{sPCX}:{sPCX+1}]\ns_waitcnt lgkmcnt(0)\ns_mov_b32 s{sTS+13}, s{sPCX}")
        def rounds(peeled, last=False):
            for kb in range(3):
                if o.trace:
                    a(f"s_mul_i32 s{sTS+9}, s{sCNT}, -3\ns_add_u32 s{sTS+9}, s{sTS+9}, 15")
                    self.trace_pt(None, kb, sTS + 9)
                for t in range(8):
                    ex = {}
                    prev = (t - 1, kb) if t else (7, (kb + 2) % 3)
                    nx = (t + 1, kb) if t < 7 else (0, (kb + 1) % 3)
                    def guarded(txt):
                        L = self.lab("skip")
                        return f"s_cmp_eq_u32 s{sCNT}, 1\ns_cbranch_scc1 {L}\n{txt}\n{L}:"
                    if t == o.vt:
                        ex[o.p0] = self.ld_v((kb + 2) % 3)
                        if last and kb == 2:
                            del ex[o.p0]
                    extra = 0
                    if peeled and kb == o.tk:
                        if t == 1:
                            ex[6] = f"buffer_load_dword v14, v15, {srd(R_W2)}, s{sT4} offen"
                        if t == 2:
                            ex[3] = f"s_add_u32 s{sT4}, s{sT4}, 8192"
                            ex[6] = f"buffer_load_dword v14, v15, {srd(R_W2)}, s{sT4} offen"
                        if t == 3:
                            ex[6] = f"buffer_load_dword v14, v15, {srd(R_WO)}, s{sT5} offen"
                        if t == 4 and o.tx:
                            ex[6] = f"buffer_load_dword v14, v12, {srd(R_X)}, s72 offen"
                        if t == 5 and o.t1:
                            ex[6] = f"buffer_load_dword v14, v13, s[68:71], 0 offen"
                    ntouch = 3 + bool(o.tx) + bool(o.t1)
                    if (peeled and kb in (o.tk, o.tk + 1)) or (not peeled and o.atouch == 2 and o.tk == 2 and kb == 0):
                        extra = ntouch
                    if t == 7:
                        ex["preqk"] = f"s_waitcnt vmcnt({3 + extra + (1 if o.trace else 0)})"
                        ex[5], ex[6], ex[7], ex[8] = self.k_step()
                        ex[o.p0] = self.ld_k(kb)
                        if last and kb >= 1:
                            del ex[o.p0]
                            for i in (5, 6, 7, 8):
                                del ex[i]
                        if last and kb == 2:
                            ex["preqk"] = "s_waitcnt vmcnt(0)"
                        if kb == 2 and not last:
                            ex[11] = f"s_sub_u32 s{sCNT}, s{sCNT}, 1"
                            ex[14] = f"s_cmp_lg_u32 s{sCNT}, 0"
                    self.tile(t, t, kb, prev, nx, ex)
        self.trv = 10
        if o.atouch == 2:
            rounds(True)
        a(".p2align 3")
        a("L_a_loop:")
        rounds(False)
        a("s_cbranch_scc1 L_a_loop")
        if o.skiplast:
            rounds(False, last=True)
        if o.lastprio:
            a(f"s_setprio {o.lastprio}")
        self.trace_pt(None, 15)
        a(f"ds_read_b32 v8, v{self.aGF}")
        order = [0, 2, 3, 4, 5, 6, 7, 1] if o.peel else list(range(8))
        for n, t in enumerate(order):
            ex = {}
            prev = (order[n - 1], 0) if n else (7, 2)
            nx = (order[n + 1], 0) if n < 7 else None
            if n == 0:
                ex[12] = "s_waitcnt lgkmcnt(0)"
                ex[13] = "SPIN"
            if o.peel and n >= 3:
                w = self.merge_writes(order[n - 2])
                ex[3], ex[7], ex[12] = w
            if n == 0:
                self.tile_with_guard(n, t, prev, nx)
            else:
                self.tile(n, t, 0, prev, nx, ex)
        if o.n0 >= 0:
            a("v_mov_b32 v9, 1")
            a(f"ds_write_b32 v{self.aMF}, v9 offset:{L_ADONE}")
        a("s_nop 1")
        a(f"v_smfmac_f32_32x32x32_bf16 {vr(aO+16*order[7],16)}, {vr(aV[0]+4,4)}, {vr(aS[1]+8,8)}, v{self.aIDX}")
        if o.peel:
            for x in self.merge_writes(7):
                a(x)
            a("s_branch L_a_merge")
        a("L_a_merge_full:")
        self.spin_lds(self.aGF, 8, "v_cmp_gt_u32 vcc, 17, v8")
        if o.n0 >= 0:
            a("v_mov_b32 v9, 1")
            a(f"ds_write_b32 v{self.aMF}, v9 offset:{L_ADONE}")
        a("s_nop 7")
        for slot in range(2, 8):
            for x in self.merge_writes(slot):
                a(x)
        a("L_a_merge:")
        if o.mprio:
            a(f"s_setprio {o.mprio}")
        self.trace_pt(None, 16)
        self.stamp(7)
        if o.ts:
            a(f"s_memtime s[{sPCX}:{sPCX+1}]\ns_waitcnt lgkmcnt(0)\ns_sub_u32 s{sTS+13}, s{sPCX}, s{sTS+13}")
        a("v_mov_b32 v9, 1")
        a(f"s_lshl2_add_u32 s{sT0}, s{sG}, s{sWA}\ns_lshl_b32 s{sT0}, s{sT0}, 5\ns_lshl1_add_u32 s{sT0}, s{sJ}, s{sT0}\ns_lshl_b32 s{sT0}, s{sT0}, 10\ns_add_u32 s{sT0}, s{sT0}, {OF}")
        a(f"s_lshl2_add_u32 s{sT1}, s{sP}, s{sWA}\ns_lshl_b32 s{sT1}, s{sT1}, 7\ns_add_u32 s{sT1}, s{sT1}, {FO}")
        a("s_waitcnt lgkmcnt(0)")
        a(f"ds_write_b32 v{self.aMF}, v9 offset:{L_MFL}")
        self.stamp(10)
        self.spin_lds(self.aGF, 8, "v_cmp_gt_u32 vcc, 1, v8", off=L_MFL)
        self.stamp(11)
        T = 64
        for dt in range(3):
            for hd in range(2):
                b = T + 10 * (2 * dt + hd)
                off = dt * 4608 + hd * 2304
                a(f"ds_read_b128 {vr(b,4)}, v{self.aRR} offset:{off}")
                a(f"ds_read_b128 {vr(b+4,4)}, v{self.aRR} offset:{off+1024}")
                a(f"ds_read_b32 v{b+8}, v{self.aRL} offset:{off+2048}")
            if dt:
                a("s_waitcnt lgkmcnt(6)")
                self.acc_add(T, dt - 1)
        a(f"v_mov_b32 v16, s{sE}\nv_mov_b32 v17, 0")
        a("s_waitcnt lgkmcnt(0)")
        self.acc_add(T, 2)
        a(f"v_mov_b32 v14, v{aO+8}\nv_mov_b32 v15, v{aO+24}")
        a("s_nop 0")
        a(f"v_permlane32_swap_b32 v{aO+8}, v14")
        a(f"v_permlane32_swap_b32 v{aO+24}, v15")
        a(f"v_rcp_f32 v14, v{aO+8}\nv_rcp_f32 v18, v{aO+24}")
        a("s_nop 0")
        for hd in range(2):
            O = aO + 16 * hd
            for i in range(4):
                a(f"v_pk_mul_f32 {vr(O+2*i,2)}, {vr(O+2*i,2)}, {vr(14+4*hd,2)} op_sel_hi:[1,0]")
            for i in range(4):
                a(f"v_cvt_pk_bf16_f32 v{20+4*hd+i}, v{O+2*i}, v{O+2*i+1}")
            a(f"buffer_store_dwordx4 {vr(20+4*hd,4)}, v2, {srd(R_WS)}, s{sT0} offen offset:{1024*hd} sc1")
            if o.dup & 4:
                a(f"buffer_store_dwordx4 {vr(20+4*hd,4)}, v2, {srd(R_WS)}, s{sT0} offen offset:{1024*hd} {o.dupf}")
        self.stamp(12)
        a("s_waitcnt vmcnt(0)")
        a("s_mov_b64 exec, 1")
        a(f"buffer_store_dword v16, v17, {srd(R_WS)}, s{sT1} offen sc1")
        self.stamp(8)
        self.stamp_flush()
        a("s_endpgm")

    def tile_with_guard(self, n, t, prev, nx):
        a = self.a
        self.tile(n, t, 0, prev, nx, {})
        a("s_waitcnt lgkmcnt(0)")
        self.spin_lds(self.aGF, 8, "v_cmp_gt_u32 vcc, 17, v8", peeked=True)

    def acc_add(self, T, dt):
        a = self.a
        for hd in range(2):
            b = T + 10 * (2 * dt + hd)
            O = self.aO + 16 * hd
            for i in range(4):
                a(f"v_pk_add_f32 {vr(O+2*i,2)}, {vr(O+2*i,2)}, {vr(b+2*i,2)}")
            a(f"v_add_f32 v{O+8}, v{O+8}, v{b+8}")

    def a_slow(self):
        a = self.a
        aK, aV, aS, aQ, aO = self.aK, self.aV, self.aS, self.aQ, self.aO
        a("L_a_slow:")
        a("v_mov_b32 v3, 1")
        a(f"ds_write_b32 v{self.aMF}, v3 offset:{L_ASTART}")
        a("s_waitcnt vmcnt(0) lgkmcnt(0)")
        S, M = aS[0], 4
        for t in range(8):
            a(f"v_mov_b32 v{M+t}, 0xff800000")
        a(f"s_mov_b32 s{sK}, {KF}\ns_mov_b32 s{sCNT}, 64")
        a("L_slow_max:")
        a(self.ld_k(0))
        a("s_waitcnt vmcnt(0)")
        for t in range(8):
            a(f"v_mfma_f32_32x32x16_bf16 {vr(S,16)}, {vr(aK[0],4)}, {vr(aQ+4*t,4)}, 0")
            a("s_nop 7\ns_nop 3")
            for i in range(8):
                a(f"v_max3_f32 v{M+t}, v{S+2*i}, v{S+2*i+1}, v{M+t}")
        a(f"s_add_u32 s{sK}, s{sK}, 1024\ns_sub_u32 s{sCNT}, s{sCNT}, 1\ns_cmp_lg_u32 s{sCNT}, 0")
        a("s_cbranch_scc1 L_slow_max")
        for t in range(8):
            a(f"v_mov_b32 v3, v{M+t}\ns_nop 1\nv_permlane32_swap_b32 v{M+t}, v3\nv_max_f32 v{M+t}, v{M+t}, v3")
        a(f"s_mov_b32 s{sK}, s{sKB}\ns_mov_b32 s{sCNT}, 16")
        a("L_slow_pv:")
        a(self.ld_k(0))
        a(self.ld_v(0))
        a("s_waitcnt vmcnt(0)")
        for t in range(8):
            a(f"v_mfma_f32_32x32x16_bf16 {vr(S,16)}, {vr(aK[0],4)}, {vr(aQ+4*t,4)}, 0")
            a("s_nop 7\ns_nop 3")
            for i in range(16):
                a(f"v_sub_f32 v{S+i}, v{S+i}, v{M+t}")
            for i in range(16):
                a(f"v_exp_f32 v{S+i}, v{S+i}")
            a("s_nop 1")
            for u in range(2):
                a(f"v_smfmac_f32_32x32x32_bf16 {vr(aO+16*t,16)}, {vr(aV[0]+4*u,4)}, {vr(S+8*u,8)}, v{self.aIDX}")
        a(f"s_add_u32 s{sK}, s{sK}, 1024\ns_sub_u32 s{sCNT}, s{sCNT}, 1\ns_cmp_lg_u32 s{sCNT}, 0")
        a("s_cbranch_scc1 L_slow_pv")
        a("s_branch L_a_merge_full")

    gRG0, gRU0, gRG1, gRU1 = 3, 4, 5, 6
    dV = 7
    gT = 8
    gTQ, gFL, gMY, gTMP = 12, 13, 14, 15
    gONE = 0
    gE = 16
    gP = 24
    dXR = 32
    dT, dF, dXA, vEP, vZ, vPK = 40, 42, 43, 44, 45, 46
    gA = 48
    gC = 64
    gX = 128
    dH = 128

    def g_early(self):
        a, o = self.a, self.o
        vm = self.vmG = Vm(a)
        if not o.direct:
            vm.issue("xrow")
        gT, dT = self.gT, self.dT
        a("L_g_early:")
        if o.code_pf == 1:
            self.code_prefetch(vm)
        if o.twq:
            L = self.lab("twq")
            a(f"s_cmp_lg_u32 s{sW}, 0\ns_cbranch_scc1 {L}")
            a(f"s_and_b32 s{sT0}, s{sG}, 3\ns_and_b32 s{sT1}, s{sJ}, 1\ns_lshl1_add_u32 s{sT0}, s{sT0}, s{sT1}\ns_lshl_b32 s{sT0}, s{sT0}, 16\ns_lshl_b32 s{sT1}, s{sJ}, 6\ns_add_u32 s{sT0}, s{sT0}, s{sT1}")
            a(f"v_lshlrev_b32 v18, 10, v1\nbuffer_load_dword v46, v18, {srd(R_WQ)}, s{sT0} offen {o.tnt}")
            a(f"s_waitcnt vmcnt({1 + (1 if o.code_pf == 1 else 0)})")
            a(f"{L}:")
        if o.direct:
            return self.g_direct(vm)
        if o.t0 == 1:
            self.first_slot_touch(vm)
        a("v_lshrrev_b32 v18, 2, v1\nv_lshlrev_b32 v18, 10, v18\nv_and_b32 v19, 3, v1\nv_lshl_add_u32 v17, v19, 4, v18")
        if o.wq_at == "early":
            self.wq_dma(vm)
        vm.wait("xrow")
        if o.wq_at == "xarr":
            self.wq_dma(vm)
        a("s_branch L_ln")

    def code_prefetch(self, vm):
        a, o = self.a, self.o
        a(f"s_sub_u32 s{sPC}, s{sPC}, L_pc-{NAME}\ns_subb_u32 s{sPC+1}, s{sPC+1}, 0")
        if o.pfshare > 1:
            n = 64 // o.pfshare + (1 if (o.skiplast or o.nE) else 0)
            a(f"s_and_b32 s{sT0}, s{sI}, {o.pfshare-1}\ns_lshl2_add_u32 s{sT0}, s{sT0}, s{sW}\ns_mul_i32 s{sT0}, s{sT0}, {n*128}")
            a(f"s_mov_b64 exec, {(1 << n) - 1:#x}")
        else:
            a(f"s_lshl_b32 s{sT0}, s{sW}, 13")
        a(f"v_lshlrev_b32 v18, 7, v1\nv_add_u32 v18, s{sT0}, v18")
        a(f"v_min_u32 v18, L_code_end-{NAME}-4, v18")
        a(f"global_load_dword v47, v18, s[{sPC}:{sPC+1}]")
        if o.pfshare > 1:
            a("s_mov_b64 exec, -1")
        vm.issue("pf")
        if o.atouch == 2:
            a(f"v_add_u32 v18, 32768, v18\nv_min_u32 v18, L_code_end-{NAME}-4, v18\ns_mov_b64 exec, 0xffff")
            a(f"global_load_dword v47, v18, s[{sPC}:{sPC+1}]\ns_mov_b64 exec, -1")
            vm.issue("pf")

    def stage_dma(self, n, vm):
        a = self.a
        a(f"s_add_u32 s{sT0}, s{sROT}, {n}\ns_and_b32 s{sT0}, s{sT0}, 7\ns_lshl_b32 s{sT0}, s{sT0}, 7\ns_add_u32 s{sT0}, s{sT0}, s{sXB}")
        a(f"s_add_u32 m0, s{sT3}, {(n&3)*4096}")
        for i in range(4):
            a(f"s_add_u32 s{sT1}, s{sT0}, {i*8192 - (i&3)*1024 + (0 if i else 0)}" if i else "s_nop 0")
            a(f"buffer_load_dwordx4 v{18 + (i&1)}, {srd(R_X)}, s{sT1 if i else sT0} offen offset:{i*1024} lds")
            vm.issue(("st", n))

    def g_direct(self, vm):
        a, o = self.a, self.o
        gX = self.gX
        a(f"s_setprio {o.gprio0}")
        self.rot_expr(sROT)
        a(f"s_lshl2_add_u32 s{sT0}, s{sG}, s{sW}\ns_lshl_b32 s{sXB}, s{sT0}, 15\ns_lshl_b32 s{sT3}, s{sW}, 14")
        a("v_lshrrev_b32 v20, 3, v1\nv_and_b32 v21, 7, v1\nv_lshrrev_b32 v22, 4, v1\nv_xor_b32 v21, v21, v22\nv_lshlrev_b32 v21, 4, v21")
        a("v_lshl_add_u32 v18, v20, 10, v21\nv_xor_b32 v19, 64, v18")
        a(f"s_load_dword s{sE}, s[{R_WS}:{R_WS+1}], {FL}")
        a("s_barrier")
        for n in range(o.sdepth):
            self.stage_dma(n, vm)
        a(f"s_mov_b32 s{sFXA}, s{sT3}")
        a("v_mov_b32 v28, v18\nv_mov_b32 v29, v19")
        self.g_late(direct=True)
        a(f"s_mov_b32 s{sT3}, s{sFXA}\nv_mov_b32 v18, v28\nv_mov_b32 v19, v29")
        a("v_and_b32 v20, 31, v1\nv_lshrrev_b32 v21, 5, v1\nv_bfe_u32 v22, v1, 1, 3\nv_xor_b32 v21, v21, v22\nv_lshlrev_b32 v21, 4, v21\nv_lshl_add_u32 v20, v20, 7, v21")
        a(f"v_add_u32 v20, s{sT3}, v20\nv_xor_b32 v21, 32, v20\nv_xor_b32 v22, 64, v20\nv_xor_b32 v23, 0x60, v20")
        a(f"v_mov_b32 v24, 0\nv_mov_b32 v25, 0\nv_mov_b32 v26, 0\nv_mov_b32 v27, 0\nv_mov_b32 v30, 0x3f803f80")
        a("s_waitcnt lgkmcnt(0)")
        a(f"s_mul_i32 s{sE}, s{sE}, 0x9E3779B1\ns_add_u32 s{sE}, s{sE}, 0x7F4A7C15")
        a(f"v_mov_b32 v{self.vEP}, s{sE}")
        self.stamp(1)
        def stats(n):
            for r in range(gX + 16 * n, gX + 16 * n + 16):
                a(f"v_dot2c_f32_bf16 v{24 + (r & 1)}, v{r}, v30")
                a(f"v_dot2c_f32_bf16 v{26 + (r & 1)}, v{r}, v{r}")
        for n in range(8):
            vm.wait(("st", n))
            for ks in range(4):
                a(f"ds_read_b128 {vr(gX + 16*n + 4*ks, 4)}, v{20+ks} offset:{(n&3)*4096}")
            if n:
                stats(n - 1)
            a("s_waitcnt lgkmcnt(0)")
            if n + o.sdepth < 8:
                self.stage_dma(n + o.sdepth, vm)
        self.stamp(2)
        a(f"ds_write_b32 v{self.gMY}, v{self.gONE} offset:{L_STG}")
        if o.gate_at == "stg":
            a(f"ds_write_b32 v{self.gMY}, v{self.gONE} offset:{L_GATE}")
        stats(7)
        a("s_nop 2")
        a("v_add_f32 v24, v24, v25\nv_add_f32 v26, v26, v27")
        a("v_mov_b32 v25, v24\nv_mov_b32 v27, v26\ns_nop 0")
        a("v_permlane32_swap_b32 v24, v25\nv_permlane32_swap_b32 v26, v27")
        a("v_add_f32 v24, v24, v25\nv_add_f32 v26, v26, v27")
        a(f"v_mul_f32 v24, {f2u(1/512):#x}, v24\nv_mul_f32 v26, {f2u(1/512):#x}, v26")
        a("v_fma_f32 v26, -v24, v24, v26\nv_max_f32 v26, 0, v26")
        a("v_cvt_pk_bf16_f32 v24, v24, v26")
        a(f"v_and_b32 v26, s{sMASK}, v24\nv_lshlrev_b32 v24, 16, v24\nv_add_f32 v26, {f2u(1e-5):#x}, v26")
        a("v_cvt_pk_bf16_f32 v26, v26, v26\nv_lshlrev_b32 v26, 16, v26\nv_sqrt_f32 v26, v26\ns_nop 0")
        a("v_cvt_pk_bf16_f32 v26, v26, v26\nv_lshlrev_b32 v26, 16, v26\nv_rcp_f32 v32, v26\ns_nop 0")
        a("v_mul_f32 v34, -v24, v32")
        a("s_branch L_g_bar1")

    def first_slot_touch(self, vm):
        a = self.a
        self.slot_touch_addr(18, 0)
        L, L2 = self.lab("tw3"), self.lab("tw3x")
        nt = self.o.tnt
        a(f"s_bitcmp1_b32 s{sW}, 1\ns_cbranch_scc1 {L}")
        a(f"buffer_load_dword v46, v18, {srd(R_W1)}, 0 offen {nt}\ns_branch {L2}")
        a(f"{L}:\nbuffer_load_dword v46, v18, {srd(R_W3)}, 0 offen {nt}\n{L2}:")
        vm.issue("t0")

    def slot_touch_addr(self, v, p):
        a, o = self.a, self.o
        if o.rotup:
            a(f"s_lshl1_add_u32 s{sT0}, s{sJ}, s{sG}\ns_and_b32 s{sT0}, s{sT0}, {o.rotup}\ns_lshl_b32 s{sT0}, s{sT0}, 6")
        else:
            a(f"s_and_b32 s{sT0}, s{sG}, 7\ns_lshl_b32 s{sT0}, s{sT0}, 6")
        a(f"v_add_u32 v{v}, s{sT0}, v1\nv_mul_u32_u24 v{v}, 3584, v{v}")
        a(f"s_and_b32 s{sT1}, s{sW}, 1\ns_mul_i32 s{sT1}, s{sT1}, {124 if p == 0 else 92}\ns_mul_i32 s{sT0}, s{sJ}, 224\ns_add_u32 s{sT0}, s{sT0}, s{sT1}")
        if p:
            a(f"s_add_u32 s{sT0}, s{sT0}, 128")
        a(f"v_add_u32 v{v}, s{sT0}, v{v}")

    def g_late(self, direct=False):
        a, o = self.a, self.o
        gT, dT = self.gT, self.dT
        a("v_and_b32 v19, 3, v1")
        RG0, RU0, RG1, RU1 = self.gRG0, self.gRU0, self.gRG1, self.gRU1
        a("v_bfe_u32 v20, v1, 1, 2\nv_bfe_u32 v21, v1, 4, 1\nv_xor_b32 v20, v20, v21")
        a("v_lshrrev_b32 v22, 3, v1\nv_mul_u32_u24 v23, 3584, v22\nv_and_b32 v24, 1, v1\nv_lshl_add_u32 v23, v24, 4, v23")
        a(f"v_lshl_add_u32 v{RG0}, v20, 5, v23")
        a(f"v_xor_b32 v24, 2, v20\nv_lshl_add_u32 v{RU0}, v24, 5, v23")
        a("v_mov_b32 v25, 0x40000000")
        a("v_cmp_eq_u32 vcc, 3, v20")
        a(f"v_cmp_eq_u32 s[{sT2}:{sT3}], 3, v24")
        a("v_bfe_u32 v26, v1, 2, 1\nv_xor_b32 v26, v26, v21\nv_lshlrev_b32 v26, 6, v26\nv_lshl_add_u32 v26, v19, 4, v26")
        a(f"v_cndmask_b32 v{RG1}, v{RG0}, v25, vcc")
        a(f"v_cndmask_b32 v{RU1}, v{RU0}, v25, s[{sT2}:{sT3}]")
        a(f"v_lshl_add_u32 v{self.dV}, v22, 10, v26")
        a(f"s_mul_i32 s{sBASE}, s{sW}, {16*3584}\ns_mul_i32 s{sT0}, s{sJ}, 224\ns_add_u32 s{sBASE}, s{sBASE}, s{sT0}")
        a(f"s_lshl_b32 s{sW4096}, s{sW}, 12")
        self.rot_expr(sROT)
        a("v_lshlrev_b32 v19, 3, v19\nv_bfe_u32 v20, v1, 2, 2\nv_lshrrev_b32 v22, 5, v1\nv_bfe_u32 v23, v1, 3, 1")
        a(f"v_lshl_add_u32 v24, v22, 9, v19\nv_lshl_add_u32 v24, v20, 6, v24\nv_lshl_add_u32 v24, v21, 5, v24\nv_add_u32 v{self.gTQ}, {WQI}, v24")
        a("v_lshl_add_u32 v24, v21, 11, v19\nv_lshl_add_u32 v24, v22, 10, v24\nv_lshl_add_u32 v24, v20, 7, v24")
        a(f"v_lshl_add_u32 v25, v21, 1, v23\nv_lshl_add_u32 v{gT}, v25, 5, v24")
        for mt in range(1, 4):
            a(f"v_xor_b32 v{gT+mt}, {32*mt}, v{gT}")
        if not (direct and o.dlate):
            self.g_late_d()
        a(f"v_and_b32 v24, 3, v1\nv_lshlrev_b32 v24, 2, v24\nv_add_u32 v{self.gFL}, {LFL}, v24")
        a(f"s_lshl_b32 s{sT0}, s{sW}, 2\ns_add_u32 s{sT0}, s{sT0}, {LFL}\nv_mov_b32 v{self.gMY}, s{sT0}")
        a(f"v_mov_b32 v{self.gONE}, 1\nv_mov_b32 v{self.vZ}, 0")
        nl, qs = f2u(-LOG2E), f2u(0.25 * LOG2E)
        a(f"s_mov_b32 s{sNL2}, {nl:#x}\ns_mov_b32 s{sNL2+1}, {nl:#x}\ns_mov_b32 s{sONE}, 1.0\ns_mov_b32 s{sONE+1}, 1.0")
        a(f"s_mov_b32 s{sQS}, {qs:#x}\ns_mov_b32 s{sQS+1}, {qs:#x}")
        a(f"s_lshl2_add_u32 s{sT0}, s{sG}, s{sW}")
        if not direct:
            a("v_and_b32 v16, 7, v1\nv_lshlrev_b32 v16, 7, v16")
            a(f"s_lshl_b32 s{sFXA}, s{sT0}, 10\ns_add_u32 s{sFXA}, s{sFXA}, {FX}")
            a(f"s_lshl_b32 s{sXB}, s{sT0}, 15\ns_add_u32 s{sXB}, s{sXB}, {XN}")
        a(f"s_mul_i32 s{sHS}, s{sT0}, 112\ns_mul_i32 s{sT1}, s{sJ}, 7\ns_add_u32 s{sHS}, s{sHS}, s{sT1}\ns_lshl_b32 s{sHS}, s{sHS}, 10\ns_add_u32 s{sHS}, s{sHS}, {HF}")
        a(f"s_lshl2_add_u32 s{sFH}, s{sP}, s{sW}\ns_lshl_b32 s{sFH}, s{sFH}, 7\ns_add_u32 s{sFH}, s{sFH}, {FH}")

    def g_late_d(self, redo=False):
        a, o = self.a, self.o
        gT, dT = self.gT, self.dT
        if redo:
            a("v_and_b32 v19, 3, v1\nv_lshlrev_b32 v19, 3, v19\nv_bfe_u32 v20, v1, 2, 2\nv_bfe_u32 v21, v1, 4, 1\nv_lshrrev_b32 v22, 5, v1\nv_bfe_u32 v23, v1, 3, 1")
        a(f"s_and_b32 s{sT5}, s{sI}, 3\ns_lshl2_add_u32 s{sT2}, s{sX8}, s{sT5}")
        a(f"s_lshr_b32 s{sNN}, s{sI}, 2")
        if o.nxor:
            a(f"s_xor_b32 s{sNN}, s{sNN}, {o.nxor}")
        a(f"s_lshl_b32 s{sT4}, s{sNN}, 7")
        a(f"s_mul_i32 s{sW2}, s{sW}, {28*16384}")
        if "w2n0" not in o.hack:
            a(f"s_add_u32 s{sW2}, s{sW2}, s{sT4}")
        a(f"s_lshl_b32 s{sWO}, s{sW}, 17\ns_add_u32 s{sWO}, s{sWO}, s{sT4}")
        a(f"s_lshl_b32 s{sRB}, s{sW}, 14\ns_add_u32 s{sRB}, s{sRB}, {RB0}")
        if o.rot:
            a(f"s_lshl1_add_u32 s{sRX}, s{sT5}, s{sNN}\ns_lshl_b32 s{sRX}, s{sRX}, 1")
            if o.xoff:
                a(f"s_lshl1_add_u32 s{sRX}, s{sX8}, s{sRX}")
            a(f"s_and_b32 s{sRX}, s{sRX}, 15")
            a(f"s_lshl1_add_u32 s{sRY}, s{sT5}, s{sNN}\ns_mul_i32 s{sRY}, s{sRY}, 3\ns_lshr_b32 s{sRY}, s{sRY}, 1")
            if o.xoff:
                a(f"s_add_u32 s{sRY}, s{sRY}, s{sX8}")
            for _ in range(2):
                a(f"s_sub_u32 s{sT0}, s{sRY}, 12\ns_cmp_ge_u32 s{sRY}, 12\ns_cselect_b32 s{sRY}, s{sT0}, s{sRY}")
        else:
            a(f"s_mov_b32 s{sRX}, 0\ns_mov_b32 s{sRY}, 0\ns_mov_b32 s{sNN}, 0")
        a(f"s_lshr_b32 s{sT0}, s{sW}, 1\ns_lshl1_add_u32 s{sT0}, s{sT2}, s{sT0}\ns_xor_b32 s{sT1}, s{sT0}, 1\ns_mul_i32 s{sT5}, s{sW}, 28")
        for sH, sO, st in ((sH0, sO0, sT0), (sH1, sO1, sT1)):
            a(f"s_mul_i32 s{sH}, s{st}, 112\ns_add_u32 s{sH}, s{sH}, s{sT5}\ns_lshl_b32 s{sH}, s{sH}, 10\ns_add_u32 s{sH}, s{sH}, {HF}")
            a(f"s_lshl_b32 s{sO}, s{st}, 2\ns_add_u32 s{sO}, s{sO}, s{sW}\ns_lshl_b32 s{sO}, s{sO}, 13\ns_add_u32 s{sO}, s{sO}, {OF}")
        a(f"s_lshl_b32 s{sOUT}, s{sT0}, 15\ns_add_u32 s{sOUT}, s{sOUT}, s{sT4}\ns_and_b32 s{sT1}, s{sW}, 1\ns_lshl_b32 s{sT1}, s{sT1}, 6\ns_add_u32 s{sOUT}, s{sOUT}, s{sT1}")
        a("v_lshl_add_u32 v24, v21, 5, v19\nv_lshl_add_u32 v24, v20, 7, v24\nv_lshl_add_u32 v24, v22, 9, v24\nv_lshl_add_u32 v24, v23, 6, v24")
        a(f"v_xor_b32 v24, s{sT1}, v24\nv_add_u32 v{dT}, s{sRB}, v24\nv_xor_b32 v{dT+1}, 64, v{dT}")
        a(f"s_lshr_b32 s{sT0}, s{sT2}, 1\ns_lshl2_add_u32 s{sT0}, s{sT0}, s{sW}\ns_lshl_b32 s{sT0}, s{sT0}, 4")
        a(f"s_and_b32 s{sT1}, s{sT2}, 1\ns_lshl1_add_u32 s{sT0}, s{sT1}, s{sT0}\ns_lshl_b32 s{sT0}, s{sT0}, 7")
        a(f"v_and_b32 v24, 3, v1\nv_lshlrev_b32 v25, 9, v24\nv_bfe_u32 v26, v1, 2, 1\nv_lshl_add_u32 v25, v26, 7, v25\nv_add_u32 v{self.dF}, s{sT0}, v25")
        a(f"v_and_b32 v25, 31, v1\nv_lshlrev_b32 v25, 10, v25\nv_lshl_add_u32 v{self.dXA}, v22, 3, v25")

    def wq_dma(self, vm):
        a = self.a
        a(f"s_lshl_b32 s{sT4}, s{sJ}, 6")
        a(f"s_lshl_b32 s{sT1}, s{sW}, 13\ns_add_u32 m0, s{sT1}, {WQI}")
        if self.o.rotup:
            a(f"s_lshl1_add_u32 s{sT5}, s{sJ}, s{sG}\ns_and_b32 s{sT5}, s{sT5}, {self.o.rotup}")
        else:
            a(f"s_mov_b32 s{sT5}, 0")
        for n in range(8):
            if n:
                a("s_add_u32 m0, m0, 1024")
            if n & 3 == 0:
                a(f"s_lshl1_add_u32 s{sT0}, s{sW}, s{sT5}\ns_add_u32 s{sT0}, s{sT0}, {n>>2}\ns_and_b32 s{sT0}, s{sT0}, 7\ns_lshl_b32 s{sT0}, s{sT0}, 16\ns_add_u32 s{sT0}, s{sT0}, s{sT4}")
            else:
                a(f"s_add_u32 s{sT0}, s{sT0}, 16384")
            a(f"buffer_load_dwordx4 v17, {srd(R_WQ)}, s{sT0} offen lds")
            vm.issue("wq")

    def ring_dma_parts(self, b, vm):
        a = self.a
        p, sl = b >> 3, b & 7
        vg, vu = (self.gRG0, self.gRU0) if p == 0 else (self.gRG1, self.gRU1)
        def p0():
            a(f"s_add_u32 s{sT0}, s{sROT}, {sl}\ns_and_b32 s{sT0}, s{sT0}, 7\ns_mul_i32 s{sT0}, s{sT0}, {64*3584}\ns_add_u32 s{sT0}, s{sT0}, s{sBASE}")
            a(f"s_add_u32 m0, s{sW4096}, {(b & 3) * 16384}")
            a(f"s_add_u32 s{sT1}, s{sT0}, {p*128 + 8*3584 - 1024}")
            if p:
                a(f"s_add_u32 s{sT0}, s{sT0}, {p*128}")
            a(f"buffer_load_dwordx4 v{vg}, {srd(R_W1)}, s{sT0} offen lds"); vm.issue(("ring", b))
        def p1():
            a(f"buffer_load_dwordx4 v{vg}, {srd(R_W1)}, s{sT1} offen offset:1024 lds"); vm.issue(("ring", b))
            a("s_add_u32 m0, m0, 2048")
        def p2():
            if self.o.batch:
                a("s_nop 0")
            a(f"buffer_load_dwordx4 v{vu}, {srd(R_W3)}, s{sT0} offen lds"); vm.issue(("ring", b))
        def p3():
            a(f"buffer_load_dwordx4 v{vu}, {srd(R_W3)}, s{sT1} offen offset:1024 lds"); vm.issue(("ring", b))
        return [p0, p1, p2, p3]

    def ring_fill(self, vm, lo, hi):
        for b in range(lo, hi):
            ps = self.ring_dma_parts(b, vm)
            ps[0](); ps[1](); self.a("s_nop 0"); ps[2](); ps[3]()

    def tr_pair(self, dst, vaddr, off, qstep):
        self.a(f"ds_read_b64_tr_b16 {vr(dst,2)}, v{vaddr} offset:{off}")
        self.a(f"ds_read_b64_tr_b16 {vr(dst+2,2)}, v{vaddr} offset:{off+qstep}")

    def kstep_index(self, n):
        a = self.a
        if n < 16:
            a(f"s_add_u32 s{sKS}, s{sRX}, {n}\ns_and_b32 s{sKS}, s{sKS}, 15\ns_lshr_b32 s{sT2}, s{sKS}, 2\ns_mul_i32 s{sT2}, s{sT2}, 3\ns_add_u32 s{sKS}, s{sKS}, s{sT2}")
        elif n < 28:
            a(f"s_add_u32 s{sKS}, s{sRY}, {n-16}\ns_sub_u32 s{sT2}, s{sKS}, 12\ns_cmp_ge_u32 s{sKS}, 12\ns_cselect_b32 s{sKS}, s{sT2}, s{sKS}")
            a(f"s_mul_i32 s{sT2}, s{sKS}, 11\ns_lshr_b32 s{sT2}, s{sT2}, 5\ns_lshl2_add_u32 s{sKS}, s{sT2}, s{sKS}\ns_add_u32 s{sKS}, s{sKS}, 4")
        else:
            a(f"s_add_u32 s{sKS}, s{sNN}, {n-28}\ns_and_b32 s{sKS}, s{sKS}, 7")

    def w2_dma(self, n, vm):
        a = self.a
        R, s = (R_W2, sW2) if n < 28 else (R_WO, sWO)
        a(f"s_add_u32 m0, s{sRB}, {(n & 7) * 2048}")
        a(f"s_lshl_b32 s{sT0}, s{sKS}, 14\ns_add_u32 s{sT0}, s{sT0}, s{s}\ns_add_u32 s{sT1}, s{sT0}, {8192 - 1024}")
        a(f"buffer_load_dwordx4 v{self.dV}, {srd(R)}, s{sT0} offen lds")
        a(f"buffer_load_dwordx4 v{self.dV}, {srd(R)}, s{sT1} offen offset:1024 lds")
        vm.issue(("w2", n)); vm.issue(("w2", n))

    def ldB(self, n, vm):
        a = self.a
        a(f"s_lshl_b32 s{sT0}, s{sKS}, 10")
        for bp in range(2):
            s = (sH0, sH1)[bp] if n < 28 else (sO0, sO1)[bp]
            a(f"s_add_u32 s{sT1}, s{sT0}, s{s}")
            a(f"buffer_load_dwordx4 {vr(self.dH+8*(n&15)+4*bp,4)}, v2, {srd(R_WS)}, s{sT1} offen sc1")
            vm.issue(("b", n))

    def resid_load(self, vm):
        a = self.a
        for i in range(4 if "nores" not in self.o.hack else 0):
            a(f"buffer_load_dwordx2 {vr(self.dXR+2*i,2)}, v{self.dXA}, {srd(R_X)}, s{sOUT} offen offset:{16*i}")
            vm.issue("xres")

    def g_main(self):
        a, o = self.a, self.o
        vm = self.vmG
        gT, gA, gC, gX, gE, gP = self.gT, self.gA, self.gC, self.gX, self.gE, self.gP
        ONE, TMP, FLG, MY = self.gONE, self.gTMP, self.gFL, self.gMY
        a("L_g_bar1:")
        if o.direct:
            self.q_direct(vm)
        else:
            a(f"v_mov_b32 v{self.vEP}, s{sE}")
            a("s_barrier")
            self.stamp(2)
            a(f"s_setprio {o.prioGhi}")
            if o.wq_at == "bar1":
                self.wq_dma(vm)
            if o.code_pf == 2:
                self.code_prefetch(vm)
            if o.t0 == 2:
                self.first_slot_touch(vm)
            self.g_late()
            if o.t0 == 3:
                a(f"v_and_b32 v18, 1, v1\nv_lshlrev_b32 v18, 2, v18\nv_add_u32 v18, {LFL+L_PUB}, v18")
                self.spin_lds(18, 19, "v_cmp_gt_u32 vcc, 1, v19", sleep=1)
                self.first_slot_touch(vm)
            if o.ring01 == "pub":
                a(f"v_and_b32 v18, 1, v1\nv_lshlrev_b32 v18, 2, v18\nv_add_u32 v18, {LFL+L_PUB}, v18")
                self.spin_lds(18, 19, "v_cmp_gt_u32 vcc, 1, v19", sleep=1)
                self.ring_fill(vm, 0, 2)
            if o.wq_at != "pub":
                vm.wait("wq")
                a(f"ds_write_b32 v{MY}, v{ONE} offset:{L_WQF}")
            self.stamp(3)
            self.poll_global(16, f"s{sFXA}", 19, 1, vm, lanes=8)
            a(f"ds_write_b32 v{MY}, v{ONE} offset:{L_GATE}")
            self.stamp(4)
            for s in range(32):
                if s & 3 == 0:
                    a(f"s_add_u32 s{sT0}, s{sROT}, {s>>2}\ns_and_b32 s{sT0}, s{sT0}, 7\ns_lshl_b32 s{sT0}, s{sT0}, 12\ns_add_u32 s{sT0}, s{sT0}, s{sXB}")
                a(f"buffer_load_dwordx4 {vr(gX+4*s,4)}, v2, {srd(R_WS)}, s{sT0} offen offset:{1024*(s&3)} sc1")
                vm.issue(("x", s))
            if o.ring01 == "afterx":
                self.ring_fill(vm, 0, 1)
            if o.wq_at == "pub":
                a(f"v_and_b32 v18, 1, v1\nv_lshlrev_b32 v18, 2, v18\nv_add_u32 v18, {LFL+L_WQF}, v18")
                self.spin_lds(18, TMP, f"v_cmp_gt_u32 vcc, 1, v{TMP}")
            else:
                self.spin_lds(FLG, TMP, f"v_cmp_gt_u32 vcc, 1, v{TMP}", off=L_WQF)
            for s in range(4):
                self.tr_pair(gA + 4 * s, self.gTQ, 1024 * s, 256)
            for s in range(32):
                left = min(3, 31 - s)
                vm.wait(("x", s), f"lgkmcnt({2*left})")
                c = "0" if s == 0 else vr(gC, 16)
                a(f"v_mfma_f32_32x32x16_bf16 {vr(gC,16)}, {vr(gA+4*(s%4),4)}, {vr(gX+4*s,4)}, {c}")
                if s + 4 < 32:
                    self.tr_pair(gA + 4 * (s % 4), self.gTQ, 1024 * (s + 4), 256)
        if not o.gtrace and not o.gs:
            self.stamp(5)
        a(f"s_lshl_b32 s{sT0}, s{sW}, 11\ns_add_u32 s{sT0}, s{sT0}, {QX}")
        a(f"v_add_u32 v18, s{sT0}, v2")
        a("s_nop 8")
        for i in range(8):
            a(f"v_pk_mul_f32 {vr(gC+2*i,2)}, {vr(gC+2*i,2)}, s[{sQS}:{sQS+1}]")
        for i in range(8):
            a(f"v_cvt_pk_bf16_f32 v{gP+i}, v{gC+2*i}, v{gC+2*i+1}")
        a(f"ds_write_b128 v18, {vr(gP,4)}")
        a(f"ds_write_b128 v18, {vr(gP+4,4)} offset:1024")
        a(f"v_mul_f32 v{gE}, v{gC}, v{gC}\nv_mul_f32 v{gE+1}, v{gC+8}, v{gC+8}")
        for i in range(1, 8):
            a(f"v_fmac_f32 v{gE}, v{gC+i}, v{gC+i}\nv_fmac_f32 v{gE+1}, v{gC+8+i}, v{gC+8+i}")
        a("s_nop 1")
        a(f"v_permlane32_swap_b32 v{gE}, v{gE+1}")
        a(f"v_add_f32 v{gE}, v{gE}, v{gE+1}")
        a(f"v_and_b32 v{gE}, 0x7fffffff, v{gE}")
        self.reduce64("v_max_u32", gE, gE + 1)
        a("s_waitcnt lgkmcnt(0)")
        a(f"ds_write_b32 v{MY}, v{gE} offset:{L_QMAX}")
        self.stamp(6)
        if o.only == "A":
            a(f"v_mov_b32 v{TMP}, 18\nds_write_b32 v{MY}, v{TMP}\ns_waitcnt vmcnt(0) lgkmcnt(0)")
            self.stamp_flush()
            a("s_endpgm")
            return
        if o.ring01 == "apub":
            self.spin_lds(FLG, TMP, f"v_cmp_gt_u32 vcc, 1, v{TMP}", off=L_R0)
        elif o.astart:
            self.spin_lds(MY, TMP, f"v_cmp_gt_u32 vcc, 1, v{TMP}", sleep=1, off=L_ASTART)
        if o.direct and o.ringat != "stg":
            self.spin_lds(FLG, TMP, f"v_cmp_gt_u32 vcc, 1, v{TMP}", off=L_STG)
        if not (o.direct and o.ringat == "stg"):
            self.ring_fill(vm, {"pub": 2, "afterx": 1, "none": 0, "apub": o.fill}[o.ring01], o.fill)
        LA = 4
        lg = Lg(a)
        items = []
        for b in range(16):
            for ks in range(4):
                for mt in range(4 if b < 8 else 3):
                    items.append((len(items), b, ks, mt))
        def mf(it):
            (n, b, ks, mt) = it
            kk = 4 * (b & 7) + ks
            c = "0" if kk == 0 else vr(gC + 16 * mt, 16)
            if "nomfma" in o.hack and kk > 0:
                return
            a(f"v_mfma_f32_32x32x16_bf16 {vr(gC+16*mt,16)}, {vr(gA+4*(n%LA),4)}, {vr(gX+4*kk,4)}, {c}")
        def rd(it):
            (n, b, ks, mt) = it
            if "nolds" in o.hack and n >= LA:
                return
            self.tr_pair(gA + 4 * (n % LA), gT + mt, (b & 3) * 16384 + ks * 4096, 512)
            lg.issue(("r", n)); lg.issue(("r", n))
        def signal():
            a(f"s_mov_b64 exec, 1\nds_add_u32 v{MY}, v{ONE}\ns_mov_b64 exec, -1"); lg.issue("sig")
        def peek():
            a(f"ds_read_b32 v{TMP}, v{FLG}"); lg.issue("peek")
        def check(target):
            waitcnt(a, lg=lg, ltag="peek")
            a(f"s_setprio {o.prioGhi}")
            self.spin_lds(FLG, TMP, f"v_cmp_gt_u32 vcc, {target}, v{TMP}", peeked=True)
            a(f"s_setprio {self.curp}")
        self.curp = o.prioGhi if o.hiup > 0 else o.prioG
        if o.direct and o.dlate:
            self.g_late_d(redo=True)
        vm.wait(("ring", 0))
        if o.ring01 == "apub" and o.astart:
            self.spin_lds(MY, TMP, f"v_cmp_gt_u32 vcc, 1, v{TMP}", sleep=1, off=L_ASTART)
        if o.fill < 3:
            self.ring_fill(vm, o.fill, 3)
        signal(); peek(); check(1)
        if not o.batch:
            for it in items[:LA]:
                rd(it)
        extras = {}
        def at(n, f):
            extras.setdefault(n, []).append(f)
        first = {b: min(n for (n, bb, _, _) in items if bb == b) for b in range(16)}
        def flag_h0():
            assert vm.need(("h", 3)) is None
            self.flag_store(self.vEP, 1, self.vZ, f"s{sFH}"); vm.issue("fl")
        def peek_h(tag):
            a(f"s_mov_b32 s{sT3}, {FH}")
            self.peek_global(self.dF, f"s{sT3}", self.vPK, 2, vm, tag, 8)
        def check_h(tag, word):
            a(f"s_setprio {o.prioGhi}")
            self.poll_global(self.dF, f"s{sT3}", self.vPK, 2, vm, lanes=8, word=word, first_issued=tag)
            a(f"s_setprio {self.curp}")
        self.peek_h, self.check_h = peek_h, check_h
        for b in range(16):
            f0 = first[b]
            if b < 15:
                at(f0 + 1, lambda b=b: (vm.wait(("ring", b + 1)), signal()))
                at(f0 + 2, peek)
                at(f0 + 5, lambda b=b: check(b + 2))
            if (0 if o.fill < 4 else 1) <= b <= 12 and "nodma" not in o.hack:
                for k, part in enumerate(self.ring_dma_parts(b + 3, vm)):
                    at(f0 + 6 + k, part)
            if b == 10:
                at(f0 + 3, flag_h0)
            if b == 12:
                at(f0 + 10, lambda: peek_h("pk0"))
            LD = o.LD
            if b == 13:
                at(f0 + 11, lambda: check_h("pk0", 0))
            if b == 14:
                if not o.w2pre:
                    for k in range(min(LD, 4)):
                        at(f0 + 3 + 2 * k + (k > 0), lambda n=k: (self.kstep_index(n), self.w2_dma(n, vm)))
                at(f0 + 11, lambda: self.resid_load(vm))
            if b == 15 and not o.w2pre:
                for k in range(4, LD):
                    at(f0 + k - 3, lambda n=k: (self.kstep_index(n), self.w2_dma(n, vm)))
            nh = o.hpre or LD
            if b == 14 and nh > 4:
                for k in range(nh - 4):
                    at(f0 + 1 + 2 * k, lambda n=k: (self.kstep_index(n), self.ldB(n, vm)))
            if b == 15:
                for k in range(max(0, nh - 4), nh):
                    at(f0 + 2 * (k - max(0, nh - 4)) + 2, lambda n=k: (self.kstep_index(n), self.ldB(n, vm)))
        self.w2_done = 0
        pre8 = 0
        if o.w2pre:
            for spec in str(o.w2pre).split("+"):
                sb, cnt = map(int, spec.split("x"))
                for k in range(cnt):
                    n = self.w2_done; self.w2_done += 1
                    if sb == 8:
                        pre8 += 1
                    else:
                        at(first[sb] + (10, 11, 0, 3)[k // 1 % 4] if cnt <= 4 else first[sb] + k, lambda n=n: (self.kstep_index(n), self.w2_dma(n, vm)))
        n_pre8_first = self.w2_done - sum(int(x.split("x")[1]) for x in str(o.w2pre).split("+") if x and int(x.split("x")[0]) >= 8) if o.w2pre else 0
        a(f"s_setprio {self.curp}")
        if o.batch:
            BUF = (gA, 16)
            steps = [(b, ks) for b in range(16) for ks in range(4)]
            def nm_of(b): return 4 if b < 8 else 3
            def rdk(q):
                b, ks = steps[q]
                for mt in range(nm_of(b)):
                    if mt == nm_of(b) - 1 and len(lg.q) + 2 > 15:
                        n_keep = 13
                        a(f"s_waitcnt lgkmcnt({n_keep})"); lg.q = lg.q[len(lg.q) - n_keep:]
                    self.tr_pair(BUF[q & 1] + 4 * mt, gT + mt, (b & 3) * 16384 + ks * 4096, 512)
                    lg.issue(("k", q)); lg.issue(("k", q))
            rdk(0); rdk(1)
            for q, (b, ks) in enumerate(steps):
                if ks == 0:
                    if b == o.hiup and b > 0:
                        self.curp = o.prioG
                        a(f"s_setprio {self.curp}")
                    self.trv = 28
                    self.trace_pt(vm, b)
                    if o.gtrace and b in (1, 4, 8, 12):
                        self.stamp({1: 1, 4: 2, 8: 3, 12: 5}[b])
                if q == 32:
                    a(f"s_setprio {o.prioGhi}")
                    for k in range(pre8):
                        self.kstep_index(n_pre8_first + k)
                        self.w2_dma(n_pre8_first + k, vm)
                    a("s_nop 7")
                    self.silu_store(0, 4, vm)
                    a(f"s_setprio {self.curp}")
                    rdk(33)
                    if o.gtrace:
                        self.stamp(4)
                waitcnt(a, lg=lg, ltag=("k", q))
                kk = 4 * (b & 7) + ks
                for mt in range(nm_of(b)):
                    c = "0" if kk == 0 else vr(gC + 16 * mt, 16)
                    a(f"v_mfma_f32_32x32x16_bf16 {vr(gC+16*mt,16)}, {vr(BUF[q&1]+4*mt,4)}, {vr(gX+4*kk,4)}, {c}")
                nb = nm_of(b)
                lo, hi = first[b] + ks * nb, first[b] + (ks + 1) * nb
                late = []
                for n in range(lo, hi):
                    for f in extras.get(n, []):
                        late.append(f)
                if ks == 2 and b < 15:
                    pass
                if q + 2 < len(steps) and q + 2 != 33:
                    rdk(q + 2)
                for f in late:
                    f()
        else:
            for it in items:
                n, b = it[0], it[1]
                if n == first[b] and b == o.hiup and b > 0:
                    self.curp = o.prioG
                    a(f"s_setprio {self.curp}")
                if n == first[b]:
                    self.trv = 28
                    self.trace_pt(vm, b)
                if o.gs and n == first[b] and o.gs <= b < o.gs + 5:
                    self.stamp(b - o.gs + 1)
                if o.gtrace and n == first[b] and b in (1, 4, 8, 12):
                    self.stamp({1: 1, 4: 2, 8: 3, 12: 5}[b])
                if n == first[8]:
                    a(f"s_setprio {o.prioGhi}")
                    for k in range(pre8):
                        self.kstep_index(n_pre8_first + k)
                        self.w2_dma(n_pre8_first + k, vm)
                    a("s_nop 7")
                    self.silu_store(0, 4, vm)
                    a(f"s_setprio {self.curp}")
                    if o.gtrace:
                        self.stamp(4)
                waitcnt(a, lg=lg, ltag=("r", n))
                mf(it)
                if n + LA < len(items):
                    rd(items[n + LA])
                for f in extras.get(n, []):
                    f()
        signal()
        a(f"s_setprio {o.prioGhi}")
        a("s_nop 7\ns_nop 1")
        self.silu_store(4, 3, vm)
        self.stamp(7)
        self.down(vm)

    def q_direct(self, vm):
        a, o = self.a, self.o
        gA, gC, gX = self.gA, self.gC, self.gX
        TMP, FLG = self.gTMP, self.gFL
        if o.ringat == "stg":
            self.spin_lds(FLG, TMP, f"v_cmp_gt_u32 vcc, 1, v{TMP}", off=L_STG)
            self.ring_fill(vm, 0, o.fill)
        self.stamp(3)
        def norm(s):
            for i in range(4):
                r, t = gX + 4 * s + i, 16 + 2 * i + 8 * (s & 1)
                a(f"v_lshlrev_b32 v{t}, 16, v{r}\nv_and_b32 v{t+1}, s{sMASK}, v{r}")
            for i in range(4):
                t = 16 + 2 * i + 8 * (s & 1)
                a(f"v_pk_fma_f32 {vr(t,2)}, {vr(t,2)}, v[32:33], v[34:35] op_sel_hi:[1,0,0]")
            for i in range(4):
                r, t = gX + 4 * s + i, 16 + 2 * i + 8 * (s & 1)
                a(f"v_cvt_pk_bf16_f32 v{r}, v{t}, v{t+1}")
        for s in range(4):
            norm(s)
        a(f"v_and_b32 v36, 1, v1\nv_lshlrev_b32 v36, 2, v36\nv_add_u32 v36, {LFL+L_WQF}, v36")
        self.spin_lds(36, TMP, f"v_cmp_gt_u32 vcc, 1, v{TMP}")
        self.stamp(4)
        for s in range(4):
            self.tr_pair(gA + 4 * s, self.gTQ, 1024 * s, 256)
        for s in range(32):
            if o.gate_at == s:
                a(f"ds_write_b32 v{self.gMY}, v{self.gONE} offset:{L_GATE}")
            if s + 4 < 32:
                norm(s + 4)
            left = min(3, 31 - s)
            a(f"s_waitcnt lgkmcnt({0 if o.gate_at == s else 2*left})")
            c = "0" if s == 0 else vr(gC, 16)
            a(f"v_mfma_f32_32x32x16_bf16 {vr(gC,16)}, {vr(gA+4*(s%4),4)}, {vr(gX+4*s,4)}, {c}")
            if s + 4 < 32:
                self.tr_pair(gA + 4 * (s % 4), self.gTQ, 1024 * (s + 4), 256)

    def silu_store(self, mt0, nm, vm):
        a = self.a
        gC, gE, gP = self.gC, self.gE, self.gP
        for m in range(nm):
            G, U, E, P = gC + 16 * m, gC + 16 * m + 8, gE, gP + 4 * (m & 1)
            for i in range(4):
                a(f"v_pk_mul_f32 {vr(E+2*i,2)}, {vr(G+2*i,2)}, s[{sNL2}:{sNL2+1}]")
            for i in range(8):
                a(f"v_exp_f32 v{E+i}, v{E+i}")
            for i in range(4):
                a(f"v_pk_mul_f32 {vr(G+2*i,2)}, {vr(G+2*i,2)}, {vr(U+2*i,2)}")
            for i in range(4):
                a(f"v_pk_add_f32 {vr(E+2*i,2)}, {vr(E+2*i,2)}, s[{sONE}:{sONE+1}]")
            for i in range(8):
                a(f"v_rcp_f32 v{E+i}, v{E+i}")
            if m == 0 and mt0:
                a(f"s_add_u32 s{sHS}, s{sHS}, {1024*mt0}")
            else:
                a("s_nop 0")
            for i in range(4):
                a(f"v_pk_mul_f32 {vr(G+2*i,2)}, {vr(G+2*i,2)}, {vr(E+2*i,2)}")
            for i in range(4):
                a(f"v_cvt_pk_bf16_f32 v{P+i}, v{G+2*i}, v{G+2*i+1}")
            a(f"buffer_store_dwordx4 {vr(P,4)}, v2, {srd(R_WS)}, s{sHS} offen offset:{1024*m} sc1")
            vm.issue(("h", mt0 + m))
            if self.o.dup & 2:
                a(f"buffer_store_dwordx4 {vr(P,4)}, v2, {srd(R_WS)}, s{sHS} offen offset:{1024*m} {self.o.dupf}")
                vm.issue(("h", mt0 + m))

    def red_addr(self):
        a = self.a
        a(f"v_add_u32 v16, s{sRB}, v2")
        for u in range(1, 4):
            a(f"s_xor_b32 s{sT0}, s{sW}, {u}\ns_lshl_b32 s{sT0}, s{sT0}, 14\ns_add_u32 s{sT0}, s{sT0}, {RB0 + (u-1)*4096}")
            a(f"v_add_u32 v{16+u}, s{sT0}, v2")
        a(f"v_mov_b32 v{self.gTMP}, 18")

    def down(self, vm):
        a, o = self.a, self.o
        gA, gC, gP, dT, dH = self.gA, self.gC, self.gP, self.dT, self.dH
        def rdA(n):
            buf = gA + 8 * (n & 1)
            self.tr_pair(buf, dT, (n & 7) * 2048, 1024)
            self.tr_pair(buf + 4, dT + 1, (n & 7) * 2048, 1024)
        LD = o.LD
        early_gate = 2 <= o.n0 <= 16 - LD
        assert o.n0 < 0 or o.n0 >= 2
        nxt = {"w": self.w2_done if o.w2pre else LD, "b": o.hpre or LD}
        def fill(wmax, bmax):
            while nxt["w"] <= wmax or nxt["b"] <= bmax:
                dw, db = nxt["w"] <= wmax, nxt["b"] <= bmax
                m = min(nxt["w"] if dw else 99, nxt["b"] if db else 99)
                self.kstep_index(m)
                if dw and nxt["w"] == m:
                    self.w2_dma(m, vm); nxt["w"] += 1
                if db and nxt["b"] == m:
                    self.ldB(m, vm); nxt["b"] += 1
        if o.fastred:
            self.red_addr()
            a(f"v_lshrrev_b32 v20, 5, v1\nv_lshl_add_u32 v20, v20, 3, v{self.dXA}\nv_mov_b32 v21, 18")
        vm.wait("xres")
        rdA(0)
        for i in range(8):
            a(f"v_lshlrev_b32 v{gC+2*i}, 16, v{self.dXR+i}")
            a(f"v_and_b32 v{gC+2*i+1}, s{sMASK}, v{self.dXR+i}")
        self.stamp(8)
        self.curp = o.prioGhi if o.hidown > 0 else o.prioG
        a(f"s_setprio {self.curp}")
        def step(n, nP):
            if n == o.hidown and n > 0:
                self.curp = o.prioG
                a(f"s_setprio {self.curp}")
            self.trv = 28
            self.trace_pt(vm, 17 + n)
            if o.dtrace and n in (4, 8, 13, 16, 22):
                self.a(f"s_memrealtime s[{sTS+(1,2,3,4,5)[(4,8,13,16,22).index(n)]-((sTS+(1,2,3,4,5)[(4,8,13,16,22).index(n)])&1)}:{sTS+(1,2,3,4,5)[(4,8,13,16,22).index(n)]-((sTS+(1,2,3,4,5)[(4,8,13,16,22).index(n)])&1)+1}]" if False else "s_nop 0")
                self.stamp({4: 1, 8: 2, 13: 3, 16: 4, 22: 5}[n])
            if n == nP - 3 and nP < 28:
                a(f"s_mov_b32 s{sT3}, {FO}")
                self.peek_global(self.dF, f"s{sT3}", self.vPK, 1, vm, "pko", 8)
            if n == 28 and nP < 28:
                self.stamp(9)
            if n == nP:
                a(f"s_setprio {o.prioGhi}")
                if nP == 28:
                    self.stamp(9)
                    a(f"s_mov_b32 s{sT3}, {FO}")
                    self.poll_global(self.dF, f"s{sT3}", self.vPK, 1, vm, lanes=8)
                else:
                    assert nxt["b"] > 27 and nP >= 20
                    self.poll_global(self.dF, f"s{sT3}", self.vPK, 1, vm, lanes=8, first_issued="pko")
                self.stamp(10)
                for m in range(28, 36):
                    self.kstep_index(m)
                    self.ldB(m, vm)
            if n == o.n0:
                if early_gate:
                    fill(min(n + 7, 35), min(n + 15, 15))
                    a(f"s_mov_b32 s{sT3}, {FH}\ns_setprio {o.prioGhi}")
                    self.poll_global(self.dF, f"s{sT3}", self.vPK, 2, vm, lanes=8, word=1, sleep=2)
                fill(min(n + 7, 35), min(n + 15, 27))
                a(f"s_setprio {o.prioGhi}")
                self.spin_lds(self.gMY, self.gTMP, f"v_cmp_gt_u32 vcc, 1, v{self.gTMP}", sleep=2, off=L_ADONE)
            if n + 1 < 36:
                vm.wait(("w2", n + 1))
                rdA(n + 1)
                vm.wait(("b", n), "lgkmcnt(4)")
            else:
                vm.wait(("b", n), "lgkmcnt(0)")
            buf = gA + 8 * (n & 1)
            for u in ((1, 3, 2, 0) if (o.fastred and n == 35) else (0, 1, 3, 2)):
                ap, bp = u & 1, u >> 1
                c = "0" if (n == 0 and u) else vr(gC + 16 * u, 16)
                a(f"v_mfma_f32_32x32x16_bf16 {vr(gC+16*u,16)}, {vr(buf+4*ap,4)}, {vr(dH+8*(n&15)+4*bp,4)}, {c}")
            if n == 1:
                vm.wait(("h", 6))
                self.flag_store(self.vEP, 1, self.vZ, f"s{sFH}", off=4); vm.issue("fl")
            pk1 = o.pk1 if o.deep >= 0 else 16 - LD - 3
            if n == pk1 and not early_gate:
                self.peek_h("pk1")
            if n == pk1 + 3 and not early_gate:
                self.check_h("pk1", 1)
            if o.n0 >= 0 and n >= o.n0:
                fill(min(n + 8, 35), min(n + 16, 27))
            elif o.deep >= 0 and n >= o.deep:
                bcap = 27 if n >= pk1 + 3 else 15
                fill(min(n + 8, 35, nxt["w"] - 1 + o.dstep), min(n + 16, bcap, nxt["b"] - 1 + o.dstep))
            elif o.LDW == 8:
                fill(min(n + 8, 35), min(n + LD, 27))
            else:
                fill(min(n + (o.LDW or LD), 27), min(n + LD, 27))
                if 20 <= n < 28:
                    fill(n + 8 if nxt["w"] >= 28 else -1, -1)
        if not o.nE:
            for n in range(36):
                step(n, o.nP)
        else:
            import copy
            for n in range(o.nE):
                if n == o.nE - 3:
                    a(f"s_mov_b32 s{sT3}, {FO}")
                    self.peek_global(self.dF, f"s{sT3}", self.vPK, 1, vm, "pko", 8)
                step(n, 99)
            assert nxt["b"] > 27
            Ll, Lj = self.lab("olate"), self.lab("ojoin")
            vm.wait("pko")
            a(f"s_setprio {o.prioGhi}\ns_mov_b64 exec, 0xff\nv_cmp_ne_u32 vcc, s{sE}, v{self.vPK}\ns_mov_b64 exec, -1\ns_setprio {self.curp}")
            a(f"s_cbranch_vccnz {Ll}")
            q0, nx0, cp0 = list(vm.q), dict(nxt), self.curp
            self.stamp(10)
            for m in range(28, 36):
                self.kstep_index(m)
                self.ldB(m, vm)
            for n in range(o.nE, 36):
                if n == 28:
                    self.stamp(9)
                step(n, 99)
            a(f"s_branch {Lj}")
            a(f"{Ll}:")
            vm.q = q0; nxt.update(nx0); self.curp = cp0
            for n in range(o.nE, 36):
                step(n, 28)
            a(f"{Lj}:")
        self.stamp(11)
        if not o.fastred:
            self.red_addr()
            a("s_nop 1")
        else:
            a("s_nop 7\ns_nop 0")
        for u in ((1, 3, 2) if o.fastred else (1, 2, 3)):
            for q in range(4):
                a(f"ds_write_b128 v16, {vr(gC+16*u+4*q,4)} offset:{(u-1)*4096+q*1024}")
        if not o.fastred:
            a(f"v_lshrrev_b32 v20, 5, v1\nv_lshl_add_u32 v20, v20, 3, v{self.dXA}")
        a("s_waitcnt lgkmcnt(0)")
        a(f"ds_write_b32 v{self.gMY}, v{21 if o.fastred else self.gTMP}")
        self.spin_lds(self.gFL, self.gTMP, f"v_cmp_gt_u32 vcc, 18, v{self.gTMP}")
        for u in range(1, 4):
            for q in range(4):
                a(f"ds_read_b128 {vr(gC+16*u+4*q,4)}, v{16+u} offset:{q*1024}")
        for u in range(1, 4):
            a(f"s_waitcnt lgkmcnt({4*(3-u)})")
            for i in range(8):
                a(f"v_pk_add_f32 {vr(gC+2*i,2)}, {vr(gC+2*i,2)}, {vr(gC+16*u+2*i,2)}")
        for i in range(8):
            a(f"v_cvt_pk_bf16_f32 v{gP+i}, v{gC+2*i}, v{gC+2*i+1}")
        a("s_nop 0")
        for k in (0, 4):
            a(f"v_permlane32_swap_b32 v{gP+k}, v{gP+k+2}\nv_permlane32_swap_b32 v{gP+k+1}, v{gP+k+3}")
        a(f"buffer_store_dwordx4 {vr(gP,4)}, v20, {srd(R_OUT)}, s{sOUT} offen {o.ost}")
        a(f"buffer_store_dwordx4 {vr(gP+4,4)}, v20, {srd(R_OUT)}, s{sOUT} offen offset:32 {o.ost}")
        self.stamp(12)
        if o.ts:
            a("s_waitcnt vmcnt(0)")
            self.stamp(13)
        self.stamp_flush()
        a("s_endpgm")

    def build(self):
        a = self.a
        self.prologue()
        self.a_main()
        self.g_early()
        self.g_main()
        self.a_slow()
        a("L_end:")
        a("s_endpgm")
        a("L_code_end:")
        return a


HEADER = """; Fused LayerNorm + MQA attention + SwiGLU FFN, one persistent launch (256 workgroups x 8 waves).
; @launch grid=(256,1,1) block=(512,1,1) lds={lds}
.amdgcn_target "amdgcn-amd-amdhsa--gfx950"
.text
.globl {name}
.p2align 8
.type {name},@function
{name}:
"""
FOOTER = """.section .rodata,"a"
.p2align 6
.amdhsa_kernel {name}
  .amdhsa_next_free_vgpr 256
  .amdhsa_next_free_sgpr 102
  .amdhsa_accum_offset 256
  .amdhsa_group_segment_fixed_size 0
  .amdhsa_kernarg_size 96
  .amdhsa_user_sgpr_count 2
  .amdhsa_user_sgpr_kernarg_segment_ptr 1
  .amdhsa_system_sgpr_workgroup_id_x 1
.end_amdhsa_kernel
"""

def generate(check=True, **kw):
    g = Gen(**kw)
    a = g.build()
    if check:
        errs = check_hazards(a.lines) + check_waits(a.lines)
        for e in errs[:6]:
            print(e, file=sys.stderr)
        if errs:
            print(f"{len(errs)} problems", file=sys.stderr)
    return HEADER.format(name=NAME, lds=LDS_SIZE) + a.text() + FOOTER.format(name=NAME)

if __name__ == "__main__":
    out = "parallel_sum__grouped_kv_mqa__glu_gated_swiglu__prompt.s"
    kw = {}
    args = sys.argv[1:]
    i = 0
    while i < len(args):
        x = args[i]
        if x == "-o":
            out = args[i + 1]; i += 2
        elif "=" in x:
            k, v = x.split("=", 1)
            try:
                v = int(v)
            except ValueError:
                pass
            kw[k] = v; i += 1
        else:
            kw[x.lstrip("-")] = True; i += 1
    txt = generate(**kw)
    open(out, "w").write(txt)
    print("wrote", out, len(txt), "bytes", kw)
```
